```python
import torch

def _softmax(x, axis=-1):
    return torch.softmax(x, dim=axis)
def _gelu(x):
    return torch.nn.functional.gelu(x, approximate="tanh")
def _silu(x):
    return torch.nn.functional.silu(x)
def _sigmoid(x):
    return torch.sigmoid(x)
def _layernorm(x, axis=-1, eps=1e-5):
    m = x.mean(dim=axis, keepdim=True)
    v = x.var(dim=axis, keepdim=True, unbiased=False)
    return (x - m) / torch.sqrt(v + eps)
def _scatter_add(tgt, idx, src, axis=0):
    return tgt.clone().index_add_(axis, idx, src)
def _segment_sum(src, seg, n):
    out = torch.zeros((n,) + src.shape[1:], dtype=src.dtype)
    return out.index_add_(0, seg, src)
def _pad(x, pw):
    flat = tuple(v for pair in reversed(pw) for v in pair)
    return torch.nn.functional.pad(x, flat)

kernel_name = 'standalone__channel_attn_cbam__vision'

def setup_inputs():

    _w = (lambda a: (lambda t: t.to(torch.bfloat16) if t.is_floating_point() else t)(torch.as_tensor(a)))
    H = W = 256
    C = 384
    r = max(C // 4, 1)
    return {
        "x": _w((lambda *s: torch.randn(*s, dtype=torch.bfloat16) * 0.1)(1, H, W, C) + (lambda *s: torch.randn(*s, dtype=torch.bfloat16) * 0.1)(1, 1, 1, C) * 2.0),
        "w1": _w((lambda *s: torch.randn(*s, dtype=torch.bfloat16) * 0.1)(C, r)),
        "w2": _w((lambda *s: torch.randn(*s, dtype=torch.bfloat16) * 0.1)(r, C)),
    }

def reference(x, w1, w2):
    B, H, W, C = x.shape
    xf = x.reshape(B, H * W, C)
    gap = torch.mean(xf, 1)
    gmp = torch.amax(xf, 1)
    h_a = gap @ w1
    h_a = h_a * (lambda x, dt: x.to(dt))(h_a > 0, h_a.dtype)
    h_m = gmp @ w1
    h_m = h_m * (lambda x, dt: x.to(dt))(h_m > 0, h_m.dtype)
    scale = _sigmoid(h_a @ w2 + h_m @ w2)
    return x * scale[:, None, None, :]
```

```python
import sys

KNAME = 'standalone__channel_attn_cbam__vision_kernel'
HEADER = """; Kernarg layout for this problem (48 bytes, ptrs only, base s[0:1]):
"""

XBYTES = 50331648
WBYTES = 73728
HOP2 = 1 << 20
WS_USE = 2 << 20
L_W1, L_W2 = 0, 73728
L_P, L_R, L_G, L_H, L_S = 0, 24576, 28672, 30720, 31744
LDS_BYTES = 147456
S_X, S_W1, S_W2, S_OUT, S_DBG, S_WS = 16, 20, 24, 28, 32, 36
ACC, TMP, W1F, W2F, DATA = 8, 20, 44, 92, 128


class Gen:
    def __init__(self, **kw):
        self.p = dict(D=16, lpol='', spol='sc1', nrep=32, stamps=False, mapping='contig',
                      wpos=None, m1=18, m2=26, cpos=22, ipos=(3, 20), spin=1 << 20, wpol='')
        self.p.update(kw)
        self.o = []
        self.vm = []
        self.nstamp = 0

    def A(self, s):
        self.o.append('    ' + s)

    def L(self, s):
        self.o.append(s + ':')

    def C(self, s):
        self.o.append('    ; ' + s)

    def srd(self, b):
        return f's[{b}:{b + 3}]'

    def issue(self, tag, text):
        self.A(text)
        self.vm.append(tag)

    def wait_for(self, tag):
        i = self.vm.index(tag)
        n = len(self.vm) - 1 - i
        assert n <= 63
        self.A(f's_waitcnt vmcnt({n})')

    def stamp(self):
        if self.p['stamps']:
            k = self.nstamp
            self.A(f's_memrealtime s[{60 + 2 * k}:{61 + 2 * k}]')
            self.nstamp += 1

    def d(self, j, n=3):
        return f'v[{DATA + 4 * j}:{DATA + 4 * j + n - 1}]'

    def spare(self, j):
        return f'v{DATA + 4 * j + 3}'

    def xaddr(self, j):
        m = self.p['mapping']
        if m == 'contigw':
            win, k = divmod(j, 5)
            pre = []
            if k == 0 and win > 0:
                pre = [f's_movk_i32 s40, {win * 3840}']
            so = '0' if win == 0 else 's40'
            return pre, so, k * 768
        step = {'contig': 6144, 'gstride': 6144 * 256}[m]
        if j == 0:
            return [], '0', 0
        if j == 1:
            return [f's_mov_b32 s40, {step}'], 's40', 0
        return [f's_add_u32 s40, s40, {step}'], 's40', 0

    def build(self):
        p = self.p
        A, L, C = self.A, self.L, self.C
        D = p['D']
        o = self.o
        o.append(HEADER.rstrip())
        o.append(f'; @launch grid=(256,1,1) block=(512,1,1) lds={LDS_BYTES}')
        o.append('.amdgcn_target "amdgcn-amd-amdhsa--gfx950"')
        o.append('.text')
        o.append(f'.globl {KNAME}')
        o.append('.p2align 8')
        o.append(f'.type {KNAME},@function')
        L(KNAME)
        self.stamp()
        A(f's_load_dwordx2 s[{S_X}:{S_X + 1}], s[0:1], 0')
        A(f's_load_dwordx2 s[{S_WS}:{S_WS + 1}], s[0:1], 40')
        A(f's_load_dwordx2 s[{S_DBG}:{S_DBG + 1}], s[0:1], 32')
        A(f's_load_dwordx2 s[{S_W1}:{S_W1 + 1}], s[0:1], 8')
        A(f's_load_dwordx2 s[{S_W2}:{S_W2 + 1}], s[0:1], 16')
        A(f's_load_dwordx2 s[{S_OUT}:{S_OUT + 1}], s[0:1], 24')
        A('s_cmp_ge_u32 s2, 256')
        A('s_cbranch_scc1 L_end')
        A('v_lshrrev_b32 v3, 6, v0')
        A('v_and_b32 v1, 63, v0')
        A(f's_mov_b32 s{S_X + 2}, {XBYTES}')
        A('v_readfirstlane_b32 s3, v3')
        A(f's_mov_b32 s{S_X + 3}, 0x20000')
        m = p['mapping']
        wgs, wvs = {'contig': (196608, 768), 'contigw': (196608, 24576), 'gstride': (6144, 768)}[m]
        A(f's_mul_i32 s41, s2, {wgs}')
        A('v_mul_u32_u24 v2, 12, v1')
        A(f'v_mul_u32_u24 v3, {wvs}, v3')
        A('v_add3_u32 v2, v2, v3, s41')
        A(f's_mov_b32 s{S_WS + 2}, {WS_USE}')
        A(f's_mov_b32 s{S_WS + 3}, 0x20000')
        A(f's_mov_b32 s{S_DBG + 2}, 256')
        A(f's_mov_b32 s{S_DBG + 3}, 0x20000')
        A('v_lshlrev_b32 v4, 4, v1')
        A('s_cmp_lg_u32 s3, 7')
        A('s_waitcnt lgkmcnt(0)')
        A('s_cbranch_scc1 L_noclear')
        C('wave 7: fill this workgroup\'s share of the exchange area with the "empty" word, then count in')
        A('v_mov_b32 v8, -1\n    v_mov_b32 v9, -1\n    v_mov_b32 v10, -1\n    v_mov_b32 v11, -1')
        A('s_mul_i32 s42, s2, 3072')
        A('s_lshl_b32 s43, s2, 11')
        A(f's_add_u32 s43, s43, {HOP2}')
        for i in range(3):
            A(f'buffer_store_dwordx4 v[8:11], v4, {self.srd(S_WS)}, s42 offen offset:{1024 * i} sc1')
        for i in range(2):
            A(f'buffer_store_dwordx4 v[8:11], v4, {self.srd(S_WS)}, s43 offen offset:{1024 * i} sc1')
        A('s_and_b32 s42, s2, 3')
        A('s_lshl_b32 s42, s42, 6')
        A('v_mov_b32 v12, 1')
        A('v_mov_b32 v13, 0')
        A('s_mov_b64 exec, 1')
        A('s_waitcnt vmcnt(0)')
        A(f'buffer_atomic_add v12, v13, {self.srd(S_DBG)}, s42 offen sc1')
        A('s_mov_b64 exec, -1')
        L('L_noclear')

        def issue_x(j):
            pre, so, imm = self.xaddr(j)
            for s in pre:
                A(s)
            off = f' offset:{imm}' if imm else ''
            self.issue(f'X{j}', f'buffer_load_dwordx3 {self.d(j)}, v2, {self.srd(S_X)}, {so} offen{off} {p["lpol"]}'.rstrip())

        def issue_w(i):
            mat, k = divmod(i, 9)
            srd = S_W1 if mat == 0 else S_W2
            if k % 4 == 0:
                if k == 0:
                    A('s_mul_i32 s44, s3, 9216')
                else:
                    A('s_add_u32 s44, s44, 4096')
                if mat == 0:
                    A('s_mov_b32 m0, s44')
                else:
                    A(f's_add_u32 m0, s44, {L_W2}')
                A('s_nop 0')
            off = f' offset:{1024 * (k % 4)}' if k % 4 else ''
            self.issue(f'W{i}', f'buffer_load_dwordx4 v4, {self.srd(srd)}, s44 offen{off} lds {p["wpol"]}'.rstrip())

        def issue_i(n):
            self.issue(f'I{n}', f'global_load_dword {self.spare(30 + n)}, v[6:7], off')

        def setup_misc():
            A(f's_mov_b32 s{S_W1 + 2}, {WBYTES}')
            A(f's_mov_b32 s{S_W1 + 3}, 0x20000')
            A(f's_mov_b32 s{S_W2 + 2}, {WBYTES}')
            A(f's_mov_b32 s{S_W2 + 3}, 0x20000')
            A(f's_mov_b32 s{S_OUT + 2}, {XBYTES}')
            A(f's_mov_b32 s{S_OUT + 3}, 0x20000')
            C('address of this thread\'s piece of the kernel text (read only, to pull it into L2)')
            A('s_getpc_b64 s[46:47]')
            L('L_pc')
            A('v_lshlrev_b32 v6, 5, v0')
            A('v_min_u32 v6, L_last - L_pc, v6')
            A('v_mov_b32 v7, s47')
            A('v_add_co_u32 v6, vcc, s46, v6')
            A('s_nop 1')
            A('v_addc_co_u32 v7, vcc, 0, v7, vcc')

        wpos = p['wpos'] or [(4 + i) for i in range(18)]
        after = {}
        for i, k in enumerate(wpos):
            after.setdefault(k, []).append(('W', i))
        after.setdefault(p['ipos'][0], []).append(('I', 0))

        def issue_seq(j):
            issue_x(j)
            if j == 2:
                setup_misc()
            for kind, i in after.get(j, []):
                (issue_w if kind == 'W' else issue_i)(i)

        for j in range(D):
            issue_seq(j)
        self.stamp()
        A('v_lshrrev_b32 v3, 4, v1')
        A('v_bfe_u32 v5, v1, 2, 2')
        A('v_lshl_add_u32 v3, v3, 3, v5')
        A('v_and_b32 v5, 3, v1')
        A('v_lshlrev_b32 v5, 3, v5')
        a1, a1b, a2 = self.spare(0), self.spare(1), self.spare(2)
        A('s_lshl_b32 s45, s3, 5')
        A(f'v_mul_u32_u24 {a1}, 192, v3')
        A(f'v_add3_u32 {a1}, {a1}, v5, s45')
        A(f'v_add_u32 {a1b}, {6 * 6144}, {a1}')
        A('s_mul_i32 s45, s3, 96')
        A(f's_add_u32 s45, s45, {L_W2}')
        A(f'v_mul_u32_u24 {a2}, 768, v3')
        A(f'v_add3_u32 {a2}, {a2}, v5, s45')
        A('s_mov_b32 s48, 0xffff0000')

        trq = []
        for b in range(12):
            for h in range(2):
                base = a1 if b < 6 else a1b
                off = (b % 6) * 6144 + h * 768
                r = W1F + 4 * b + 2 * h
                trq.append(f'ds_read_b64_tr_b16 v[{r}:{r + 1}], {base} offset:{off}')
        for t in range(3):
            for b in range(3):
                for h in range(2):
                    off = b * 24576 + h * 3072 + t * 32
                    r = W2F + 4 * (3 * t + b) + 2 * h
                    trq.append(f'ds_read_b64_tr_b16 v[{r}:{r + 1}], {a2} offset:{off}')

        def unpack(j, t):
            for q in range(3):
                A(f'v_lshlrev_b32 v{t + 2 * q}, 16, v{DATA + 4 * j + q}')
                A(f'v_and_b32 v{t + 2 * q + 1}, s48, v{DATA + 4 * j + q}')

        m1, m2 = p['m1'], p['m2']
        assert m1 % 2 == 0 and m2 % 2 == 0
        for j in range(0, 32, 2):
            if j == m1:
                self.wait_for('W17')
                A('s_barrier')
            if j == m2:
                while trq:
                    A(trq.pop(0))
                A('s_waitcnt lgkmcnt(0)')
                A('s_barrier')
            if j == p['cpos']:
                assert j >= 32 - D
                A('s_cmp_lg_u32 s3, 3')
                A('s_cbranch_scc1 L_nocnt')
                A('v_lshlrev_b32 v3, 6, v1')
                A(f'buffer_load_dword {self.spare(3)}, v3, {self.srd(S_DBG)}, 0 offen sc1')
                L('L_nocnt')
            if j == p['ipos'][1]:
                assert p['ipos'][1] < p['cpos']
                issue_i(1)
            for jj in (j, j + 1):
                self.wait_for(f'X{jj}')
                t = TMP + 6 * (jj & 1)
                unpack(jj, t)
                if jj + D < 32:
                    issue_seq(jj + D)
                for q in range(3):
                    a = ACC + 4 * q
                    if jj == 0:
                        continue
                    if jj == 1:
                        A(f'v_pk_add_f32 v[{a}:{a + 1}], v[{TMP + 2 * q}:{TMP + 2 * q + 1}], v[{t + 2 * q}:{t + 2 * q + 1}]')
                    else:
                        A(f'v_pk_add_f32 v[{a}:{a + 1}], v[{a}:{a + 1}], v[{t + 2 * q}:{t + 2 * q + 1}]')
            for q in range(3):
                for h in range(2):
                    a = ACC + 4 * q + 2 + h
                    if j == 0:
                        A(f'v_max_f32 v{a}, v{TMP + 2 * q + h}, v{TMP + 6 + 2 * q + h}')
                    else:
                        A(f'v_max3_f32 v{a}, v{a}, v{TMP + 2 * q + h}, v{TMP + 6 + 2 * q + h}')
            if m1 <= j < m2:
                n = -(-len(trq) // ((m2 - j) // 2))
                for _ in range(min(n, len(trq))):
                    A(trq.pop(0))
            if j == m2:
                self.tail_addr_prep()
        self.stamp()
        aP = self.spare(4)
        for q in range(3):
            A(f'ds_write_b128 {aP}, v[{ACC + 4 * q}:{ACC + 4 * q + 3}] offset:{16 * q}')
        A('s_cmp_lg_u32 s3, 3')
        A('s_cbranch_scc1 L_cntok')
        C('wave 3: every workgroup must have emptied its share of the exchange area')
        A(f's_mov_b32 s50, {p["spin"]}')
        A('s_mov_b64 exec, 15')
        L('L_cntloop')
        A('s_waitcnt vmcnt(0)')
        A(f'v_cmp_ne_u32 vcc, 64, {self.spare(3)}')
        A('s_cbranch_vccz L_cntdone')
        A(f'buffer_load_dword {self.spare(3)}, v3, {self.srd(S_DBG)}, 0 offen sc1')
        A('s_sub_u32 s50, s50, 1')
        A('s_cbranch_scc0 L_cntloop')
        L('L_cntdone')
        A('s_mov_b64 exec, -1')
        L('L_cntok')
        A('s_waitcnt lgkmcnt(0)')
        A('s_barrier')
        A('s_cmp_ge_u32 s3, 3')
        A('s_cbranch_scc1 L_nopub')
        aT16, aPub = self.spare(5), self.spare(6)
        for w in range(8):
            A(f'ds_read_b128 v[{8 + 4 * w}:{11 + 4 * w}], {aT16} offset:{L_P + 3072 * w}')
        self.reduce8()
        A(f'buffer_store_dwordx4 v[8:11], {aPub}, {self.srd(S_WS)}, 0 offen sc1')
        L('L_nopub')
        self.stamp()
        A('s_cmp_ge_u32 s2, 48')
        A('s_cbranch_scc1 L_notred')
        aIn1, aRw, aRr, aOut2 = self.spare(7), self.spare(8), self.spare(9), self.spare(10)
        A(f's_mov_b32 s50, {p["spin"]}')
        L('L_poll1')
        A(f'buffer_load_dwordx4 v[12:15], {aIn1}, {self.srd(S_WS)}, 0 offen sc1')
        A(f'buffer_load_dwordx4 v[16:19], {aIn1}, {self.srd(S_WS)}, 0 offen offset:1024 sc1')
        A('s_waitcnt vmcnt(0)')
        A('v_max3_u32 v20, v12, v13, v14')
        A('v_max3_u32 v21, v16, v17, v18')
        A('v_max3_u32 v20, v20, v15, v19')
        A('v_max_u32 v20, v20, v21')
        A('v_cmp_eq_u32 vcc, -1, v20')
        A('s_cbranch_vccz L_poll1done')
        A('s_sub_u32 s50, s50, 1')
        A('s_cbranch_scc0 L_poll1')
        L('L_poll1done')
        A('v_add_f32 v12, v12, v16')
        A('v_add_f32 v13, v13, v17')
        A('v_max_f32 v14, v14, v18')
        A('v_max_f32 v15, v15, v19')
        self.ror_reduce(12)
        A('s_mov_b32 exec_lo, 0x000f000f')
        A('s_mov_b32 exec_hi, 0x000f000f')
        A(f'ds_write_b128 {aRw}, v[12:15]')
        A('s_mov_b64 exec, -1')
        A('s_waitcnt lgkmcnt(0)')
        A('s_barrier')
        for w in range(8):
            A(f'ds_read_b128 v[{8 + 4 * w}:{11 + 4 * w}], {aRr} offset:{256 * w}')
        self.reduce8()
        A('s_nop 0')
        self.ror_reduce(8)
        A('v_mul_f32 v8, 0x37800000, v8')
        A('v_mul_f32 v9, 0x37800000, v9')
        A('v_cvt_pk_bf16_f32 v13, v10, v11')
        A('v_cvt_pk_bf16_f32 v12, v8, v9')
        A('v_min_u32 v13, -2, v13')
        A('v_min_u32 v12, -2, v12')
        nrep = p['nrep']
        if nrep < 128:
            nthr = nrep * 4
            if nthr >= 64:
                A(f's_cmp_ge_u32 s3, {nthr // 64}')
                A('s_cbranch_scc1 L_notred')
            else:
                A('s_cmp_ge_u32 s3, 1')
                A('s_cbranch_scc1 L_notred')
                A(f's_mov_b64 exec, {(1 << nthr) - 1:#x}' if nthr < 32 else 's_mov_b32 exec_hi, 0')
        A(f'buffer_store_dwordx2 v[12:13], {aOut2}, {self.srd(S_WS)}, 0 offen sc1')
        if nrep == 256:
            A(f's_mov_b32 s51, {128 * 2048}')
            A(f'buffer_store_dwordx2 v[12:13], {aOut2}, {self.srd(S_WS)}, s51 offen sc1')
        A('s_mov_b64 exec, -1')
        L('L_notred')
        self.stamp()
        aIn2, aGw, aGw2 = self.spare(11), self.spare(12), self.spare(13)
        A('s_cmp_lg_u32 s3, 7')
        A('s_cbranch_scc1 L_nopoll2')
        A(f's_mov_b32 s50, {p["spin"]}')
        A('s_mov_b32 exec_hi, 0xffff')
        L('L_poll2')
        A(f'buffer_load_dwordx4 v[12:15], {aIn2}, {self.srd(S_WS)}, 0 offen sc1')
        A(f'buffer_load_dwordx4 v[16:19], {aIn2}, {self.srd(S_WS)}, 0 offen offset:768 sc1')
        A('s_waitcnt vmcnt(0)')
        A('v_max3_u32 v20, v12, v13, v14')
        A('v_max3_u32 v21, v16, v17, v18')
        A('v_max3_u32 v20, v20, v15, v19')
        A('v_max_u32 v20, v20, v21')
        A('v_cmp_eq_u32 vcc, -1, v20')
        A('s_cbranch_vccz L_poll2done')
        A('s_sub_u32 s50, s50, 1')
        A('s_cbranch_scc0 L_poll2')
        L('L_poll2done')
        A(f'ds_write2_b32 {aGw}, v12, v14 offset0:0 offset1:1')
        A(f'ds_write2_b32 {aGw}, v13, v15 offset0:192 offset1:193')
        A(f'ds_write2_b32 {aGw2}, v16, v18 offset0:0 offset1:1')
        A(f'ds_write2_b32 {aGw2}, v17, v19 offset0:192 offset1:193')
        A('s_mov_b64 exec, -1')
        A('s_waitcnt lgkmcnt(0)')
        L('L_nopoll2')
        A('s_barrier')
        self.stamp()
        aG, aHw, aH, aSw, aS = (self.spare(k) for k in (14, 15, 16, 17, 18))
        A('s_cmp_ge_u32 s3, 6')
        A('s_cbranch_scc1 L_nol1')
        NB = 8
        for b in range(NB):
            A(f'ds_read_b128 v[{8 + 4 * b}:{11 + 4 * b}], {aG} offset:{64 * b}')
        issued = NB
        for b in range(12):
            A(f's_waitcnt lgkmcnt({issued - b - 1})')
            g = 8 + 4 * (b % NB)
            c = '0' if b == 0 else 'v[40:43]'
            A(f'v_mfma_f32_16x16x32_bf16 v[40:43], v[{W1F + 4 * b}:{W1F + 4 * b + 3}], v[{g}:{g + 3}], {c}')
            if issued < 12:
                A(f'ds_read_b128 v[{g}:{g + 3}], {aG} offset:{64 * issued}')
                issued += 1
        A('s_nop 7')
        for r in range(4):
            A(f'v_mul_f32 v{8 + r}, 0, v{40 + r}')
            A(f'v_cmp_lt_f32 s[{52 + 2 * r}:{53 + 2 * r}], 0, v{40 + r}')
        A('s_mov_b32 exec_lo, 0x00030003')
        A('s_mov_b32 exec_hi, 0x00030003')
        for r in range(4):
            A(f'v_cndmask_b32 v{8 + r}, v{8 + r}, v{40 + r}, s[{52 + 2 * r}:{53 + 2 * r}]')
        A('v_cvt_pk_bf16_f32 v12, v8, v9')
        A('v_cvt_pk_bf16_f32 v13, v10, v11')
        A(f'ds_write_b64 {aHw}, v[12:13]')
        A('s_mov_b64 exec, -1')
        A('s_waitcnt lgkmcnt(0)')
        L('L_nol1')
        A('s_barrier')
        for b in range(3):
            A(f'ds_read_b128 v[{8 + 4 * b}:{11 + 4 * b}], {aH} offset:{64 * b}')
        A('v_cmp_gt_u32 s[52:53], 16, v1')
        A('v_cmp_gt_u32 s[54:55], 32, v1')
        for b in range(3):
            A(f's_waitcnt lgkmcnt({2 - b})')
            for t in range(3):
                dd = 20 + 4 * t
                c = '0' if b == 0 else f'v[{dd}:{dd + 3}]'
                wf = W2F + 4 * (3 * t + b)
                A(f'v_mfma_f32_16x16x32_bf16 v[{dd}:{dd + 3}], v[{8 + 4 * b}:{11 + 4 * b}], v[{wf}:{wf + 3}], {c}')
        A('s_nop 7')
        A('v_cndmask_b32 v8, v28, v24, s[54:55]')
        A('v_cndmask_b32 v9, v29, v25, s[54:55]')
        A('v_cndmask_b32 v8, v8, v20, s[52:53]')
        A('v_cndmask_b32 v9, v9, v21, s[52:53]')
        A('v_cvt_pk_bf16_f32 v8, v8, v9')
        A('v_lshlrev_b32 v9, 16, v8')
        A('v_and_b32 v8, s48, v8')
        A('v_add_f32 v8, v8, v9')
        A('v_cvt_pk_bf16_f32 v8, v8, v8')
        A('v_and_b32 v8, s48, v8')
        A('v_mul_f32 v8, 0xbfb8aa3b, v8')
        A('v_exp_f32 v8, v8')
        A('s_nop 0')
        A('v_add_f32 v8, 1.0, v8')
        A('v_rcp_f32 v8, v8')
        A('s_mov_b32 exec_hi, 0xffff')
        A('v_cvt_pk_bf16_f32 v8, v8, v8')
        A('v_and_b32 v8, s48, v8')
        A(f'ds_write_b32 {aSw}, v8')
        A('s_mov_b64 exec, -1')
        A('s_waitcnt lgkmcnt(0)')
        A('s_barrier')
        for q in range(3):
            A(f'ds_read_b64 v[{32 + 2 * q}:{33 + 2 * q}], {aS} offset:{8 * q}')
        self.stamp()
        for j in range(32):
            t = 8 + 6 * (j & 3)
            unpack(j, t)
            if j == 0:
                A('s_waitcnt lgkmcnt(0)')
            for q in range(3):
                A(f'v_pk_mul_f32 v[{t + 2 * q}:{t + 2 * q + 1}], v[{t + 2 * q}:{t + 2 * q + 1}], v[{32 + 2 * q}:{33 + 2 * q}]')
            for q in range(3):
                A(f'v_cvt_pk_bf16_f32 v{DATA + 4 * j + q}, v{t + 2 * q}, v{t + 2 * q + 1}')
            pre, so, imm = self.xaddr(j)
            for s in pre:
                A(s)
            off = f' offset:{imm}' if imm else ''
            A(f'buffer_store_dwordx3 {self.d(j)}, v2, {self.srd(S_OUT)}, {so} offen{off} {p["spol"]}'.rstrip())
        if p['stamps']:
            A('s_waitcnt vmcnt(0)')
            self.stamp()
            A('s_waitcnt lgkmcnt(0)')
            A(f's_add_u32 s56, s{S_WS}, 0x8000000')
            A(f's_addc_u32 s57, s{S_WS + 1}, 0')
            A('s_lshl_b32 s58, s2, 4\n    s_add_u32 s58, s58, s3\n    s_lshl_b32 s58, s58, 6')
            A('s_mov_b64 exec, 1')
            A('v_mov_b32 v1, s58')
            for k in range(self.nstamp):
                A(f'v_mov_b32 v4, s{60 + 2 * k}\n    v_mov_b32 v5, s{61 + 2 * k}')
                A(f'global_store_dwordx2 v1, v[4:5], s[56:57] offset:{8 * k}')
                A('s_nop 1')
        L('L_end')
        L('L_last')
        A('s_endpgm')
        o.append('.section .rodata,"a"')
        o.append('.p2align 6')
        o.append(f'.amdhsa_kernel {KNAME}')
        o.append('  .amdhsa_next_free_vgpr 256')
        o.append('  .amdhsa_next_free_sgpr 96')
        o.append('  .amdhsa_accum_offset 256')
        o.append('  .amdhsa_group_segment_fixed_size 0')
        o.append('  .amdhsa_kernarg_size 48')
        o.append('  .amdhsa_user_sgpr_count 2')
        o.append('  .amdhsa_user_sgpr_kernarg_segment_ptr 1')
        o.append('  .amdhsa_system_sgpr_workgroup_id_x 1')
        o.append('  .amdhsa_float_denorm_mode_32 3')
        o.append('.end_amdhsa_kernel')
        return '\n'.join(o) + '\n'

    def reduce8(self):
        A = self.A
        for k, (a, b) in enumerate([(0, 1), (2, 3), (4, 5), (6, 7)]):
            A(f's_waitcnt lgkmcnt({6 - 2 * k})')
            ra, rb = 8 + 4 * a, 8 + 4 * b
            A(f'v_pk_add_f32 v[{ra}:{ra + 1}], v[{ra}:{ra + 1}], v[{rb}:{rb + 1}]')
            if k == 0:
                A(f'v_max_f32 v10, v10, v{rb + 2}')
                A(f'v_max_f32 v11, v11, v{rb + 3}')
            else:
                A(f'v_max3_f32 v10, v10, v{ra + 2}, v{rb + 2}')
                A(f'v_max3_f32 v11, v11, v{ra + 3}, v{rb + 3}')
            if k == 1:
                A('v_pk_add_f32 v[8:9], v[8:9], v[16:17]')
        A('v_pk_add_f32 v[24:25], v[24:25], v[32:33]')
        A('v_pk_add_f32 v[8:9], v[8:9], v[24:25]')

    def ror_reduce(self, r):
        A = self.A
        for sh in (8, 4):
            A(f'v_max_f32_dpp v{r + 2}, v{r + 2}, v{r + 2} row_ror:{sh} row_mask:0xf bank_mask:0xf') if False else None
            A('s_nop 1')
            A(f'v_add_f32_dpp v{r}, v{r}, v{r} row_ror:{sh} row_mask:0xf bank_mask:0xf')
            A(f'v_add_f32_dpp v{r + 1}, v{r + 1}, v{r + 1} row_ror:{sh} row_mask:0xf bank_mask:0xf')
            A(f'v_max_f32_dpp v{r + 2}, v{r + 2}, v{r + 2} row_ror:{sh} row_mask:0xf bank_mask:0xf')
            A(f'v_max_f32_dpp v{r + 3}, v{r + 3}, v{r + 3} row_ror:{sh} row_mask:0xf bank_mask:0xf')

    def tail_addr_prep(self):
        A = self.A
        sp = self.spare
        nrep = self.p['nrep']
        A('s_mul_i32 s45, s3, 3072')
        A(f'v_mul_u32_u24 {sp(4)}, 48, v1')
        A(f'v_add_u32 {sp(4)}, s45, {sp(4)}')
        A(f'v_lshlrev_b32 {sp(5)}, 4, v0')
        A('v_lshrrev_b32 v5, 2, v0')
        A(f'v_lshlrev_b32 {sp(6)}, 14, v5')
        A(f'v_and_b32 {sp(19)}, 3, v0')
        A(f'v_lshl_add_u32 {sp(6)}, {sp(19)}, 4, {sp(6)}')
        A('s_lshl_b32 s45, s2, 6')
        A(f'v_add_u32 {sp(6)}, s45, {sp(6)}')
        A('s_lshl_b32 s45, s2, 14')
        A('s_lshl_b32 s49, s3, 11')
        A('s_add_u32 s45, s45, s49')
        A(f'v_add_u32 {sp(7)}, s45, v4')
        A('s_lshl_b32 s45, s3, 8')
        A(f's_add_u32 s45, s45, {L_R}')
        A(f'v_lshrrev_b32 {sp(20)}, 4, v1')
        A(f'v_lshlrev_b32 {sp(8)}, 6, {sp(20)}')
        A(f'v_lshl_add_u32 {sp(8)}, {sp(19)}, 4, {sp(8)}')
        A(f'v_add_u32 {sp(8)}, s45, {sp(8)}')
        A(f'v_and_b32 {sp(9)}, 0xf0, v4')
        A(f'v_add_u32 {sp(9)}, {L_R}, {sp(9)}')
        A(f'v_lshlrev_b32 {sp(10)}, 11, v5')
        A(f'v_lshl_add_u32 {sp(10)}, {sp(19)}, 3, {sp(10)}')
        A('s_lshl_b32 s45, s2, 5')
        A(f's_add_u32 s45, s45, {HOP2}')
        A(f'v_add_u32 {sp(10)}, s45, {sp(10)}')
        A(f's_and_b32 s45, s2, {nrep - 1}')
        A('s_lshl_b32 s45, s45, 11')
        A(f's_add_u32 s45, s45, {HOP2}')
        A(f'v_add_u32 {sp(11)}, s45, v4')
        A(f'v_lshlrev_b32 {sp(12)}, 3, v1')
        A(f'v_add_u32 {sp(13)}, {L_G + 384}, {sp(12)}')
        A(f'v_add_u32 {sp(12)}, {L_G}, {sp(12)}')
        A(f'v_and_b32 {sp(21)}, 1, v1')
        A(f'v_mul_u32_u24 {sp(14)}, 768, {sp(21)}')
        A(f'v_lshl_add_u32 {sp(14)}, {sp(20)}, 4, {sp(14)}')
        A(f'v_add_u32 {sp(14)}, {L_G}, {sp(14)}')
        A(f'v_mul_u32_u24 {sp(21)}, 192, {sp(21)}')
        A(f'v_add_u32 {sp(21)}, {L_H}, {sp(21)}')
        A(f'v_lshl_add_u32 {sp(16)}, {sp(20)}, 4, {sp(21)}')
        A(f'v_lshl_add_u32 {sp(15)}, {sp(20)}, 3, {sp(21)}')
        A('s_lshl_b32 s45, s3, 5')
        A(f'v_add_u32 {sp(15)}, s45, {sp(15)}')
        A('s_mul_i32 s45, s3, 192')
        A(f's_add_u32 s45, s45, {L_S}')
        A(f'v_lshl_add_u32 {sp(17)}, v1, 2, s45')
        A(f'v_mul_u32_u24 {sp(18)}, 24, v1')
        A(f'v_add_u32 {sp(18)}, {L_S}, {sp(18)}')


if __name__ == '__main__':
    kw = eval('dict(%s)' % (sys.argv[2] if len(sys.argv) > 2 else ''))
    open(sys.argv[1], 'w').write(Gen(**kw).build())
```

```python
import sys

KNAME = 'standalone__channel_attn_cbam__vision_kernel'
HEADER = """; Kernarg layout for this problem (48 bytes, ptrs only, base s[0:1]):
"""

XBYTES = 50331648
WBYTES = 73728
HOP2 = 1 << 20
WS_USE = 2 << 20
L_W1, L_W2 = 0, 73728
L_P, L_R, L_G, L_H, L_S = 0, 24576, 28672, 30720, 31744
LDS_BYTES = 147456
S_X, S_W1, S_W2, S_OUT, S_DBG, S_WS = 16, 20, 24, 28, 32, 36
ACC, TMP, W1F, W2F, DATA = 8, 20, 44, 92, 128


class Gen:
    def __init__(self, **kw):
        self.p = dict(D=16, lpol='', spol='sc1', nrep=32, stamps=False, mapping='contig',
                      wpos=None, m1=18, m2=26, cpos=22, ipos=(3, 20), spin=1 << 20, wpol='')
        self.p.update(kw)
        self.o = []
        self.vm = []
        self.nstamp = 0

    def A(self, s):
        self.o.append('    ' + s)

    def L(self, s):
        self.o.append(s + ':')

    def C(self, s):
        self.o.append('    ; ' + s)

    def srd(self, b):
        return f's[{b}:{b + 3}]'

    def issue(self, tag, text):
        self.A(text)
        self.vm.append(tag)

    def wait_for(self, tag):
        i = self.vm.index(tag)
        n = len(self.vm) - 1 - i
        assert n <= 63
        self.A(f's_waitcnt vmcnt({n})')

    def stamp(self):
        if self.p['stamps']:
            k = self.nstamp
            self.A(f's_memrealtime s[{60 + 2 * k}:{61 + 2 * k}]')
            self.nstamp += 1

    def d(self, j, n=3):
        return f'v[{DATA + 4 * j}:{DATA + 4 * j + n - 1}]'

    def spare(self, j):
        return f'v{DATA + 4 * j + 3}'

    def xaddr(self, j):
        m = self.p['mapping']
        if m == 'contigw':
            win, k = divmod(j, 5)
            pre = []
            if k == 0 and win > 0:
                pre = [f's_movk_i32 s40, {win * 3840}']
            so = '0' if win == 0 else 's40'
            return pre, so, k * 768
        step = {'contig': 6144, 'gstride': 6144 * 256}[m]
        if j == 0:
            return [], '0', 0
        if j == 1:
            return [f's_mov_b32 s40, {step}'], 's40', 0
        return [f's_add_u32 s40, s40, {step}'], 's40', 0

    def build(self):
        p = self.p
        A, L, C = self.A, self.L, self.C
        D = p['D']
        o = self.o
        o.append(HEADER.rstrip())
        o.append(f'; @launch grid=(256,1,1) block=(512,1,1) lds={LDS_BYTES}')
        o.append('.amdgcn_target "amdgcn-amd-amdhsa--gfx950"')
        o.append('.text')
        o.append(f'.globl {KNAME}')
        o.append('.p2align 8')
        o.append(f'.type {KNAME},@function')
        L(KNAME)
        self.stamp()
        A(f's_load_dwordx2 s[{S_X}:{S_X + 1}], s[0:1], 0')
        A(f's_load_dwordx2 s[{S_WS}:{S_WS + 1}], s[0:1], 40')
        A(f's_load_dwordx2 s[{S_DBG}:{S_DBG + 1}], s[0:1], 32')
        A(f's_load_dwordx2 s[{S_W1}:{S_W1 + 1}], s[0:1], 8')
        A(f's_load_dwordx2 s[{S_W2}:{S_W2 + 1}], s[0:1], 16')
        A(f's_load_dwordx2 s[{S_OUT}:{S_OUT + 1}], s[0:1], 24')
        A('s_cmp_ge_u32 s2, 256')
        A('s_cbranch_scc1 L_end')
        A('v_lshrrev_b32 v3, 6, v0')
        A('v_and_b32 v1, 63, v0')
        A(f's_mov_b32 s{S_X + 2}, {XBYTES}')
        A('v_readfirstlane_b32 s3, v3')
        A(f's_mov_b32 s{S_X + 3}, 0x20000')
        m = p['mapping']
        wgs, wvs = {'contig': (196608, 768), 'contigw': (196608, 24576), 'gstride': (6144, 768)}[m]
        A(f's_mul_i32 s41, s2, {wgs}')
        A('v_mul_u32_u24 v2, 12, v1')
        A(f'v_mul_u32_u24 v3, {wvs}, v3')
        A('v_add3_u32 v2, v2, v3, s41')
        A(f's_mov_b32 s{S_WS + 2}, {WS_USE}')
        A(f's_mov_b32 s{S_WS + 3}, 0x20000')
        A(f's_mov_b32 s{S_DBG + 2}, 256')
        A(f's_mov_b32 s{S_DBG + 3}, 0x20000')
        A('v_lshlrev_b32 v4, 4, v1')
        A('s_cmp_lg_u32 s3, 7')
        A('s_waitcnt lgkmcnt(0)')
        A('s_cbranch_scc1 L_noclear')
        C('wave 7: fill this workgroup\'s share of the exchange area with the "empty" word, then count in')
        A('v_mov_b32 v8, -1\n    v_mov_b32 v9, -1\n    v_mov_b32 v10, -1\n    v_mov_b32 v11, -1')
        A('s_mul_i32 s42, s2, 3072')
        A('s_lshl_b32 s43, s2, 11')
        A(f's_add_u32 s43, s43, {HOP2}')
        for i in range(3):
            A(f'buffer_store_dwordx4 v[8:11], v4, {self.srd(S_WS)}, s42 offen offset:{1024 * i} sc1')
        for i in range(2):
            A(f'buffer_store_dwordx4 v[8:11], v4, {self.srd(S_WS)}, s43 offen offset:{1024 * i} sc1')
        A('s_and_b32 s42, s2, 3')
        A('s_lshl_b32 s42, s42, 6')
        A('v_mov_b32 v12, 1')
        A('v_mov_b32 v13, 0')
        A('s_mov_b64 exec, 1')
        A('s_waitcnt vmcnt(0)')
        A(f'buffer_atomic_add v12, v13, {self.srd(S_DBG)}, s42 offen sc1')
        A('s_mov_b64 exec, -1')
        L('L_noclear')

        def issue_x(j):
            pre, so, imm = self.xaddr(j)
            for s in pre:
                A(s)
            off = f' offset:{imm}' if imm else ''
            self.issue(f'X{j}', f'buffer_load_dwordx3 {self.d(j)}, v2, {self.srd(S_X)}, {so} offen{off} {p["lpol"]}'.rstrip())

        def issue_w(i):
            mat, k = divmod(i, 9)
            srd = S_W1 if mat == 0 else S_W2
            if k % 4 == 0:
                if k == 0:
                    A('s_mul_i32 s44, s3, 9216')
                else:
                    A('s_add_u32 s44, s44, 4096')
                if mat == 0:
                    A('s_mov_b32 m0, s44')
                else:
                    A(f's_add_u32 m0, s44, {L_W2}')
                A('s_nop 0')
            off = f' offset:{1024 * (k % 4)}' if k % 4 else ''
            self.issue(f'W{i}', f'buffer_load_dwordx4 v4, {self.srd(srd)}, s44 offen{off} lds {p["wpol"]}'.rstrip())

        def issue_i(n):
            self.issue(f'I{n}', f'global_load_dword {self.spare(30 + n)}, v[6:7], off')

        def setup_misc():
            A(f's_mov_b32 s{S_W1 + 2}, {WBYTES}')
            A(f's_mov_b32 s{S_W1 + 3}, 0x20000')
            A(f's_mov_b32 s{S_W2 + 2}, {WBYTES}')
            A(f's_mov_b32 s{S_W2 + 3}, 0x20000')
            A(f's_mov_b32 s{S_OUT + 2}, {XBYTES}')
            A(f's_mov_b32 s{S_OUT + 3}, 0x20000')
            C('address of this thread\'s piece of the kernel text (read only, to pull it into L2)')
            A('s_getpc_b64 s[46:47]')
            L('L_pc')
            A('v_lshlrev_b32 v6, 5, v0')
            A('v_min_u32 v6, L_last - L_pc, v6')
            A('v_mov_b32 v7, s47')
            A('v_add_co_u32 v6, vcc, s46, v6')
            A('s_nop 1')
            A('v_addc_co_u32 v7, vcc, 0, v7, vcc')

        wpos = p['wpos'] or [(4 + i) for i in range(18)]
        after = {}
        for i, k in enumerate(wpos):
            after.setdefault(k, []).append(('W', i))
        after.setdefault(p['ipos'][0], []).append(('I', 0))

        def issue_seq(j):
            issue_x(j)
            if j == 2:
                setup_misc()
            for kind, i in after.get(j, []):
                (issue_w if kind == 'W' else issue_i)(i)

        for j in range(D):
            issue_seq(j)
        self.stamp()
        A('v_lshrrev_b32 v3, 4, v1')
        A('v_bfe_u32 v5, v1, 2, 2')
        A('v_lshl_add_u32 v3, v3, 3, v5')
        A('v_and_b32 v5, 3, v1')
        A('v_lshlrev_b32 v5, 3, v5')
        a1, a1b, a2 = self.spare(0), self.spare(1), self.spare(2)
        A('s_lshl_b32 s45, s3, 5')
        A(f'v_mul_u32_u24 {a1}, 192, v3')
        A(f'v_add3_u32 {a1}, {a1}, v5, s45')
        A(f'v_add_u32 {a1b}, {6 * 6144}, {a1}')
        A('s_mul_i32 s45, s3, 96')
        A(f's_add_u32 s45, s45, {L_W2}')
        A(f'v_mul_u32_u24 {a2}, 768, v3')
        A(f'v_add3_u32 {a2}, {a2}, v5, s45')
        A('s_mov_b32 s48, 0xffff0000')

        trq = []
        for b in range(12):
            for h in range(2):
                base = a1 if b < 6 else a1b
                off = (b % 6) * 6144 + h * 768
                r = W1F + 4 * b + 2 * h
                trq.append(f'ds_read_b64_tr_b16 v[{r}:{r + 1}], {base} offset:{off}')
        for t in range(3):
            for b in range(3):
                for h in range(2):
                    off = b * 24576 + h * 3072 + t * 32
                    r = W2F + 4 * (3 * t + b) + 2 * h
                    trq.append(f'ds_read_b64_tr_b16 v[{r}:{r + 1}], {a2} offset:{off}')

        def unpack(j, t):
            for q in range(3):
                A(f'v_lshlrev_b32 v{t + 2 * q}, 16, v{DATA + 4 * j + q}')
                A(f'v_and_b32 v{t + 2 * q + 1}, s48, v{DATA + 4 * j + q}')

        m1, m2 = p['m1'], p['m2']
        assert m1 % 2 == 0 and m2 % 2 == 0
        for j in range(0, 32, 2):
            if j == m1:
                self.wait_for('W17')
                A('s_barrier')
            if j == m2:
                while trq:
                    A(trq.pop(0))
                A('s_waitcnt lgkmcnt(0)')
                A('s_barrier')
            if j == p['cpos']:
                assert j >= 32 - D
                A('s_cmp_lg_u32 s3, 3')
                A('s_cbranch_scc1 L_nocnt')
                A('v_lshlrev_b32 v3, 6, v1')
                A(f'buffer_load_dword {self.spare(3)}, v3, {self.srd(S_DBG)}, 0 offen sc1')
                L('L_nocnt')
            if j == p['ipos'][1]:
                assert p['ipos'][1] < p['cpos']
                issue_i(1)
            for jj in (j, j + 1):
                self.wait_for(f'X{jj}')
                t = TMP + 6 * (jj & 1)
                unpack(jj, t)
                if jj + D < 32:
                    issue_seq(jj + D)
                for q in range(3):
                    a = ACC + 4 * q
                    if jj == 0:
                        continue
                    if jj == 1:
                        A(f'v_pk_add_f32 v[{a}:{a + 1}], v[{TMP + 2 * q}:{TMP + 2 * q + 1}], v[{t + 2 * q}:{t + 2 * q + 1}]')
                    else:
                        A(f'v_pk_add_f32 v[{a}:{a + 1}], v[{a}:{a + 1}], v[{t + 2 * q}:{t + 2 * q + 1}]')
            for q in range(3):
                for h in range(2):
                    a = ACC + 4 * q + 2 + h
                    if j == 0:
                        A(f'v_max_f32 v{a}, v{TMP + 2 * q + h}, v{TMP + 6 + 2 * q + h}')
                    else:
                        A(f'v_max3_f32 v{a}, v{a}, v{TMP + 2 * q + h}, v{TMP + 6 + 2 * q + h}')
            if m1 <= j < m2:
                n = -(-len(trq) // ((m2 - j) // 2))
                for _ in range(min(n, len(trq))):
                    A(trq.pop(0))
            if j == m2:
                self.tail_addr_prep()
        self.stamp()
        aP = self.spare(4)
        for q in range(3):
            A(f'ds_write_b128 {aP}, v[{ACC + 4 * q}:{ACC + 4 * q + 3}] offset:{16 * q}')
        A('s_cmp_lg_u32 s3, 3')
        A('s_cbranch_scc1 L_cntok')
        C('wave 3: every workgroup must have emptied its share of the exchange area')
        A(f's_mov_b32 s50, {p["spin"]}')
        A('s_mov_b64 exec, 15')
        L('L_cntloop')
        A('s_waitcnt vmcnt(0)')
        A(f'v_cmp_gt_u32 vcc, 64, {self.spare(3)}')
        A('s_cbranch_vccz L_cntdone')
        A(f'buffer_load_dword {self.spare(3)}, v3, {self.srd(S_DBG)}, 0 offen sc1')
        A('s_sub_u32 s50, s50, 1')
        A('s_cbranch_scc0 L_cntloop')
        L('L_cntdone')
        A('s_mov_b64 exec, -1')
        L('L_cntok')
        A('s_waitcnt lgkmcnt(0)')
        A('s_barrier')
        A('s_cmp_ge_u32 s3, 3')
        A('s_cbranch_scc1 L_nopub')
        aT16, aPub = self.spare(5), self.spare(6)
        for w in range(8):
            A(f'ds_read_b128 v[{8 + 4 * w}:{11 + 4 * w}], {aT16} offset:{L_P + 3072 * w}')
        self.reduce8()
        A(f'buffer_store_dwordx4 v[8:11], {aPub}, {self.srd(S_WS)}, 0 offen sc1')
        L('L_nopub')
        self.stamp()
        A('s_cmp_ge_u32 s2, 48')
        A('s_cbranch_scc1 L_notred')
        aIn1, aRw, aRr, aOut2 = self.spare(7), self.spare(8), self.spare(9), self.spare(10)
        A(f's_mov_b32 s50, {p["spin"]}')
        L('L_poll1')
        A(f'buffer_load_dwordx4 v[12:15], {aIn1}, {self.srd(S_WS)}, 0 offen sc1')
        A(f'buffer_load_dwordx4 v[16:19], {aIn1}, {self.srd(S_WS)}, 0 offen offset:1024 sc1')
        A('s_waitcnt vmcnt(0)')
        A('v_max3_u32 v20, v12, v13, v14')
        A('v_max3_u32 v21, v16, v17, v18')
        A('v_max3_u32 v20, v20, v15, v19')
        A('v_max_u32 v20, v20, v21')
        A('v_cmp_eq_u32 vcc, -1, v20')
        A('s_cbranch_vccz L_poll1done')
        A('s_sub_u32 s50, s50, 1')
        A('s_cbranch_scc0 L_poll1')
        L('L_poll1done')
        A('v_add_f32 v12, v12, v16')
        A('v_add_f32 v13, v13, v17')
        A('v_max_f32 v14, v14, v18')
        A('v_max_f32 v15, v15, v19')
        self.ror_reduce(12)
        A('s_mov_b32 exec_lo, 0x000f000f')
        A('s_mov_b32 exec_hi, 0x000f000f')
        A(f'ds_write_b128 {aRw}, v[12:15]')
        A('s_mov_b64 exec, -1')
        A('s_waitcnt lgkmcnt(0)')
        A('s_barrier')
        for w in range(8):
            A(f'ds_read_b128 v[{8 + 4 * w}:{11 + 4 * w}], {aRr} offset:{256 * w}')
        self.reduce8()
        A('s_nop 0')
        self.ror_reduce(8)
        A('v_mul_f32 v8, 0x37800000, v8')
        A('v_mul_f32 v9, 0x37800000, v9')
        A('v_cvt_pk_bf16_f32 v13, v10, v11')
        A('v_cvt_pk_bf16_f32 v12, v8, v9')
        A('v_min_u32 v13, -2, v13')
        A('v_min_u32 v12, -2, v12')
        nrep = p['nrep']
        if nrep < 128:
            nthr = nrep * 4
            if nthr >= 64:
                A(f's_cmp_ge_u32 s3, {nthr // 64}')
                A('s_cbranch_scc1 L_notred')
            else:
                A('s_cmp_ge_u32 s3, 1')
                A('s_cbranch_scc1 L_notred')
                A(f's_mov_b64 exec, {(1 << nthr) - 1:#x}' if nthr < 32 else 's_mov_b32 exec_hi, 0')
        A(f'buffer_store_dwordx2 v[12:13], {aOut2}, {self.srd(S_WS)}, 0 offen sc1')
        if nrep == 256:
            A(f's_mov_b32 s51, {128 * 2048}')
            A(f'buffer_store_dwordx2 v[12:13], {aOut2}, {self.srd(S_WS)}, s51 offen sc1')
        A('s_mov_b64 exec, -1')
        L('L_notred')
        self.stamp()
        aIn2, aGw, aGw2 = self.spare(11), self.spare(12), self.spare(13)
        A('s_cmp_lg_u32 s3, 7')
        A('s_cbranch_scc1 L_nopoll2')
        A(f's_mov_b32 s50, {p["spin"]}')
        A('s_mov_b32 exec_hi, 0xffff')
        L('L_poll2')
        A(f'buffer_load_dwordx4 v[12:15], {aIn2}, {self.srd(S_WS)}, 0 offen sc1')
        A(f'buffer_load_dwordx4 v[16:19], {aIn2}, {self.srd(S_WS)}, 0 offen offset:768 sc1')
        A('s_waitcnt vmcnt(0)')
        A('v_max3_u32 v20, v12, v13, v14')
        A('v_max3_u32 v21, v16, v17, v18')
        A('v_max3_u32 v20, v20, v15, v19')
        A('v_max_u32 v20, v20, v21')
        A('v_cmp_eq_u32 vcc, -1, v20')
        A('s_cbranch_vccz L_poll2done')
        A('s_sub_u32 s50, s50, 1')
        A('s_cbranch_scc0 L_poll2')
        L('L_poll2done')
        A(f'ds_write2_b32 {aGw}, v12, v14 offset0:0 offset1:1')
        A(f'ds_write2_b32 {aGw}, v13, v15 offset0:192 offset1:193')
        A(f'ds_write2_b32 {aGw2}, v16, v18 offset0:0 offset1:1')
        A(f'ds_write2_b32 {aGw2}, v17, v19 offset0:192 offset1:193')
        A('s_mov_b64 exec, -1')
        A('s_waitcnt lgkmcnt(0)')
        L('L_nopoll2')
        A('s_barrier')
        self.stamp()
        aG, aHw, aH, aSw, aS = (self.spare(k) for k in (14, 15, 16, 17, 18))
        A('s_cmp_ge_u32 s3, 6')
        A('s_cbranch_scc1 L_nol1')
        NB = 8
        for b in range(NB):
            A(f'ds_read_b128 v[{8 + 4 * b}:{11 + 4 * b}], {aG} offset:{64 * b}')
        issued = NB
        for b in range(12):
            A(f's_waitcnt lgkmcnt({issued - b - 1})')
            g = 8 + 4 * (b % NB)
            c = '0' if b == 0 else 'v[40:43]'
            A(f'v_mfma_f32_16x16x32_bf16 v[40:43], v[{W1F + 4 * b}:{W1F + 4 * b + 3}], v[{g}:{g + 3}], {c}')
            if issued < 12:
                A(f'ds_read_b128 v[{g}:{g + 3}], {aG} offset:{64 * issued}')
                issued += 1
        A('s_nop 7')
        for r in range(4):
            A(f'v_mul_f32 v{8 + r}, 0, v{40 + r}')
            A(f'v_cmp_lt_f32 s[{52 + 2 * r}:{53 + 2 * r}], 0, v{40 + r}')
        A('s_mov_b32 exec_lo, 0x00030003')
        A('s_mov_b32 exec_hi, 0x00030003')
        for r in range(4):
            A(f'v_cndmask_b32 v{8 + r}, v{8 + r}, v{40 + r}, s[{52 + 2 * r}:{53 + 2 * r}]')
        A('v_cvt_pk_bf16_f32 v12, v8, v9')
        A('v_cvt_pk_bf16_f32 v13, v10, v11')
        A(f'ds_write_b64 {aHw}, v[12:13]')
        A('s_mov_b64 exec, -1')
        A('s_waitcnt lgkmcnt(0)')
        L('L_nol1')
        A('s_barrier')
        for b in range(3):
            A(f'ds_read_b128 v[{8 + 4 * b}:{11 + 4 * b}], {aH} offset:{64 * b}')
        A('v_cmp_gt_u32 s[52:53], 16, v1')
        A('v_cmp_gt_u32 s[54:55], 32, v1')
        for b in range(3):
            A(f's_waitcnt lgkmcnt({2 - b})')
            for t in range(3):
                dd = 20 + 4 * t
                c = '0' if b == 0 else f'v[{dd}:{dd + 3}]'
                wf = W2F + 4 * (3 * t + b)
                A(f'v_mfma_f32_16x16x32_bf16 v[{dd}:{dd + 3}], v[{8 + 4 * b}:{11 + 4 * b}], v[{wf}:{wf + 3}], {c}')
        A('s_nop 7')
        A('v_cndmask_b32 v8, v28, v24, s[54:55]')
        A('v_cndmask_b32 v9, v29, v25, s[54:55]')
        A('v_cndmask_b32 v8, v8, v20, s[52:53]')
        A('v_cndmask_b32 v9, v9, v21, s[52:53]')
        A('v_cvt_pk_bf16_f32 v8, v8, v9')
        A('v_lshlrev_b32 v9, 16, v8')
        A('v_and_b32 v8, s48, v8')
        A('v_add_f32 v8, v8, v9')
        A('v_cvt_pk_bf16_f32 v8, v8, v8')
        A('v_and_b32 v8, s48, v8')
        A('v_mul_f32 v8, 0xbfb8aa3b, v8')
        A('v_exp_f32 v8, v8')
        A('s_nop 0')
        A('v_add_f32 v8, 1.0, v8')
        A('v_rcp_f32 v8, v8')
        A('s_mov_b32 exec_hi, 0xffff')
        A('v_cvt_pk_bf16_f32 v8, v8, v8')
        A('v_and_b32 v8, s48, v8')
        A(f'ds_write_b32 {aSw}, v8')
        A('s_mov_b64 exec, -1')
        A('s_waitcnt lgkmcnt(0)')
        A('s_barrier')
        for q in range(3):
            A(f'ds_read_b64 v[{32 + 2 * q}:{33 + 2 * q}], {aS} offset:{8 * q}')
        self.stamp()
        for j in range(32):
            t = 8 + 6 * (j & 3)
            unpack(j, t)
            if j == 0:
                A('s_waitcnt lgkmcnt(0)')
            for q in range(3):
                A(f'v_pk_mul_f32 v[{t + 2 * q}:{t + 2 * q + 1}], v[{t + 2 * q}:{t + 2 * q + 1}], v[{32 + 2 * q}:{33 + 2 * q}]')
            for q in range(3):
                A(f'v_cvt_pk_bf16_f32 v{DATA + 4 * j + q}, v{t + 2 * q}, v{t + 2 * q + 1}')
            pre, so, imm = self.xaddr(j)
            for s in pre:
                A(s)
            off = f' offset:{imm}' if imm else ''
            A(f'buffer_store_dwordx3 {self.d(j)}, v2, {self.srd(S_OUT)}, {so} offen{off} {p["spol"]}'.rstrip())
        if p['stamps']:
            A('s_waitcnt vmcnt(0)')
            self.stamp()
            A('s_waitcnt lgkmcnt(0)')
            if p.get('dbgstamps'):
                A('s_mov_b64 exec, 1')
                A('v_mov_b32 v1, 0')
                A('s_not_b32 s59, s60')
                A('v_mov_b32 v4, s59')
                A(f'buffer_atomic_umax v4, v1, {self.srd(S_DBG)}, 0 offen offset:4 sc1')
                for k in range(self.nstamp):
                    A(f'v_mov_b32 v{8 + k}, s{60 + 2 * k}')
                    A(f'buffer_atomic_umax v{8 + k}, v1, {self.srd(S_DBG)}, 0 offen offset:{8 + 4 * k} sc1')
            A(f's_add_u32 s56, s{S_WS}, 0x8000000')
            A(f's_addc_u32 s57, s{S_WS + 1}, 0')
            A('s_lshl_b32 s58, s2, 4\n    s_add_u32 s58, s58, s3\n    s_lshl_b32 s58, s58, 6')
            A('s_mov_b64 exec, 1')
            A('v_mov_b32 v1, s58')
            for k in range(self.nstamp):
                A(f'v_mov_b32 v4, s{60 + 2 * k}\n    v_mov_b32 v5, s{61 + 2 * k}')
                A(f'global_store_dwordx2 v1, v[4:5], s[56:57] offset:{8 * k}')
                A('s_nop 1')
        L('L_end')
        L('L_last')
        A('s_endpgm')
        o.append('.section .rodata,"a"')
        o.append('.p2align 6')
        o.append(f'.amdhsa_kernel {KNAME}')
        o.append('  .amdhsa_next_free_vgpr 256')
        o.append('  .amdhsa_next_free_sgpr 96')
        o.append('  .amdhsa_accum_offset 256')
        o.append('  .amdhsa_group_segment_fixed_size 0')
        o.append('  .amdhsa_kernarg_size 48')
        o.append('  .amdhsa_user_sgpr_count 2')
        o.append('  .amdhsa_user_sgpr_kernarg_segment_ptr 1')
        o.append('  .amdhsa_system_sgpr_workgroup_id_x 1')
        o.append('  .amdhsa_float_denorm_mode_32 3')
        o.append('.end_amdhsa_kernel')
        return '\n'.join(o) + '\n'

    def reduce8(self):
        A = self.A
        for k, (a, b) in enumerate([(0, 1), (2, 3), (4, 5), (6, 7)]):
            A(f's_waitcnt lgkmcnt({6 - 2 * k})')
            ra, rb = 8 + 4 * a, 8 + 4 * b
            A(f'v_pk_add_f32 v[{ra}:{ra + 1}], v[{ra}:{ra + 1}], v[{rb}:{rb + 1}]')
            if k == 0:
                A(f'v_max_f32 v10, v10, v{rb + 2}')
                A(f'v_max_f32 v11, v11, v{rb + 3}')
            else:
                A(f'v_max3_f32 v10, v10, v{ra + 2}, v{rb + 2}')
                A(f'v_max3_f32 v11, v11, v{ra + 3}, v{rb + 3}')
            if k == 1:
                A('v_pk_add_f32 v[8:9], v[8:9], v[16:17]')
        A('v_pk_add_f32 v[24:25], v[24:25], v[32:33]')
        A('v_pk_add_f32 v[8:9], v[8:9], v[24:25]')

    def ror_reduce(self, r):
        A = self.A
        for sh in (8, 4):
            A(f'v_max_f32_dpp v{r + 2}, v{r + 2}, v{r + 2} row_ror:{sh} row_mask:0xf bank_mask:0xf') if False else None
            A('s_nop 1')
            A(f'v_add_f32_dpp v{r}, v{r}, v{r} row_ror:{sh} row_mask:0xf bank_mask:0xf')
            A(f'v_add_f32_dpp v{r + 1}, v{r + 1}, v{r + 1} row_ror:{sh} row_mask:0xf bank_mask:0xf')
            A(f'v_max_f32_dpp v{r + 2}, v{r + 2}, v{r + 2} row_ror:{sh} row_mask:0xf bank_mask:0xf')
            A(f'v_max_f32_dpp v{r + 3}, v{r + 3}, v{r + 3} row_ror:{sh} row_mask:0xf bank_mask:0xf')

    def tail_addr_prep(self):
        A = self.A
        sp = self.spare
        nrep = self.p['nrep']
        A('s_mul_i32 s45, s3, 3072')
        A(f'v_mul_u32_u24 {sp(4)}, 48, v1')
        A(f'v_add_u32 {sp(4)}, s45, {sp(4)}')
        A(f'v_lshlrev_b32 {sp(5)}, 4, v0')
        A('v_lshrrev_b32 v5, 2, v0')
        A(f'v_lshlrev_b32 {sp(6)}, 14, v5')
        A(f'v_and_b32 {sp(19)}, 3, v0')
        A(f'v_lshl_add_u32 {sp(6)}, {sp(19)}, 4, {sp(6)}')
        A('s_lshl_b32 s45, s2, 6')
        A(f'v_add_u32 {sp(6)}, s45, {sp(6)}')
        A('s_lshl_b32 s45, s2, 14')
        A('s_lshl_b32 s49, s3, 11')
        A('s_add_u32 s45, s45, s49')
        A(f'v_add_u32 {sp(7)}, s45, v4')
        A('s_lshl_b32 s45, s3, 8')
        A(f's_add_u32 s45, s45, {L_R}')
        A(f'v_lshrrev_b32 {sp(20)}, 4, v1')
        A(f'v_lshlrev_b32 {sp(8)}, 6, {sp(20)}')
        A(f'v_lshl_add_u32 {sp(8)}, {sp(19)}, 4, {sp(8)}')
        A(f'v_add_u32 {sp(8)}, s45, {sp(8)}')
        A(f'v_and_b32 {sp(9)}, 0xf0, v4')
        A(f'v_add_u32 {sp(9)}, {L_R}, {sp(9)}')
        A(f'v_lshlrev_b32 {sp(10)}, 11, v5')
        A(f'v_lshl_add_u32 {sp(10)}, {sp(19)}, 3, {sp(10)}')
        A('s_lshl_b32 s45, s2, 5')
        A(f's_add_u32 s45, s45, {HOP2}')
        A(f'v_add_u32 {sp(10)}, s45, {sp(10)}')
        A(f's_and_b32 s45, s2, {nrep - 1}')
        A('s_lshl_b32 s45, s45, 11')
        A(f's_add_u32 s45, s45, {HOP2}')
        A(f'v_add_u32 {sp(11)}, s45, v4')
        A(f'v_lshlrev_b32 {sp(12)}, 3, v1')
        A(f'v_add_u32 {sp(13)}, {L_G + 384}, {sp(12)}')
        A(f'v_add_u32 {sp(12)}, {L_G}, {sp(12)}')
        A(f'v_and_b32 {sp(21)}, 1, v1')
        A(f'v_mul_u32_u24 {sp(14)}, 768, {sp(21)}')
        A(f'v_lshl_add_u32 {sp(14)}, {sp(20)}, 4, {sp(14)}')
        A(f'v_add_u32 {sp(14)}, {L_G}, {sp(14)}')
        A(f'v_mul_u32_u24 {sp(21)}, 192, {sp(21)}')
        A(f'v_add_u32 {sp(21)}, {L_H}, {sp(21)}')
        A(f'v_lshl_add_u32 {sp(16)}, {sp(20)}, 4, {sp(21)}')
        A(f'v_lshl_add_u32 {sp(15)}, {sp(20)}, 3, {sp(21)}')
        A('s_lshl_b32 s45, s3, 5')
        A(f'v_add_u32 {sp(15)}, s45, {sp(15)}')
        A('s_mul_i32 s45, s3, 192')
        A(f's_add_u32 s45, s45, {L_S}')
        A(f'v_lshl_add_u32 {sp(17)}, v1, 2, s45')
        A(f'v_mul_u32_u24 {sp(18)}, 24, v1')
        A(f'v_add_u32 {sp(18)}, {L_S}, {sp(18)}')


if __name__ == '__main__':
    kw = eval('dict(%s)' % (sys.argv[2] if len(sys.argv) > 2 else ''))
    open(sys.argv[1], 'w').write(Gen(**kw).build())
```

```python
import sys

KNAME = 'standalone__channel_attn_cbam__vision_kernel'
HEADER = """; Kernarg layout for this problem (48 bytes, ptrs only, base s[0:1]):
"""

XBYTES = 50331648
WBYTES = 73728
O_A = 0
O_B = 786432
O_C = O_B + 196608
WS_USE = 1 << 20
L_W1, L_W2 = 0, 73728
L_P = 90112
L_Q = 114688
L_G, L_H, L_S, L_F = 139264, 140800, 141312, 142848
LDS_BYTES = 143360
S_X, S_W1, S_W2, S_OUT, S_DBG, S_WS = 16, 20, 24, 28, 32, 36
ACC, TMP, W1F, W2F, DATA = 8, 20, 44, 92, 104


class Gen:
    def __init__(self, **kw):
        self.p = dict(D=8, lpol='nt', spol='sc1', stamps=False, classes=False, clrpos=3,
                      cpos=22, ipos=18, wpf=20, spin=1 << 20, wmode='late', wstart=0, wper=1, force=None)
        self.p.update(kw)
        self.o = []
        self.vm = []
        self.nstamp = 0
        self.names = {}

    def A(self, s):
        self.o.append('    ' + s)

    def L(self, s):
        self.o.append(s + ':')

    def C(self, s):
        self.o.append('    ; ' + s)

    def srd(self, b):
        return f's[{b}:{b + 3}]'

    def issue(self, tag, text):
        self.A(text)
        self.vm.append(tag)

    def wait_for(self, tag):
        n = len(self.vm) - 1 - self.vm.index(tag)
        assert n <= 63
        self.A(f's_waitcnt vmcnt({n})')

    def stamp(self):
        self.npos = getattr(self, 'npos', -1) + 1
        amp = self.p.get('amp')
        if amp is not None and self.npos == 0:
            self.A('s_memrealtime s[90:91]')
            self.A('s_memrealtime s[92:93]')
        elif amp is not None and self.npos == amp:
            self.A('s_memrealtime s[92:93]')
        if self.p['stamps']:
            k = self.nstamp
            assert k < 14
            self.A(f's_memrealtime s[{60 + 2 * k}:{61 + 2 * k}]')
            self.nstamp += 1

    def d(self, j):
        return f'v[{DATA + 4 * j}:{DATA + 4 * j + 2}]'

    def r(self, name):
        if name not in self.names:
            self.names[name] = len(self.names)
            assert self.names[name] < 32
        return f'v{DATA + 4 * self.names[name] + 3}'

    def step(self, j):
        if j == 0:
            return
        if self.p['classes'] and j == 28:
            self.A('s_mov_b32 s40, s12')
        elif self.p['classes'] and j == 32:
            self.A('s_add_u32 s40, s40, s13')
        else:
            self.A('s_addk_i32 s40, 6144')

    def early_out(self, j, lab):
        if self.p['classes'] and j in (28, 32):
            self.A(f's_cmp_lt_u32 s2, {48 if j == 28 else 64}')
            self.A(f's_cbranch_scc1 {lab}')

    def stage_one(self, i):
        A, r = self.A, self.r
        if i < 12:
            A('s_mul_i32 s44, s3, 768' if i == 0 else 's_addk_i32 s44, 6144')
            A('s_mov_b32 m0, s44')
            A('s_mov_b32 exec_hi, 0xffff')
            self.issue(f'W{i}', f'buffer_load_dwordx4 {r("vW1")}, {self.srd(S_W1)}, s44 offen lds')
            A('s_mov_b32 exec_hi, -1')
        else:
            if i == 12:
                A('s_lshl_b32 s45, s3, 10')
                A(f's_add_u32 m0, s45, {L_W2}')
                A('s_mul_i32 s44, s3, 6144')
            else:
                A('s_add_u32 m0, m0, 8192')
                A('s_add_u32 s44, s44, 49152')
            self.issue(f'W{i}', f'buffer_load_dwordx4 {r("vW2")}, {self.srd(S_W2)}, s44 offen lds')

    def poll(self, lab, addr, offs, base):
        A, L = self.A, self.L
        n = len(offs)
        t = base + 4 * n
        A(f's_mov_b32 s50, {self.p["spin"]}')
        L(lab)
        for i, off in enumerate(offs):
            o = f' offset:{off}' if off else ''
            A(f'buffer_load_dwordx4 v[{base + 4 * i}:{base + 4 * i + 3}], {addr}, {self.srd(S_WS)}, 0 offen{o} sc1')
        regs = list(range(base, base + 4 * n))
        first = True
        for i in range(n):
            A(f's_waitcnt vmcnt({n - 1 - i})')
            x = base + 4 * i
            if first:
                A(f'v_max3_u32 v{t}, v{x}, v{x + 1}, v{x + 2}')
                A(f'v_max_u32 v{t}, v{t}, v{x + 3}')
                first = False
            else:
                A(f'v_max3_u32 v{t}, v{t}, v{x}, v{x + 1}')
                A(f'v_max3_u32 v{t}, v{t}, v{x + 2}, v{x + 3}')
        A(f'v_cmp_eq_u32 vcc, -1, v{t}')
        A(f's_cbranch_vccz {lab}done')
        sl = self.p.get('sleep', {}).get(lab[-1], 0)
        if sl:
            A(f's_sleep {sl}')
        A('s_sub_u32 s50, s50, 1')
        A(f's_cbranch_scc0 {lab}')
        L(lab + 'done')

    def local_store(self, lab, text):
        A, L = self.A, self.L
        A('s_cmp_lg_u32 s14, 0')
        A(f's_cbranch_scc1 {lab}a')
        A(text + ' sc1')
        A(f's_branch {lab}b')
        L(lab + 'a')
        A(text)
        L(lab + 'b')

    def stage_weights(self):
        A, r = self.A, self.r
        A('s_mov_b32 exec_hi, 0xffff')
        for i in range(12):
            A('s_mul_i32 s44, s3, 768' if i == 0 else 's_addk_i32 s44, 6144')
            A('s_mov_b32 m0, s44')
            A('s_nop 0')
            A(f'buffer_load_dwordx4 {r("vW1")}, {self.srd(S_W1)}, s44 offen lds')
        A('s_mov_b64 exec, -1')
        for k in range(2):
            if k == 0:
                A('s_mul_i32 s44, s3, 6144')
                A('s_lshl_b32 s45, s3, 10')
                A(f's_add_u32 m0, s45, {L_W2}')
            else:
                A('s_add_u32 s44, s44, 49152')
                A('s_add_u32 m0, m0, 8192')
            A('s_nop 0')
            A(f'buffer_load_dwordx4 {r("vW2")}, {self.srd(S_W2)}, s44 offen lds')

    def build(self):
        p = self.p
        A, L, C, r = self.A, self.L, self.C, self.r
        D = p['D']
        RB = 33 if p['classes'] else 32
        o = self.o
        o.append(HEADER.rstrip())
        o.append(f'; @launch grid=(256,1,1) block=(512,1,1) lds={LDS_BYTES}')
        o.append('.amdgcn_target "amdgcn-amd-amdhsa--gfx950"')
        o.append('.text')
        o.append(f'.globl {KNAME}')
        o.append('.p2align 8')
        o.append(f'.type {KNAME},@function')
        L(KNAME)
        self.stamp()
        A(f's_load_dwordx2 s[{S_X}:{S_X + 1}], s[0:1], 0')
        A(f's_load_dwordx2 s[{S_WS}:{S_WS + 1}], s[0:1], 40')
        A('v_mul_u32_u24 v2, 12, v0')
        A(f's_mul_i32 s40, s2, {(28 if p["classes"] else 32) * 6144}')
        A(f's_mov_b32 s{S_X + 2}, {XBYTES}')
        A(f's_mov_b32 s{S_X + 3}, 0x20000')
        A('s_mov_b32 s41, s40')
        A('s_waitcnt lgkmcnt(0)')

        def issue_x(j):
            self.step(j)
            self.issue(f'X{j}', f'buffer_load_dwordx3 {self.d(j)}, v2, {self.srd(S_X)}, s40 offen {p["lpol"]}'.rstrip())

        for j in range(D):
            issue_x(j)
            if j == p['clrpos']:
                A('s_cmp_ge_u32 s2, 256')
                A('s_cbranch_scc1 L_end')
                A('v_lshrrev_b32 v3, 6, v0')
                A('v_and_b32 v1, 63, v0')
                A(f's_mov_b32 s{S_WS + 2}, {WS_USE}')
                A('v_readfirstlane_b32 s3, v3')
                A(f's_mov_b32 s{S_WS + 3}, 0x20000')
                A('v_lshlrev_b32 v4, 4, v1')
                A('s_cmp_lg_u32 s3, 0')
                A('s_cbranch_scc1 L_clearback')
                C('wave 0: fill this workgroup\'s share of the exchange area with the "empty" word')
                for k in range(4):
                    A(f'v_mov_b32 v{8 + k}, -1')
                A('s_lshl_b32 s42, s2, 12')
                for i in range(4):
                    A(f'buffer_store_dwordx4 v[8:11], v4, {self.srd(S_WS)}, s42 offen offset:{1024 * i} sc1')
                L('L_clearback')
        self.stamp()
        A(f's_load_dwordx2 s[{S_DBG}:{S_DBG + 1}], s[0:1], 32')
        A(f's_load_dwordx2 s[{S_W1}:{S_W1 + 1}], s[0:1], 8')
        A(f's_load_dwordx2 s[{S_W2}:{S_W2 + 1}], s[0:1], 16')
        A(f's_load_dwordx2 s[{S_OUT}:{S_OUT + 1}], s[0:1], 24')
        A(f's_mov_b32 s{S_DBG + 2}, 256')
        A(f's_mov_b32 s{S_DBG + 3}, 0x20000')
        if p['wmode'] == 'oob':
            A('s_cmp_lt_u32 s2, 48')
            A(f's_cselect_b32 s{S_W1 + 2}, {WBYTES}, 0')
        else:
            A(f's_mov_b32 s{S_W1 + 2}, {WBYTES}')
        A(f's_mov_b32 s{S_W1 + 3}, 0x20000')
        A(f's_mov_b32 s{S_W2 + 2}, s{S_W1 + 2}')
        A(f's_mov_b32 s{S_W2 + 3}, 0x20000')
        A(f's_mov_b32 s{S_OUT + 2}, {XBYTES}')
        A(f's_mov_b32 s{S_OUT + 3}, 0x20000')
        A('s_mov_b32 s48, 0xffff0000')
        if p['classes']:
            A('s_sub_u32 s12, s2, 48')
            A('s_min_u32 s13, s12, 16')
            A('s_mul_i32 s12, s12, 5')
            A('s_sub_u32 s12, s12, s13')
            A(f's_add_u32 s12, s12, {256 * 28}')
            A('s_mul_i32 s12, s12, 6144')
            A('s_cmp_lt_u32 s2, 48')
            A('s_cselect_b32 s12, 2.0, s12')
            A('s_cmp_lt_u32 s2, 64')
            A('s_cselect_b32 s13, 2.0, 0')
            A('s_addk_i32 s13, 6144')
        A('s_and_b32 s4, s2, 7')
        A('s_lshr_b32 s5, s2, 3')
        A('s_getreg_b32 s42, hwreg(HW_REG_XCC_ID, 0, 3)')
        A('s_lshl_b32 s42, s42, 3')
        A('s_lshl_b64 s[42:43], 1, s42')
        A('v_mov_b32 v32, s42')
        A('v_mov_b32 v33, s43')
        self.addr_prep()
        A('s_waitcnt lgkmcnt(0)')

        def unpack(j, t):
            for q in range(3):
                A(f'v_lshlrev_b32 v{t + 2 * q}, 16, v{DATA + 4 * j + q}')
                A(f'v_and_b32 v{t + 2 * q + 1}, s48, v{DATA + 4 * j + q}')

        sigrow = p['clrpos'] + 1
        for j in range(0, RB, 2):
            self.early_out(j, 'L_accdone')
            if j == p['cpos']:
                A('s_cmp_lg_u32 s3, 3')
                A('s_cbranch_scc1 L_nocnt')
                A(f'buffer_load_dwordx2 v[34:35], {r("cnta")}, {self.srd(S_DBG)}, 0 offen sc1')
                L('L_nocnt')
            if j == p['ipos']:
                A('s_cmp_lg_u32 s3, 5')
                A('s_cbranch_scc1 L_noipf')
                C('wave 5: read the not yet executed part of the kernel text once, to pull it into L2')
                A('s_getpc_b64 s[46:47]')
                L('L_pc')
                A('v_lshlrev_b32 v6, 7, v1')
                A('v_min_u32 v6, L_last - L_pc, v6')
                A('v_mov_b32 v7, s47')
                A('v_add_co_u32 v6, vcc, s46, v6')
                A('s_nop 1')
                A('v_addc_co_u32 v7, vcc, 0, v7, vcc')
                A(f'global_load_dword {r("junk")}, v[6:7], off')
                L('L_noipf')
            if j == p['wpf'] and p['wmode'] == 'late':
                A('s_cmp_lg_u32 s3, 6')
                A('s_cbranch_scc1 L_nowpf')
                C('wave 6: touch 1/32 of the weights so that they are in L2 when they are staged')
                A('s_mul_i32 s42, s5, 2304')
                A('v_lshlrev_b32 v6, 6, v1')
                A('s_mov_b32 exec_hi, 15')
                A(f'buffer_load_dword {r("junk")}, v6, {self.srd(S_W1)}, s42 offen')
                A(f'buffer_load_dword {r("junk")}, v6, {self.srd(S_W2)}, s42 offen')
                A('s_mov_b64 exec, -1')
                L('L_nowpf')
            for jj in range(j, min(j + 2, RB)):
                self.wait_for(f'X{jj}')
                if jj == sigrow:
                    A('s_cmp_lg_u32 s3, 0')
                    A('s_cbranch_scc1 L_sigback')
                    C('vmcnt retires in issue order: the fill stores are complete.  Count in: byte[xcc] of the group counter')
                    A('s_lshl_b64 exec, 1, s4')
                    A(f'buffer_atomic_add_x2 v[32:33], {r("cnta")}, {self.srd(S_DBG)}, 0 offen sc1')
                    A('s_mov_b64 exec, -1')
                    L('L_sigback')
                t = TMP + 6 * (jj & 1)
                unpack(jj, t)
                if jj + D < RB:
                    issue_x(jj + D)
                if p['wmode'] == 'oob' and jj >= p['wstart']:
                    for i in range((jj - p['wstart']) * p['wper'], min((jj - p['wstart'] + 1) * p['wper'], 14)):
                        self.stage_one(i)
                for q in range(3):
                    a = ACC + 4 * q
                    if jj == 1:
                        A(f'v_pk_add_f32 v[{a}:{a + 1}], v[{TMP + 2 * q}:{TMP + 2 * q + 1}], v[{t + 2 * q}:{t + 2 * q + 1}]')
                    elif jj > 1:
                        A(f'v_pk_add_f32 v[{a}:{a + 1}], v[{a}:{a + 1}], v[{t + 2 * q}:{t + 2 * q + 1}]')
            for q in range(3):
                for h in range(2):
                    a = ACC + 4 * q + 2 + h
                    if j + 1 == RB:
                        A(f'v_max_f32 v{a}, v{a}, v{TMP + 2 * q + h}')
                    elif j == 0:
                        A(f'v_max_f32 v{a}, v{TMP + 2 * q + h}, v{TMP + 6 + 2 * q + h}')
                    else:
                        A(f'v_max3_f32 v{a}, v{a}, v{TMP + 2 * q + h}, v{TMP + 6 + 2 * q + h}')
        L('L_accdone')
        self.stamp()
        for q in range(3):
            A(f'ds_write_b128 {r("Pw")}, v[{ACC + 4 * q}:{ACC + 4 * q + 3}] offset:{16 * q}')
        A('s_cmp_eq_u32 s3, 3')
        A('s_cbranch_scc1 L_cnt')
        L('L_cntback')
        assert p['wmode'] != 'oob' or self.vm.index('W13') < self.vm.index('X27')
        A('s_waitcnt lgkmcnt(0)')
        A('s_barrier')
        A(f'ds_read_b32 v42, {r("F")}')
        A('s_cmp_ge_u32 s3, 3')
        A('s_cbranch_scc1 L_nopub')
        for w in range(8):
            A(f'ds_read_b128 v[{8 + 4 * w}:{11 + 4 * w}], {r("t16")} offset:{3072 * w}')
        self.reduce8(mid='v_readfirstlane_b32 s14, v42')
        self.local_store('L_pub', f'buffer_store_dwordx4 v[8:11], {r("pub")}, {self.srd(S_WS)}, 0 offen')
        L('L_nopub')
        self.stamp()
        A('s_cmp_lt_u32 s5, 6')
        A('s_cbranch_scc1 L_mlp')
        A('s_cmp_lt_u32 s5, 8')
        A('s_cbranch_scc1 L_notred')
        A('s_cmp_lg_u32 s3, 4')
        A('s_cbranch_scc1 L_notred')
        self.poll('L_poll1', r('in1'), [0, 1024, 2048, 3072], 8)
        self.stamp()
        A('v_pk_add_f32 v[8:9], v[8:9], v[12:13]')
        A('v_pk_add_f32 v[16:17], v[16:17], v[20:21]')
        A('v_max3_f32 v10, v10, v14, v18')
        A('v_max3_f32 v11, v11, v15, v19')
        A('v_pk_add_f32 v[8:9], v[8:9], v[16:17]')
        A('v_max_f32 v10, v10, v22')
        A('v_max_f32 v11, v11, v23')
        A('v_add_f32_dpp v8, v8, v8 row_ror:8 row_mask:0xf bank_mask:0xf')
        A('v_add_f32_dpp v9, v9, v9 row_ror:8 row_mask:0xf bank_mask:0xf')
        A('v_max_f32_dpp v10, v10, v10 row_ror:8 row_mask:0xf bank_mask:0xf')
        A('v_max_f32_dpp v11, v11, v11 row_ror:8 row_mask:0xf bank_mask:0xf')
        for op in ('v_permlane16_swap_b32', 'v_permlane32_swap_b32'):
            for k in range(4):
                A(f'v_mov_b32 v{12 + k}, v{8 + k}')
            for k in range(4):
                A(f'{op} v{8 + k}, v{12 + k}')
            A('v_pk_add_f32 v[8:9], v[8:9], v[12:13]')
            A('v_max_f32 v10, v10, v14')
            A('v_max_f32 v11, v11, v15')
        A(f'buffer_store_dwordx4 v[8:11], {r("out2")}, {self.srd(S_WS)}, 0 offen sc1')
        self.stamp()
        L('L_notred')
        L('L_mlpback')
        self.stamp_fixed = self.nstamp
        A('s_cmp_lg_u32 s3, 7')
        A('s_cbranch_scc1 L_nopoll3')
        A('s_mov_b32 exec_hi, 0xffff')
        self.poll('L_poll3', r('in3'), [0, 768], 12)
        A(f'ds_write_b128 {r("Sw")}, v[12:15]')
        A(f'ds_write_b128 {r("Sw")}, v[16:19] offset:768')
        A('s_mov_b64 exec, -1')
        A('s_waitcnt lgkmcnt(0)')
        L('L_nopoll3')
        A('s_barrier')
        for q in range(3):
            A(f'ds_read_b64 v[{32 + 2 * q}:{33 + 2 * q}], {r("S")} offset:{8 * q}')
        self.stamp()
        A('s_mov_b32 s40, s41')
        for j in range(RB):
            self.early_out(j, 'L_stdone')
            t = 8 + 6 * (j & 3)
            unpack(j, t)
            if j == 0:
                A('s_waitcnt lgkmcnt(0)')
            for q in range(3):
                A(f'v_pk_mul_f32 v[{t + 2 * q}:{t + 2 * q + 1}], v[{t + 2 * q}:{t + 2 * q + 1}], v[{32 + 2 * q}:{33 + 2 * q}]')
            for q in range(3):
                A(f'v_cvt_pk_bf16_f32 v{DATA + 4 * j + q}, v{t + 2 * q}, v{t + 2 * q + 1}')
            self.step(j)
            A(f'buffer_store_dwordx3 {self.d(j)}, v2, {self.srd(S_OUT)}, s40 offen {p["spol"]}'.rstrip())
        L('L_stdone')
        if p.get('amp') is not None and not p['stamps']:
            A('s_waitcnt vmcnt(0)')
            self.stamp()
            A('s_waitcnt lgkmcnt(0)')
            A('s_sub_u32 s94, s92, s90')
            A('s_lshl_b32 s94, s94, 2')
            A('s_add_u32 s94, s94, 3000')
            L('L_pad')
            A('s_sleep 2')
            A('s_memrealtime s[92:93]')
            A('s_waitcnt lgkmcnt(0)')
            A('s_sub_u32 s95, s92, s90')
            A('s_cmp_lt_u32 s95, s94')
            A('s_cbranch_scc1 L_pad')
        if p['stamps']:
            A('s_waitcnt vmcnt(0)')
            self.stamp()
            A('s_branch L_stamps')
        L('L_end')
        A('s_endpgm')

        L('L_cnt')
        C('wave 3: all 256 workgroups must have emptied their share; is this group on a single XCD?')
        A(f's_mov_b32 s50, {p["spin"]}')
        A('s_mov_b64 exec, 0xff')
        L('L_cntloop')
        A('s_waitcnt vmcnt(0)')
        A('v_sad_u8 v36, v34, 0, 0')
        A('v_sad_u8 v36, v35, 0, v36')
        A('v_cmp_gt_u32 vcc, 32, v36')
        A('s_cbranch_vccz L_cntdone')
        A(f'buffer_load_dwordx2 v[34:35], {r("cnta")}, {self.srd(S_DBG)}, 0 offen sc1')
        A('s_sub_u32 s50, s50, 1')
        A('s_cbranch_scc0 L_cntloop')
        L('L_cntdone')
        A('v_or_b32 v34, v34, v35')
        A('v_and_b32 v34, 0x20202020, v34')
        if p['force'] is not None:
            A(f'v_mov_b32 v34, {p["force"]}')
        A('s_lshl_b64 exec, 1, s4')
        if p.get('diagslow'):
            A('v_cmp_eq_u32 vcc, 0, v34')
            A('s_cbranch_vccz L_dg')
            for _ in range(6):
                A('s_sleep 127')
            L('L_dg')
        A(f'ds_write_b32 {r("F")}, v34')
        A('s_mov_b64 exec, -1')
        A('s_branch L_cntback')

        L('L_mlp')
        C('MLP workgroups (ranks 0..5 of every group)')
        if p['wmode'] == 'late':
            A('s_barrier')
            self.stage_weights()
            A('s_waitcnt vmcnt(0)')
            A('s_barrier')
        A('s_waitcnt lgkmcnt(0)')
        A('v_readfirstlane_b32 s14, v42')
        A('s_cmp_ge_u32 s3, 6')
        A('s_cbranch_scc1 L_notr1')
        for b in range(12):
            for h in range(2):
                base = r('a1') if b < 6 else r('a1b')
                x = W1F + 4 * b + 2 * h
                A(f'ds_read_b64_tr_b16 v[{x}:{x + 1}], {base} offset:{(b % 6) * 6144 + h * 1536}')
        L('L_notr1')
        for b in range(3):
            for h in range(2):
                x = W2F + 4 * b + 2 * h
                A(f'ds_read_b64_tr_b16 v[{x}:{x + 1}], {r("a2")} offset:{(32 * b + 8 * h) * 128}')
        self.stamp()
        self.poll('L_poll2', r('in2'), [0, 1024, 2048], 8)
        self.stamp()
        for q in range(3):
            A(f'ds_write_b128 {r("Qw")}, v[{8 + 4 * q}:{11 + 4 * q}] offset:{L_Q - L_P + 1024 * q}')
        A('s_waitcnt lgkmcnt(0)')
        A('s_barrier')
        A('s_cmp_ge_u32 s3, 3')
        A('s_cbranch_scc1 L_nog')
        for w in range(8):
            A(f'ds_read_b128 v[{8 + 4 * w}:{11 + 4 * w}], {r("t16")} offset:{L_Q - L_P + 3072 * w}')
        self.reduce8()
        A('v_mul_f32 v8, 0x37800000, v8')
        A('v_mul_f32 v9, 0x37800000, v9')
        A('v_cvt_pk_bf16_f32 v13, v10, v11')
        A('v_cvt_pk_bf16_f32 v12, v8, v9')
        A(f'ds_write2_b32 {r("Gw")}, v12, v13 offset0:0 offset1:192')
        A('s_waitcnt lgkmcnt(0)')
        L('L_nog')
        A('s_barrier')
        self.stamp()
        A('s_cmp_ge_u32 s3, 6')
        A('s_cbranch_scc1 L_nol1')
        NB = 8
        for b in range(NB):
            A(f'ds_read_b128 v[{8 + 4 * b}:{11 + 4 * b}], {r("G")} offset:{64 * b}')
        issued = NB
        for b in range(12):
            A(f's_waitcnt lgkmcnt({issued - b - 1})')
            g = 8 + 4 * (b % NB)
            c = '0' if b == 0 else 'v[40:43]'
            A(f'v_mfma_f32_16x16x32_bf16 v[40:43], v[{W1F + 4 * b}:{W1F + 4 * b + 3}], v[{g}:{g + 3}], {c}')
            if issued < 12:
                A(f'ds_read_b128 v[{g}:{g + 3}], {r("G")} offset:{64 * issued}')
                issued += 1
        A('s_nop 7')
        for k in range(4):
            A(f'v_mul_f32 v{8 + k}, 0, v{40 + k}')
            A(f'v_cmp_lt_f32 s[{52 + 2 * k}:{53 + 2 * k}], 0, v{40 + k}')
        A('s_mov_b32 exec_lo, 0x00030003')
        A('s_mov_b32 exec_hi, 0x00030003')
        for k in range(4):
            A(f'v_cndmask_b32 v{8 + k}, v{8 + k}, v{40 + k}, s[{52 + 2 * k}:{53 + 2 * k}]')
        A('v_cvt_pk_bf16_f32 v12, v8, v9')
        A('v_cvt_pk_bf16_f32 v13, v10, v11')
        A(f'ds_write_b64 {r("Hw")}, v[12:13]')
        A('s_mov_b64 exec, -1')
        A('s_waitcnt lgkmcnt(0)')
        L('L_nol1')
        A('s_barrier')
        A('s_cmp_ge_u32 s3, 4')
        A('s_cbranch_scc1 L_mlpback')
        for b in range(3):
            A(f'ds_read_b128 v[{8 + 4 * b}:{11 + 4 * b}], {r("H")} offset:{64 * b}')
        for b in range(3):
            A(f's_waitcnt lgkmcnt({2 - b})')
            c = '0' if b == 0 else 'v[20:23]'
            wf = W2F + 4 * b
            A(f'v_mfma_f32_16x16x32_bf16 v[20:23], v[{8 + 4 * b}:{11 + 4 * b}], v[{wf}:{wf + 3}], {c}')
        A('s_nop 7')
        A('v_cvt_pk_bf16_f32 v8, v20, v21')
        A('v_lshlrev_b32 v9, 16, v8')
        A('v_and_b32 v8, s48, v8')
        A('v_add_f32 v8, v8, v9')
        A('v_cvt_pk_bf16_f32 v8, v8, v8')
        A('v_and_b32 v8, s48, v8')
        A('v_mul_f32 v8, 0xbfb8aa3b, v8')
        A('v_exp_f32 v8, v8')
        A('s_mov_b64 exec, 0xffff')
        A('v_add_f32 v8, 1.0, v8')
        A('v_rcp_f32 v8, v8')
        A('s_nop 0')
        A('v_cvt_pk_bf16_f32 v8, v8, v8')
        A('v_and_b32 v8, s48, v8')
        self.local_store('L_pub3', f'buffer_store_dword v8, {r("out3")}, {self.srd(S_WS)}, 0 offen')
        A('s_mov_b64 exec, -1')
        self.stamp()
        L('L_last')
        A('s_branch L_mlpback')

        if p['stamps']:
            L('L_stamps')
            A('s_waitcnt lgkmcnt(0)')
            A(f's_add_u32 s56, s{S_WS}, 0x8000000')
            A(f's_addc_u32 s57, s{S_WS + 1}, 0')
            A('s_lshl_b32 s58, s2, 4\n    s_add_u32 s58, s58, s3\n    s_lshl_b32 s58, s58, 7')
            A('s_mov_b64 exec, 1')
            A('v_mov_b32 v1, s58')
            A('s_getreg_b32 s59, hwreg(HW_REG_XCC_ID, 0, 4)')
            A('v_mov_b32 v4, s59\n    v_mov_b32 v5, 0')
            A('global_store_dwordx2 v1, v[4:5], s[56:57] offset:120')
            A('s_nop 1')
            order = [0, 1, 2, 3, 4, 5, 8, 9, 10, 11, 6, 7]
            for i, k in enumerate(order):
                A(f'v_mov_b32 v4, s{60 + 2 * k}\n    v_mov_b32 v5, s{61 + 2 * k}')
                A(f'global_store_dwordx2 v1, v[4:5], s[56:57] offset:{8 * i}')
                A('s_nop 1')
            A('s_endpgm')
        o.append('.section .rodata,"a"')
        o.append('.p2align 6')
        o.append(f'.amdhsa_kernel {KNAME}')
        o.append('  .amdhsa_next_free_vgpr 256')
        o.append('  .amdhsa_next_free_sgpr 96')
        o.append('  .amdhsa_accum_offset 256')
        o.append('  .amdhsa_group_segment_fixed_size 0')
        o.append('  .amdhsa_kernarg_size 48')
        o.append('  .amdhsa_user_sgpr_count 2')
        o.append('  .amdhsa_user_sgpr_kernarg_segment_ptr 1')
        o.append('  .amdhsa_system_sgpr_workgroup_id_x 1')
        o.append('  .amdhsa_float_denorm_mode_32 3')
        o.append('.end_amdhsa_kernel')
        return '\n'.join(o) + '\n'

    def reduce8(self, mid=None):
        A = self.A
        for k in range(4):
            A(f's_waitcnt lgkmcnt({6 - 2 * k})')
            if k == 0 and mid:
                A(mid)
            ra, rb = 8 + 8 * k, 12 + 8 * k
            A(f'v_pk_add_f32 v[{ra}:{ra + 1}], v[{ra}:{ra + 1}], v[{rb}:{rb + 1}]')
            if k == 0:
                A(f'v_max_f32 v10, v10, v{rb + 2}')
                A(f'v_max_f32 v11, v11, v{rb + 3}')
            else:
                A(f'v_max3_f32 v10, v10, v{ra + 2}, v{rb + 2}')
                A(f'v_max3_f32 v11, v11, v{ra + 3}, v{rb + 3}')
            if k == 1:
                A('v_pk_add_f32 v[8:9], v[8:9], v[16:17]')
        A('v_pk_add_f32 v[24:25], v[24:25], v[32:33]')
        A('v_pk_add_f32 v[8:9], v[8:9], v[24:25]')

    def addr_prep(self):
        A, r = self.A, self.r
        kg, q3, l1, kc, rr, q7 = 'v34', 'v35', 'v37', 'v38', 'v39', 'v36'
        A(f'v_lshrrev_b32 {kg}, 4, v1')
        A(f'v_and_b32 {q3}, 3, v1')
        A(f'v_and_b32 {l1}, 1, v1')
        A(f'v_bfe_u32 {kc}, v1, 4, 1')
        A(f'v_bfe_u32 {rr}, v1, 2, 2')
        A(f'v_and_b32 {q7}, 0x70, v4')
        A('v_lshrrev_b32 v3, 1, v1')
        A('v_lshlrev_b32 v3, 3, v3')
        A(f'v_lshl_add_u32 {r("cnta")}, {l1}, 7, v3')
        A(f'v_mov_b32 {r("F")}, {L_F}')
        A('s_mul_i32 s45, s3, 3072')
        A(f's_add_u32 s45, s45, {L_P}')
        A('v_mul_u32_u24 v3, 48, v1')
        A(f'v_add_u32 {r("Pw")}, s45, v3')
        A(f'v_add_u32 {r("Qw")}, s45, v4')
        A('v_lshlrev_b32 v3, 4, v0')
        A(f'v_add_u32 {r("t16")}, {L_P}, v3')
        A('s_mul_i32 s49, s4, 98304')
        A('s_lshl_b32 s45, s5, 7')
        A('s_add_u32 s45, s45, s49')
        A('v_lshrrev_b32 v3, 3, v0')
        A(f'v_lshl_add_u32 v3, v3, 12, {q7}')
        A(f'v_add_u32 {r("pub")}, s45, v3')
        A('s_sub_u32 s51, s5, 8')
        A('s_lshl_b32 s45, s51, 12')
        A('s_add_u32 s45, s45, s49')
        A(f'v_add_u32 {r("in1")}, s45, v4')
        A('s_mul_i32 s45, s4, 3072')
        A('s_lshl_b32 s49, s51, 7')
        A('s_add_u32 s45, s45, s49')
        A(f's_add_u32 s45, s45, {O_B}')
        A('v_lshrrev_b32 v3, 3, v1')
        A('v_mul_u32_u24 v3, 24576, v3')
        A(f'v_add3_u32 {r("out2")}, v3, {q7}, s45')
        A('s_lshl_b32 s45, s4, 3')
        A('s_add_u32 s45, s45, s3')
        A('s_mul_i32 s45, s45, 3072')
        A(f's_add_u32 s45, s45, {O_B}')
        A(f'v_add_u32 {r("in2")}, s45, v4')
        A('s_lshl_b32 s45, s4, 11')
        A(f's_add_u32 s45, s45, {O_C}')
        A(f'v_add_u32 {r("in3")}, s45, v4')
        A('s_lshl_b32 s49, s5, 2')
        A('s_add_u32 s49, s49, s3')
        A('s_lshl_b32 s49, s49, 6')
        A('s_add_u32 s45, s45, s49')
        A(f'v_lshl_add_u32 {r("out3")}, v1, 2, s45')
        A('v_and_b32 v3, 0x1f9, v0')
        A('v_bfe_u32 v5, v0, 1, 1')
        A('v_lshl_add_u32 v3, v5, 2, v3')
        A('v_bfe_u32 v5, v0, 2, 1')
        A('v_lshl_add_u32 v3, v5, 1, v3')
        A('v_lshlrev_b32 v3, 2, v3')
        A(f'v_add_u32 {r("Gw")}, {L_G}, v3')
        A(f'v_mul_u32_u24 v3, 768, {l1}')
        A(f'v_lshl_add_u32 v3, {kg}, 4, v3')
        A(f'v_add_u32 {r("G")}, {L_G}, v3')
        A(f'v_mul_u32_u24 v3, 192, {l1}')
        A(f'v_add_u32 v3, {L_H}, v3')
        A(f'v_lshl_add_u32 {r("H")}, {kg}, 4, v3')
        A(f'v_lshl_add_u32 v3, {kc}, 4, v3')
        A('v_lshrrev_b32 v5, 5, v1')
        A('v_lshl_add_u32 v3, v5, 3, v3')
        A('s_lshl_b32 s45, s3, 5')
        A(f'v_add_u32 {r("Hw")}, s45, v3')
        A(f'v_add_u32 {r("Sw")}, {L_S}, v4')
        A('v_mul_u32_u24 v3, 24, v1')
        A(f'v_add_u32 {r("S")}, {L_S}, v3')
        A('s_and_b32 s45, s45, 32')
        A(f'v_xor_b32 {r("vW1")}, s45, v4')
        A('v_lshrrev_b32 v3, 3, v1')
        A('v_mul_u32_u24 v3, 768, v3')
        A('s_lshl_b32 s45, s5, 7')
        A(f'v_add3_u32 {r("vW2")}, v3, {q7}, s45')
        A(f'v_lshl_add_u32 v6, {kc}, 2, {rr}')
        A('v_lshl_add_u32 v7, v5, 4, v6')
        A(f'v_xor_b32 v3, s3, {kc}')
        A('v_lshlrev_b32 v3, 5, v3')
        A(f'v_lshl_add_u32 v3, {q3}, 3, v3')
        A('v_mul_u32_u24 v5, 192, v7')
        A(f'v_add_u32 {r("a1")}, v3, v5')
        A(f'v_add_u32 {r("a1b")}, {6 * 6144}, {r("a1")}')
        A('v_lshlrev_b32 v5, 7, v7')
        A(f'v_lshl_add_u32 v5, {q3}, 3, v5')
        A('s_and_b32 s45, s3, 3')
        A('s_lshl_b32 s45, s45, 5')
        A(f's_add_u32 s45, s45, {L_W2}')
        A(f'v_add_u32 {r("a2")}, s45, v5')


if __name__ == '__main__':
    kw = eval('dict(%s)' % (sys.argv[2] if len(sys.argv) > 2 else ''))
    open(sys.argv[1], 'w').write(Gen(**kw).build())
```

```python
import sys

KNAME = 'standalone__channel_attn_cbam__vision_kernel'
HEADER = """; Kernarg layout for this problem (48 bytes, ptrs only, base s[0:1]):
"""

XBYTES = 50331648
WBYTES = 73728
O_A = 0
O_B = 786432
O_C = O_B + 196608
WS_USE = 1 << 20
L_W1, L_W2 = 0, 73728
L_P = 90112
L_Q = 114688
L_G, L_H, L_S, L_F = 139264, 140800, 141312, 142848
LDS_BYTES = 143360
S_X, S_W1, S_W2, S_OUT, S_DBG, S_WS = 16, 20, 24, 28, 32, 36
ACC, TMP, W1F, W2F, DATA = 8, 20, 44, 92, 104


class Gen:
    def __init__(self, **kw):
        self.p = dict(D=8, lpol='nt', spol='sc1', stamps=False, classes=False, clrpos=3,
                      cpos=22, ipos=18, wpf=20, spin=1 << 20, wmode='late', wstart=0, wper=1, force=None)
        self.p.update(kw)
        self.o = []
        self.vm = []
        self.nstamp = 0
        self.names = {}

    def A(self, s):
        self.o.append('    ' + s)

    def L(self, s):
        self.o.append(s + ':')

    def C(self, s):
        self.o.append('    ; ' + s)

    def srd(self, b):
        return f's[{b}:{b + 3}]'

    def issue(self, tag, text):
        self.A(text)
        self.vm.append(tag)

    def wait_for(self, tag):
        n = len(self.vm) - 1 - self.vm.index(tag)
        assert n <= 63
        self.A(f's_waitcnt vmcnt({n})')

    def stamp(self):
        self.npos = getattr(self, 'npos', -1) + 1
        amp = self.p.get('amp')
        if amp is not None and self.npos == 0:
            self.A('s_memrealtime s[90:91]')
            self.A('s_mov_b32 s88, 0')
            self.A('s_mov_b32 s92, 0')
        if amp is not None and self.npos == amp[0]:
            self.A('s_memrealtime s[88:89]')
        if amp is not None and self.npos == amp[1]:
            self.A('s_memrealtime s[92:93]')
        if self.p['stamps']:
            k = self.nstamp
            assert k < 14
            self.A(f's_memrealtime s[{60 + 2 * k}:{61 + 2 * k}]')
            self.nstamp += 1

    def d(self, j):
        return f'v[{DATA + 4 * j}:{DATA + 4 * j + 2}]'

    def r(self, name):
        if name not in self.names:
            self.names[name] = len(self.names)
            assert self.names[name] < 32
        return f'v{DATA + 4 * self.names[name] + 3}'

    def step(self, j):
        if j == 0:
            return
        if self.p['classes'] and j == 28:
            self.A('s_mov_b32 s40, s12')
        elif self.p['classes'] and j == 32:
            self.A('s_add_u32 s40, s40, s13')
        else:
            self.A('s_addk_i32 s40, 6144')

    def early_out(self, j, lab):
        if self.p['classes'] and j in (28, 32):
            self.A(f's_cmp_lt_u32 s2, {48 if j == 28 else 64}')
            self.A(f's_cbranch_scc1 {lab}')

    def stage_one(self, i):
        A, r = self.A, self.r
        if i < 12:
            A('s_mul_i32 s44, s3, 768' if i == 0 else 's_addk_i32 s44, 6144')
            A('s_mov_b32 m0, s44')
            A('s_mov_b32 exec_hi, 0xffff')
            self.issue(f'W{i}', f'buffer_load_dwordx4 {r("vW1")}, {self.srd(S_W1)}, s44 offen lds')
            A('s_mov_b32 exec_hi, -1')
        else:
            if i == 12:
                A('s_lshl_b32 s45, s3, 10')
                A(f's_add_u32 m0, s45, {L_W2}')
                A('s_mul_i32 s44, s3, 6144')
            else:
                A('s_add_u32 m0, m0, 8192')
                A('s_add_u32 s44, s44, 49152')
            self.issue(f'W{i}', f'buffer_load_dwordx4 {r("vW2")}, {self.srd(S_W2)}, s44 offen lds')

    def poll(self, lab, addr, offs, base):
        A, L = self.A, self.L
        n = len(offs)
        t = base + 4 * n
        A(f's_mov_b32 s50, {self.p["spin"]}')
        L(lab)
        for i, off in enumerate(offs):
            o = f' offset:{off}' if off else ''
            A(f'buffer_load_dwordx4 v[{base + 4 * i}:{base + 4 * i + 3}], {addr}, {self.srd(S_WS)}, 0 offen{o} sc1')
        regs = list(range(base, base + 4 * n))
        first = True
        for i in range(n):
            A(f's_waitcnt vmcnt({n - 1 - i})')
            x = base + 4 * i
            if first:
                A(f'v_max3_u32 v{t}, v{x}, v{x + 1}, v{x + 2}')
                A(f'v_max_u32 v{t}, v{t}, v{x + 3}')
                first = False
            else:
                A(f'v_max3_u32 v{t}, v{t}, v{x}, v{x + 1}')
                A(f'v_max3_u32 v{t}, v{t}, v{x + 2}, v{x + 3}')
        A(f'v_cmp_eq_u32 vcc, -1, v{t}')
        A(f's_cbranch_vccz {lab}done')
        sl = self.p.get('sleep', {}).get(lab[-1], 0)
        if sl:
            A(f's_sleep {sl}')
        A('s_sub_u32 s50, s50, 1')
        A(f's_cbranch_scc0 {lab}')
        L(lab + 'done')

    def local_store(self, lab, text):
        A, L = self.A, self.L
        A('s_cmp_lg_u32 s14, 0')
        A(f's_cbranch_scc1 {lab}a')
        A(text + ' sc1')
        A(f's_branch {lab}b')
        L(lab + 'a')
        A(text)
        L(lab + 'b')

    def stage_weights(self):
        A, r = self.A, self.r
        A('s_mov_b32 exec_hi, 0xffff')
        for i in range(12):
            A('s_mul_i32 s44, s3, 768' if i == 0 else 's_addk_i32 s44, 6144')
            A('s_mov_b32 m0, s44')
            A('s_nop 0')
            A(f'buffer_load_dwordx4 {r("vW1")}, {self.srd(S_W1)}, s44 offen lds')
        A('s_mov_b64 exec, -1')
        for k in range(2):
            if k == 0:
                A('s_mul_i32 s44, s3, 6144')
                A('s_lshl_b32 s45, s3, 10')
                A(f's_add_u32 m0, s45, {L_W2}')
            else:
                A('s_add_u32 s44, s44, 49152')
                A('s_add_u32 m0, m0, 8192')
            A('s_nop 0')
            A(f'buffer_load_dwordx4 {r("vW2")}, {self.srd(S_W2)}, s44 offen lds')

    def build(self):
        p = self.p
        A, L, C, r = self.A, self.L, self.C, self.r
        D = p['D']
        RB = 33 if p['classes'] else 32
        o = self.o
        o.append(HEADER.rstrip())
        o.append(f'; @launch grid=(256,1,1) block=(512,1,1) lds={LDS_BYTES}')
        o.append('.amdgcn_target "amdgcn-amd-amdhsa--gfx950"')
        o.append('.text')
        o.append(f'.globl {KNAME}')
        o.append('.p2align 8')
        o.append(f'.type {KNAME},@function')
        L(KNAME)
        self.stamp()
        A(f's_load_dwordx2 s[{S_X}:{S_X + 1}], s[0:1], 0')
        A(f's_load_dwordx2 s[{S_WS}:{S_WS + 1}], s[0:1], 40')
        A('v_mul_u32_u24 v2, 12, v0')
        A(f's_mul_i32 s40, s2, {(28 if p["classes"] else 32) * 6144}')
        A(f's_mov_b32 s{S_X + 2}, {XBYTES}')
        A(f's_mov_b32 s{S_X + 3}, 0x20000')
        A('s_mov_b32 s41, s40')
        A('s_waitcnt lgkmcnt(0)')

        def issue_x(j):
            self.step(j)
            self.issue(f'X{j}', f'buffer_load_dwordx3 {self.d(j)}, v2, {self.srd(S_X)}, s40 offen {p["lpol"]}'.rstrip())

        for j in range(D):
            issue_x(j)
            if j == p['clrpos']:
                A('s_cmp_ge_u32 s2, 256')
                A('s_cbranch_scc1 L_end')
                A('v_lshrrev_b32 v3, 6, v0')
                A('v_and_b32 v1, 63, v0')
                A(f's_mov_b32 s{S_WS + 2}, {WS_USE}')
                A('v_readfirstlane_b32 s3, v3')
                A(f's_mov_b32 s{S_WS + 3}, 0x20000')
                A('v_lshlrev_b32 v4, 4, v1')
                A('s_cmp_lg_u32 s3, 0')
                A('s_cbranch_scc1 L_clearback')
                C('wave 0: fill this workgroup\'s share of the exchange area with the "empty" word')
                for k in range(4):
                    A(f'v_mov_b32 v{8 + k}, -1')
                A('s_lshl_b32 s42, s2, 12')
                for i in range(4):
                    A(f'buffer_store_dwordx4 v[8:11], v4, {self.srd(S_WS)}, s42 offen offset:{1024 * i} sc1')
                L('L_clearback')
        self.stamp()
        A(f's_load_dwordx2 s[{S_DBG}:{S_DBG + 1}], s[0:1], 32')
        A(f's_load_dwordx2 s[{S_W1}:{S_W1 + 1}], s[0:1], 8')
        A(f's_load_dwordx2 s[{S_W2}:{S_W2 + 1}], s[0:1], 16')
        A(f's_load_dwordx2 s[{S_OUT}:{S_OUT + 1}], s[0:1], 24')
        A(f's_mov_b32 s{S_DBG + 2}, 256')
        A(f's_mov_b32 s{S_DBG + 3}, 0x20000')
        if p['wmode'] == 'oob':
            A('s_cmp_lt_u32 s2, 48')
            A(f's_cselect_b32 s{S_W1 + 2}, {WBYTES}, 0')
        else:
            A(f's_mov_b32 s{S_W1 + 2}, {WBYTES}')
        A(f's_mov_b32 s{S_W1 + 3}, 0x20000')
        A(f's_mov_b32 s{S_W2 + 2}, s{S_W1 + 2}')
        A(f's_mov_b32 s{S_W2 + 3}, 0x20000')
        A(f's_mov_b32 s{S_OUT + 2}, {XBYTES}')
        A(f's_mov_b32 s{S_OUT + 3}, 0x20000')
        A('s_mov_b32 s48, 0xffff0000')
        if p['classes']:
            A('s_sub_u32 s12, s2, 48')
            A('s_min_u32 s13, s12, 16')
            A('s_mul_i32 s12, s12, 5')
            A('s_sub_u32 s12, s12, s13')
            A(f's_add_u32 s12, s12, {256 * 28}')
            A('s_mul_i32 s12, s12, 6144')
            A('s_cmp_lt_u32 s2, 48')
            A('s_cselect_b32 s12, 2.0, s12')
            A('s_cmp_lt_u32 s2, 64')
            A('s_cselect_b32 s13, 2.0, 0')
            A('s_addk_i32 s13, 6144')
        A('s_and_b32 s4, s2, 7')
        A('s_lshr_b32 s5, s2, 3')
        A('s_getreg_b32 s42, hwreg(HW_REG_XCC_ID, 0, 3)')
        A('s_lshl_b32 s42, s42, 3')
        A('s_lshl_b64 s[42:43], 1, s42')
        A('v_mov_b32 v32, s42')
        A('v_mov_b32 v33, s43')
        self.addr_prep()
        A('s_waitcnt lgkmcnt(0)')

        def unpack(j, t):
            for q in range(3):
                A(f'v_lshlrev_b32 v{t + 2 * q}, 16, v{DATA + 4 * j + q}')
                A(f'v_and_b32 v{t + 2 * q + 1}, s48, v{DATA + 4 * j + q}')

        sigrow = p['clrpos'] + 1
        for j in range(0, RB, 2):
            self.early_out(j, 'L_accdone')
            if j == p['cpos']:
                A('s_cmp_lg_u32 s3, 3')
                A('s_cbranch_scc1 L_nocnt')
                A(f'buffer_load_dwordx2 v[34:35], {r("cnta")}, {self.srd(S_DBG)}, 0 offen sc1')
                L('L_nocnt')
            if j == p['ipos']:
                A('s_cmp_lg_u32 s3, 5')
                A('s_cbranch_scc1 L_noipf')
                C('wave 5: read the not yet executed part of the kernel text once, to pull it into L2')
                A('s_getpc_b64 s[46:47]')
                L('L_pc')
                A('v_lshlrev_b32 v6, 7, v1')
                A('v_min_u32 v6, L_last - L_pc, v6')
                A('v_mov_b32 v7, s47')
                A('v_add_co_u32 v6, vcc, s46, v6')
                A('s_nop 1')
                A('v_addc_co_u32 v7, vcc, 0, v7, vcc')
                A(f'global_load_dword {r("junk")}, v[6:7], off')
                L('L_noipf')
            if j == p['wpf'] and p['wmode'] == 'late':
                A('s_cmp_lg_u32 s3, 6')
                A('s_cbranch_scc1 L_nowpf')
                C('wave 6: touch 1/32 of the weights so that they are in L2 when they are staged')
                A('s_mul_i32 s42, s5, 2304')
                A('v_lshlrev_b32 v6, 6, v1')
                A('s_mov_b32 exec_hi, 15')
                A(f'buffer_load_dword {r("junk")}, v6, {self.srd(S_W1)}, s42 offen')
                A(f'buffer_load_dword {r("junk")}, v6, {self.srd(S_W2)}, s42 offen')
                A('s_mov_b64 exec, -1')
                L('L_nowpf')
            for jj in range(j, min(j + 2, RB)):
                self.wait_for(f'X{jj}')
                if jj == sigrow:
                    A('s_cmp_lg_u32 s3, 0')
                    A('s_cbranch_scc1 L_sigback')
                    C('vmcnt retires in issue order: the fill stores are complete.  Count in: byte[xcc] of the group counter')
                    A('s_lshl_b64 exec, 1, s4')
                    A(f'buffer_atomic_add_x2 v[32:33], {r("cnta")}, {self.srd(S_DBG)}, 0 offen sc1')
                    A('s_mov_b64 exec, -1')
                    L('L_sigback')
                t = TMP + 6 * (jj & 1)
                unpack(jj, t)
                if jj + D < RB:
                    issue_x(jj + D)
                if p['wmode'] == 'oob' and jj >= p['wstart']:
                    for i in range((jj - p['wstart']) * p['wper'], min((jj - p['wstart'] + 1) * p['wper'], 14)):
                        self.stage_one(i)
                for q in range(3):
                    a = ACC + 4 * q
                    if jj == 1:
                        A(f'v_pk_add_f32 v[{a}:{a + 1}], v[{TMP + 2 * q}:{TMP + 2 * q + 1}], v[{t + 2 * q}:{t + 2 * q + 1}]')
                    elif jj > 1:
                        A(f'v_pk_add_f32 v[{a}:{a + 1}], v[{a}:{a + 1}], v[{t + 2 * q}:{t + 2 * q + 1}]')
            for q in range(3):
                for h in range(2):
                    a = ACC + 4 * q + 2 + h
                    if j + 1 == RB:
                        A(f'v_max_f32 v{a}, v{a}, v{TMP + 2 * q + h}')
                    elif j == 0:
                        A(f'v_max_f32 v{a}, v{TMP + 2 * q + h}, v{TMP + 6 + 2 * q + h}')
                    else:
                        A(f'v_max3_f32 v{a}, v{a}, v{TMP + 2 * q + h}, v{TMP + 6 + 2 * q + h}')
        L('L_accdone')
        self.stamp()
        for q in range(3):
            A(f'ds_write_b128 {r("Pw")}, v[{ACC + 4 * q}:{ACC + 4 * q + 3}] offset:{16 * q}')
        A('s_cmp_eq_u32 s3, 3')
        A('s_cbranch_scc1 L_cnt')
        L('L_cntback')
        assert p['wmode'] != 'oob' or self.vm.index('W13') < self.vm.index('X27')
        A('s_waitcnt lgkmcnt(0)')
        A('s_barrier')
        A(f'ds_read_b32 v42, {r("F")}')
        A('s_cmp_ge_u32 s3, 3')
        A('s_cbranch_scc1 L_nopub')
        for w in range(8):
            A(f'ds_read_b128 v[{8 + 4 * w}:{11 + 4 * w}], {r("t16")} offset:{3072 * w}')
        self.reduce8(mid='v_readfirstlane_b32 s14, v42')
        self.local_store('L_pub', f'buffer_store_dwordx4 v[8:11], {r("pub")}, {self.srd(S_WS)}, 0 offen')
        L('L_nopub')
        self.stamp()
        A('s_cmp_lt_u32 s5, 6')
        A('s_cbranch_scc1 L_mlp')
        A('s_cmp_lt_u32 s5, 8')
        A('s_cbranch_scc1 L_notred')
        A('s_cmp_lg_u32 s3, 4')
        A('s_cbranch_scc1 L_notred')
        self.poll('L_poll1', r('in1'), [0, 1024, 2048, 3072], 8)
        self.stamp()
        A('v_pk_add_f32 v[8:9], v[8:9], v[12:13]')
        A('v_pk_add_f32 v[16:17], v[16:17], v[20:21]')
        A('v_max3_f32 v10, v10, v14, v18')
        A('v_max3_f32 v11, v11, v15, v19')
        A('v_pk_add_f32 v[8:9], v[8:9], v[16:17]')
        A('v_max_f32 v10, v10, v22')
        A('v_max_f32 v11, v11, v23')
        A('v_add_f32_dpp v8, v8, v8 row_ror:8 row_mask:0xf bank_mask:0xf')
        A('v_add_f32_dpp v9, v9, v9 row_ror:8 row_mask:0xf bank_mask:0xf')
        A('v_max_f32_dpp v10, v10, v10 row_ror:8 row_mask:0xf bank_mask:0xf')
        A('v_max_f32_dpp v11, v11, v11 row_ror:8 row_mask:0xf bank_mask:0xf')
        for op in ('v_permlane16_swap_b32', 'v_permlane32_swap_b32'):
            for k in range(4):
                A(f'v_mov_b32 v{12 + k}, v{8 + k}')
            for k in range(4):
                A(f'{op} v{8 + k}, v{12 + k}')
            A('v_pk_add_f32 v[8:9], v[8:9], v[12:13]')
            A('v_max_f32 v10, v10, v14')
            A('v_max_f32 v11, v11, v15')
        A(f'buffer_store_dwordx4 v[8:11], {r("out2")}, {self.srd(S_WS)}, 0 offen sc1')
        self.stamp()
        L('L_notred')
        L('L_mlpback')
        self.stamp_fixed = self.nstamp
        A('s_cmp_lg_u32 s3, 7')
        A('s_cbranch_scc1 L_nopoll3')
        A('s_mov_b32 exec_hi, 0xffff')
        self.poll('L_poll3', r('in3'), [0, 768], 12)
        A(f'ds_write_b128 {r("Sw")}, v[12:15]')
        A(f'ds_write_b128 {r("Sw")}, v[16:19] offset:768')
        A('s_mov_b64 exec, -1')
        A('s_waitcnt lgkmcnt(0)')
        L('L_nopoll3')
        A('s_barrier')
        for q in range(3):
            A(f'ds_read_b64 v[{32 + 2 * q}:{33 + 2 * q}], {r("S")} offset:{8 * q}')
        self.stamp()
        A('s_mov_b32 s40, s41')
        for j in range(RB):
            self.early_out(j, 'L_stdone')
            t = 8 + 6 * (j & 3)
            unpack(j, t)
            if j == 0:
                A('s_waitcnt lgkmcnt(0)')
            for q in range(3):
                A(f'v_pk_mul_f32 v[{t + 2 * q}:{t + 2 * q + 1}], v[{t + 2 * q}:{t + 2 * q + 1}], v[{32 + 2 * q}:{33 + 2 * q}]')
            for q in range(3):
                A(f'v_cvt_pk_bf16_f32 v{DATA + 4 * j + q}, v{t + 2 * q}, v{t + 2 * q + 1}')
            self.step(j)
            A(f'buffer_store_dwordx3 {self.d(j)}, v2, {self.srd(S_OUT)}, s40 offen {p["spol"]}'.rstrip())
        L('L_stdone')
        if p.get('amp') is not None and not p['stamps']:
            A('s_waitcnt vmcnt(0)')
            self.stamp()
            A('s_waitcnt lgkmcnt(0)')
            A('s_sub_u32 s94, s92, s88')
            if len(p['amp']) > 3:
                A('s_min_u32 s94, s94, 500')
                A('s_sub_u32 s94, 500, s94')
            A('s_cmp_eq_u32 s92, 0')
            A('s_cselect_b32 s94, 0, s94')
            A('s_cmp_eq_u32 s88, 0')
            A('s_cselect_b32 s94, 0, s94')
            A('s_min_u32 s94, s94, 3000')
            A(f's_lshl_b32 s94, s94, {p["amp"][2]}')
            A('s_add_u32 s94, s94, 3000')
            L('L_pad')
            A('s_sleep 2')
            A('s_memrealtime s[92:93]')
            A('s_waitcnt lgkmcnt(0)')
            A('s_sub_u32 s95, s92, s90')
            A('s_cmp_lt_u32 s95, s94')
            A('s_cbranch_scc1 L_pad')
        if p['stamps']:
            A('s_waitcnt vmcnt(0)')
            self.stamp()
            A('s_branch L_stamps')
        L('L_end')
        A('s_endpgm')

        L('L_cnt')
        C('wave 3: all 256 workgroups must have emptied their share; is this group on a single XCD?')
        A(f's_mov_b32 s50, {p["spin"]}')
        A('s_mov_b64 exec, 0xff')
        L('L_cntloop')
        A('s_waitcnt vmcnt(0)')
        A('v_sad_u8 v36, v34, 0, 0')
        A('v_sad_u8 v36, v35, 0, v36')
        A('v_cmp_gt_u32 vcc, 32, v36')
        A('s_cbranch_vccz L_cntdone')
        A(f'buffer_load_dwordx2 v[34:35], {r("cnta")}, {self.srd(S_DBG)}, 0 offen sc1')
        A('s_sub_u32 s50, s50, 1')
        A('s_cbranch_scc0 L_cntloop')
        L('L_cntdone')
        A('v_or_b32 v34, v34, v35')
        A('v_and_b32 v34, 0x20202020, v34')
        if p['force'] is not None:
            A(f'v_mov_b32 v34, {p["force"]}')
        A('s_lshl_b64 exec, 1, s4')
        if p.get('diagslow'):
            A('v_cmp_eq_u32 vcc, 0, v34')
            A('s_cbranch_vccz L_dg')
            for _ in range(6):
                A('s_sleep 127')
            L('L_dg')
        A(f'ds_write_b32 {r("F")}, v34')
        A('s_mov_b64 exec, -1')
        A('s_branch L_cntback')

        L('L_mlp')
        C('MLP workgroups (ranks 0..5 of every group)')
        if p['wmode'] == 'late':
            A('s_barrier')
            self.stage_weights()
            A('s_waitcnt vmcnt(0)')
            A('s_barrier')
        A('s_waitcnt lgkmcnt(0)')
        A('v_readfirstlane_b32 s14, v42')
        A('s_cmp_ge_u32 s3, 6')
        A('s_cbranch_scc1 L_notr1')
        for b in range(12):
            for h in range(2):
                base = r('a1') if b < 6 else r('a1b')
                x = W1F + 4 * b + 2 * h
                A(f'ds_read_b64_tr_b16 v[{x}:{x + 1}], {base} offset:{(b % 6) * 6144 + h * 1536}')
        L('L_notr1')
        for b in range(3):
            for h in range(2):
                x = W2F + 4 * b + 2 * h
                A(f'ds_read_b64_tr_b16 v[{x}:{x + 1}], {r("a2")} offset:{(32 * b + 8 * h) * 128}')
        self.stamp()
        self.poll('L_poll2', r('in2'), [0, 1024, 2048], 8)
        self.stamp()
        for q in range(3):
            A(f'ds_write_b128 {r("Qw")}, v[{8 + 4 * q}:{11 + 4 * q}] offset:{L_Q - L_P + 1024 * q}')
        A('s_waitcnt lgkmcnt(0)')
        A('s_barrier')
        A('s_cmp_ge_u32 s3, 3')
        A('s_cbranch_scc1 L_nog')
        for w in range(8):
            A(f'ds_read_b128 v[{8 + 4 * w}:{11 + 4 * w}], {r("t16")} offset:{L_Q - L_P + 3072 * w}')
        self.reduce8()
        A('v_mul_f32 v8, 0x37800000, v8')
        A('v_mul_f32 v9, 0x37800000, v9')
        A('v_cvt_pk_bf16_f32 v13, v10, v11')
        A('v_cvt_pk_bf16_f32 v12, v8, v9')
        A(f'ds_write2_b32 {r("Gw")}, v12, v13 offset0:0 offset1:192')
        A('s_waitcnt lgkmcnt(0)')
        L('L_nog')
        A('s_barrier')
        self.stamp()
        A('s_cmp_ge_u32 s3, 6')
        A('s_cbranch_scc1 L_nol1')
        NB = 8
        for b in range(NB):
            A(f'ds_read_b128 v[{8 + 4 * b}:{11 + 4 * b}], {r("G")} offset:{64 * b}')
        issued = NB
        for b in range(12):
            A(f's_waitcnt lgkmcnt({issued - b - 1})')
            g = 8 + 4 * (b % NB)
            c = '0' if b == 0 else 'v[40:43]'
            A(f'v_mfma_f32_16x16x32_bf16 v[40:43], v[{W1F + 4 * b}:{W1F + 4 * b + 3}], v[{g}:{g + 3}], {c}')
            if issued < 12:
                A(f'ds_read_b128 v[{g}:{g + 3}], {r("G")} offset:{64 * issued}')
                issued += 1
        A('s_nop 7')
        for k in range(4):
            A(f'v_mul_f32 v{8 + k}, 0, v{40 + k}')
            A(f'v_cmp_lt_f32 s[{52 + 2 * k}:{53 + 2 * k}], 0, v{40 + k}')
        A('s_mov_b32 exec_lo, 0x00030003')
        A('s_mov_b32 exec_hi, 0x00030003')
        for k in range(4):
            A(f'v_cndmask_b32 v{8 + k}, v{8 + k}, v{40 + k}, s[{52 + 2 * k}:{53 + 2 * k}]')
        A('v_cvt_pk_bf16_f32 v12, v8, v9')
        A('v_cvt_pk_bf16_f32 v13, v10, v11')
        A(f'ds_write_b64 {r("Hw")}, v[12:13]')
        A('s_mov_b64 exec, -1')
        A('s_waitcnt lgkmcnt(0)')
        L('L_nol1')
        A('s_barrier')
        A('s_cmp_ge_u32 s3, 4')
        A('s_cbranch_scc1 L_mlpback')
        for b in range(3):
            A(f'ds_read_b128 v[{8 + 4 * b}:{11 + 4 * b}], {r("H")} offset:{64 * b}')
        for b in range(3):
            A(f's_waitcnt lgkmcnt({2 - b})')
            c = '0' if b == 0 else 'v[20:23]'
            wf = W2F + 4 * b
            A(f'v_mfma_f32_16x16x32_bf16 v[20:23], v[{8 + 4 * b}:{11 + 4 * b}], v[{wf}:{wf + 3}], {c}')
        A('s_nop 7')
        A('v_cvt_pk_bf16_f32 v8, v20, v21')
        A('v_lshlrev_b32 v9, 16, v8')
        A('v_and_b32 v8, s48, v8')
        A('v_add_f32 v8, v8, v9')
        A('v_cvt_pk_bf16_f32 v8, v8, v8')
        A('v_and_b32 v8, s48, v8')
        A('v_mul_f32 v8, 0xbfb8aa3b, v8')
        A('v_exp_f32 v8, v8')
        A('s_mov_b64 exec, 0xffff')
        A('v_add_f32 v8, 1.0, v8')
        A('v_rcp_f32 v8, v8')
        A('s_nop 0')
        A('v_cvt_pk_bf16_f32 v8, v8, v8')
        A('v_and_b32 v8, s48, v8')
        self.local_store('L_pub3', f'buffer_store_dword v8, {r("out3")}, {self.srd(S_WS)}, 0 offen')
        A('s_mov_b64 exec, -1')
        self.stamp()
        L('L_last')
        A('s_branch L_mlpback')

        if p['stamps']:
            L('L_stamps')
            A('s_waitcnt lgkmcnt(0)')
            A(f's_add_u32 s56, s{S_WS}, 0x8000000')
            A(f's_addc_u32 s57, s{S_WS + 1}, 0')
            A('s_lshl_b32 s58, s2, 4\n    s_add_u32 s58, s58, s3\n    s_lshl_b32 s58, s58, 7')
            A('s_mov_b64 exec, 1')
            A('v_mov_b32 v1, s58')
            A('s_getreg_b32 s59, hwreg(HW_REG_XCC_ID, 0, 4)')
            A('v_mov_b32 v4, s59\n    v_mov_b32 v5, 0')
            A('global_store_dwordx2 v1, v[4:5], s[56:57] offset:120')
            A('s_nop 1')
            order = [0, 1, 2, 3, 4, 5, 8, 9, 10, 11, 6, 7]
            for i, k in enumerate(order):
                A(f'v_mov_b32 v4, s{60 + 2 * k}\n    v_mov_b32 v5, s{61 + 2 * k}')
                A(f'global_store_dwordx2 v1, v[4:5], s[56:57] offset:{8 * i}')
                A('s_nop 1')
            A('s_endpgm')
        o.append('.section .rodata,"a"')
        o.append('.p2align 6')
        o.append(f'.amdhsa_kernel {KNAME}')
        o.append('  .amdhsa_next_free_vgpr 256')
        o.append('  .amdhsa_next_free_sgpr 96')
        o.append('  .amdhsa_accum_offset 256')
        o.append('  .amdhsa_group_segment_fixed_size 0')
        o.append('  .amdhsa_kernarg_size 48')
        o.append('  .amdhsa_user_sgpr_count 2')
        o.append('  .amdhsa_user_sgpr_kernarg_segment_ptr 1')
        o.append('  .amdhsa_system_sgpr_workgroup_id_x 1')
        o.append('  .amdhsa_float_denorm_mode_32 3')
        o.append('.end_amdhsa_kernel')
        return '\n'.join(o) + '\n'

    def reduce8(self, mid=None):
        A = self.A
        for k in range(4):
            A(f's_waitcnt lgkmcnt({6 - 2 * k})')
            if k == 0 and mid:
                A(mid)
            ra, rb = 8 + 8 * k, 12 + 8 * k
            A(f'v_pk_add_f32 v[{ra}:{ra + 1}], v[{ra}:{ra + 1}], v[{rb}:{rb + 1}]')
            if k == 0:
                A(f'v_max_f32 v10, v10, v{rb + 2}')
                A(f'v_max_f32 v11, v11, v{rb + 3}')
            else:
                A(f'v_max3_f32 v10, v10, v{ra + 2}, v{rb + 2}')
                A(f'v_max3_f32 v11, v11, v{ra + 3}, v{rb + 3}')
            if k == 1:
                A('v_pk_add_f32 v[8:9], v[8:9], v[16:17]')
        A('v_pk_add_f32 v[24:25], v[24:25], v[32:33]')
        A('v_pk_add_f32 v[8:9], v[8:9], v[24:25]')

    def addr_prep(self):
        A, r = self.A, self.r
        kg, q3, l1, kc, rr, q7 = 'v34', 'v35', 'v37', 'v38', 'v39', 'v36'
        A(f'v_lshrrev_b32 {kg}, 4, v1')
        A(f'v_and_b32 {q3}, 3, v1')
        A(f'v_and_b32 {l1}, 1, v1')
        A(f'v_bfe_u32 {kc}, v1, 4, 1')
        A(f'v_bfe_u32 {rr}, v1, 2, 2')
        A(f'v_and_b32 {q7}, 0x70, v4')
        A('v_lshrrev_b32 v3, 1, v1')
        A('v_lshlrev_b32 v3, 3, v3')
        A(f'v_lshl_add_u32 {r("cnta")}, {l1}, 7, v3')
        A(f'v_mov_b32 {r("F")}, {L_F}')
        A('s_mul_i32 s45, s3, 3072')
        A(f's_add_u32 s45, s45, {L_P}')
        A('v_mul_u32_u24 v3, 48, v1')
        A(f'v_add_u32 {r("Pw")}, s45, v3')
        A(f'v_add_u32 {r("Qw")}, s45, v4')
        A('v_lshlrev_b32 v3, 4, v0')
        A(f'v_add_u32 {r("t16")}, {L_P}, v3')
        A('s_mul_i32 s49, s4, 98304')
        A('s_lshl_b32 s45, s5, 7')
        A('s_add_u32 s45, s45, s49')
        A('v_lshrrev_b32 v3, 3, v0')
        A(f'v_lshl_add_u32 v3, v3, 12, {q7}')
        A(f'v_add_u32 {r("pub")}, s45, v3')
        A('s_sub_u32 s51, s5, 8')
        A('s_lshl_b32 s45, s51, 12')
        A('s_add_u32 s45, s45, s49')
        A(f'v_add_u32 {r("in1")}, s45, v4')
        A('s_mul_i32 s45, s4, 3072')
        A('s_lshl_b32 s49, s51, 7')
        A('s_add_u32 s45, s45, s49')
        A(f's_add_u32 s45, s45, {O_B}')
        A('v_lshrrev_b32 v3, 3, v1')
        A('v_mul_u32_u24 v3, 24576, v3')
        A(f'v_add3_u32 {r("out2")}, v3, {q7}, s45')
        A('s_lshl_b32 s45, s4, 3')
        A('s_add_u32 s45, s45, s3')
        A('s_mul_i32 s45, s45, 3072')
        A(f's_add_u32 s45, s45, {O_B}')
        A(f'v_add_u32 {r("in2")}, s45, v4')
        A('s_lshl_b32 s45, s4, 11')
        A(f's_add_u32 s45, s45, {O_C}')
        A(f'v_add_u32 {r("in3")}, s45, v4')
        A('s_lshl_b32 s49, s5, 2')
        A('s_add_u32 s49, s49, s3')
        A('s_lshl_b32 s49, s49, 6')
        A('s_add_u32 s45, s45, s49')
        A(f'v_lshl_add_u32 {r("out3")}, v1, 2, s45')
        A('v_and_b32 v3, 0x1f9, v0')
        A('v_bfe_u32 v5, v0, 1, 1')
        A('v_lshl_add_u32 v3, v5, 2, v3')
        A('v_bfe_u32 v5, v0, 2, 1')
        A('v_lshl_add_u32 v3, v5, 1, v3')
        A('v_lshlrev_b32 v3, 2, v3')
        A(f'v_add_u32 {r("Gw")}, {L_G}, v3')
        A(f'v_mul_u32_u24 v3, 768, {l1}')
        A(f'v_lshl_add_u32 v3, {kg}, 4, v3')
        A(f'v_add_u32 {r("G")}, {L_G}, v3')
        A(f'v_mul_u32_u24 v3, 192, {l1}')
        A(f'v_add_u32 v3, {L_H}, v3')
        A(f'v_lshl_add_u32 {r("H")}, {kg}, 4, v3')
        A(f'v_lshl_add_u32 v3, {kc}, 4, v3')
        A('v_lshrrev_b32 v5, 5, v1')
        A('v_lshl_add_u32 v3, v5, 3, v3')
        A('s_lshl_b32 s45, s3, 5')
        A(f'v_add_u32 {r("Hw")}, s45, v3')
        A(f'v_add_u32 {r("Sw")}, {L_S}, v4')
        A('v_mul_u32_u24 v3, 24, v1')
        A(f'v_add_u32 {r("S")}, {L_S}, v3')
        A('s_and_b32 s45, s45, 32')
        A(f'v_xor_b32 {r("vW1")}, s45, v4')
        A('v_lshrrev_b32 v3, 3, v1')
        A('v_mul_u32_u24 v3, 768, v3')
        A('s_lshl_b32 s45, s5, 7')
        A(f'v_add3_u32 {r("vW2")}, v3, {q7}, s45')
        A(f'v_lshl_add_u32 v6, {kc}, 2, {rr}')
        A('v_lshl_add_u32 v7, v5, 4, v6')
        A(f'v_xor_b32 v3, s3, {kc}')
        A('v_lshlrev_b32 v3, 5, v3')
        A(f'v_lshl_add_u32 v3, {q3}, 3, v3')
        A('v_mul_u32_u24 v5, 192, v7')
        A(f'v_add_u32 {r("a1")}, v3, v5')
        A(f'v_add_u32 {r("a1b")}, {6 * 6144}, {r("a1")}')
        A('v_lshlrev_b32 v5, 7, v7')
        A(f'v_lshl_add_u32 v5, {q3}, 3, v5')
        A('s_and_b32 s45, s3, 3')
        A('s_lshl_b32 s45, s45, 5')
        A(f's_add_u32 s45, s45, {L_W2}')
        A(f'v_add_u32 {r("a2")}, s45, v5')


if __name__ == '__main__':
    kw = eval('dict(%s)' % (sys.argv[2] if len(sys.argv) > 2 else ''))
    open(sys.argv[1], 'w').write(Gen(**kw).build())
```

```python
import sys

KNAME = 'standalone__channel_attn_cbam__vision_kernel'
HEADER = """; Kernarg layout for this problem (48 bytes, ptrs only, base s[0:1]):
"""

XBYTES = 50331648
WBYTES = 73728
O_A = 0
O_B = 786432
O_C = O_B + 196608
WS_USE = 1 << 20
L_W1, L_W2 = 0, 73728
L_P = 90112
L_G, L_H, L_S = 114688, 116736, 117248
GOFF = 832
LDS_BYTES = 118784
S_X, S_W1, S_W2, S_OUT, S_DBG, S_WS = 16, 20, 24, 28, 32, 36
ACC, TMP, W1F, W2F, DATA = 8, 20, 44, 92, 104
S_U, S_ST = 60, 76
L_T = 116480
XOR3 = 'bitop3:0x96'


class Gen:
    def __init__(self, **kw):
        self.p = dict(D=8, lpol='nt', spol='sc1', stamps=False, npos=14, ipos=12, wpf=20, tpos=16, thr=(2, 0),
                      spin=1 << 20, dlyA=16, dlyC=10, nwg=0, wb=32, stag=(0, 0, 0), direct=True, B=32, R=32)
        self.p.update(kw)
        self.o = []
        self.vm = []
        self.nstamp = 0
        self.names = {}

    def A(self, s):
        self.o.append('    ' + s)

    def L(self, s):
        self.o.append(s + ':')

    def C(self, s):
        self.o.append('    ; ' + s)

    def srd(self, b):
        return f's[{b}:{b + 3}]'

    def issue(self, tag, text):
        self.A(text)
        self.vm.append(tag)

    def wait_for(self, tag):
        n = len(self.vm) - 1 - self.vm.index(tag)
        assert n <= 63
        self.A(f's_waitcnt vmcnt({n})')

    def stamp(self):
        self.npos = getattr(self, 'npos', -1) + 1
        amp = self.p.get('amp')
        if amp is not None and self.npos == 0:
            self.A('s_memrealtime s[90:91]')
            self.A('s_mov_b32 s88, 0')
            self.A('s_mov_b32 s92, 0')
        if amp is not None and self.npos == amp[0]:
            self.A('s_memrealtime s[88:89]')
        if amp is not None and self.npos == amp[1]:
            self.A('s_memrealtime s[92:93]')
        if self.p['stamps']:
            k = self.nstamp
            assert k < 13
            self.A(f's_memrealtime s[{S_ST + 2 * k}:{S_ST + 1 + 2 * k}]')
            self.nstamp += 1

    def d(self, j):
        return f'v[{DATA + 4 * j}:{DATA + 4 * j + 2}]'

    def r(self, name):
        if name not in self.names:
            self.names[name] = len(self.names)
            assert self.names[name] < 32
        return f'v{DATA + 4 * self.names[name] + 3}'

    def ws_load4(self, reg, addr, off):
        if isinstance(off, str):
            return f'buffer_load_dwordx4 v[{reg}:{reg + 3}], {addr}, {self.srd(S_WS)}, {off} offen sc1'
        o = f' offset:{off}' if off else ''
        return f'buffer_load_dwordx4 v[{reg}:{reg + 3}], {addr}, {self.srd(S_WS)}, 0 offen{o} sc1'

    def check_rec(self, base, n, pend):
        A = self.A
        t = 38
        for i in range(n):
            x = base + 4 * i
            A(f's_waitcnt vmcnt({pend + n - 1 - i})')
            A(f'v_bitop3_b32 v{t + i}, v{x}, v{x + 1}, v{x + 2} {XOR3}')
            A(f'v_bitop3_b32 v{t + i}, v{t + i}, v{x + 3}, {self.r("tag")} {XOR3}')
            if i == 2:
                A(f'v_or3_b32 v{t}, v{t}, v{t + 1}, v{t + 2}')
            if i == 3:
                A(f'v_or_b32 v{t}, v{t}, v{t + 3}')
        A(f'v_cmp_ne_u32 vcc, 0, v{t}')

    def check_scale(self, base, n, pend):
        A = self.A
        for i in range(2):
            A(f's_waitcnt vmcnt({pend + 1 - i})')
            for k in range(4):
                A(f'v_xor_b32 v{base + 4 * i + k}, s{6 + k}, v{base + 4 * i + k}')
            if i == 0:
                A(f'v_or3_b32 v38, v{base}, v{base + 1}, v{base + 2}')
            else:
                A(f'v_or3_b32 v38, v38, v{base + 3}, v{base + 4}')
                A(f'v_or3_b32 v39, v{base + 5}, v{base + 6}, v{base + 7}')
                A('v_or_b32 v38, v38, v39')
        A('v_cmp_ne_u16 vcc, 0, v38')

    def poll(self, lab, addr, offs, sets, check, success, stagger):
        A, L = self.A, self.L
        n = len(offs)

        def loads(base):
            for i, off in enumerate(offs):
                A(self.ws_load4(base + 4 * i, addr, off))
        A(f's_mov_b32 s50, {self.p["spin"] - 1}')
        if not stagger:
            L(lab)
            loads(sets[0])
            check(sets[0], n, 0)
            A(f's_cbranch_vccz {lab}done')
            self.again(lab)
            L(lab + 'done')
            success(sets[0])
            return
        loads(sets[0])
        A(f's_sleep {stagger}')
        L(lab)
        loads(sets[1])
        check(sets[0], n, n)
        A(f's_cbranch_vccz {lab}x')
        loads(sets[0])
        check(sets[1], n, n)
        A(f's_cbranch_vccz {lab}y')
        self.again(lab)
        L(lab + 'y')
        k = self.nstamp
        success(sets[1])
        A(f's_branch {lab}done')
        L(lab + 'x')
        self.nstamp = k
        success(sets[0])
        L(lab + 'done')

    def again(self, lab):
        A = self.A
        if self.p['wb']:
            A(f's_and_b32 s51, s50, {self.p["wb"] - 1}')
            A(f's_cbranch_scc1 {lab}nowb')
            self.C('still waiting: push plain-stored records of this XCD out, a reader may sit behind another L2')
            A('buffer_wbl2 sc1')
            A('s_waitcnt vmcnt(0)')
            A('buffer_inv sc1')
            self.L(lab + 'nowb')
        A('s_sub_u32 s50, s50, 1')
        A(f's_cbranch_scc0 {lab}')

    def seal(self):
        self.A(f'v_bitop3_b32 v11, v8, v9, v10 {XOR3}')
        self.A(f'v_xor_b32 v11, v11, {self.r("tag")}')

    def key(self, x, t):
        self.A(f'v_pk_ashrrev_i16 v{t}, 15, v{x} op_sel_hi:[0,1]')
        self.A(f'v_bitop3_b32 v{x}, v{x}, v{t}, s49 bitop3:0x78')

    def stage_weights(self):
        A, r = self.A, self.r
        A('s_mov_b32 exec_hi, 0xffff')
        for i in range(12):
            A('s_mul_i32 s44, s3, 768' if i == 0 else 's_addk_i32 s44, 6144')
            A('s_mov_b32 m0, s44')
            A('s_nop 0')
            A(f'buffer_load_dwordx4 {r("vW1")}, {self.srd(S_W1)}, s44 offen lds')
        A('s_mov_b64 exec, -1')
        for k in range(2):
            if k == 0:
                A('s_lshl_b32 s45, s3, 10')
                A(f's_add_u32 m0, s45, {L_W2}')
                A('s_mul_i32 s44, s3, 6144')
            else:
                A('s_add_u32 m0, m0, 8192')
                A('s_add_u32 s44, s44, 49152')
            A(f'buffer_load_dwordx4 {r("vW2")}, {self.srd(S_W2)}, s44 offen lds')

    def stage_one(self, i):
        A, r = self.A, self.r
        if i < 12:
            A('s_mul_i32 s44, s3, 768' if i == 0 else 's_addk_i32 s44, 6144')
            A('s_mov_b32 m0, s44')
            A('s_mov_b32 exec_hi, 0xffff')
            self.issue(f'W{i}', f'buffer_load_dwordx4 {r("vW1")}, {self.srd(S_W1)}, s44 offen lds')
            A('s_mov_b32 exec_hi, -1')
        else:
            if i == 12:
                A('s_lshl_b32 s45, s3, 10')
                A(f's_add_u32 m0, s45, {L_W2}')
                A('s_mul_i32 s44, s3, 6144')
            else:
                A('s_add_u32 m0, m0, 8192')
                A('s_add_u32 s44, s44, 49152')
            self.issue(f'W{i}', f'buffer_load_dwordx4 {r("vW2")}, {self.srd(S_W2)}, s44 offen lds')

    def tags(self):
        A, r = self.A, self.r
        A('v_readfirstlane_b32 s10, v34')
        A('v_readfirstlane_b32 s11, v35')
        A('v_and_b32 v36, 1, v1')
        A('v_cmp_eq_u32 vcc, 1, v36')
        A('v_and_b32 v37, 7, v1')
        A('v_lshlrev_b32 v36, 4, v36')
        A('v_cndmask_b32 v38, v34, v35, vcc')
        A(f'v_add_u32 {r("tag")}, v38, v37')
        A('v_and_b32 v37, 2, v1')
        A('v_cmp_eq_u32 vcc, 2, v37')
        A('s_and_b32 s6, s10, 0xffff')
        A('s_lshr_b32 s7, s10, 16')
        A('v_cndmask_b32 v38, v34, v35, vcc')
        A(f'v_bfe_u32 {r("tag16")}, v38, v36, 16')
        A('s_and_b32 s8, s11, 0xffff')
        A('s_lshr_b32 s9, s11, 16')

    def build(self):
        p = self.p
        A, L, C, r = self.A, self.L, self.C, self.r
        D, B, R = p['D'], p['B'], p['R']
        assert B % 2 == 0 and R - B <= 16 and DATA + 4 * R <= 256
        NDYN = 256 - 8 * B
        o = self.o
        o.append(HEADER.rstrip())
        o.append(f'; @launch grid=(256,1,1) block=(512,1,1) lds={LDS_BYTES}')
        o.append('.amdgcn_target "amdgcn-amd-amdhsa--gfx950"')
        o.append('.text')
        o.append(f'.globl {KNAME}')
        o.append('.p2align 8')
        o.append(f'.type {KNAME},@function')
        L(KNAME)
        self.stamp()
        A(f's_load_dwordx2 s[{S_X}:{S_X + 1}], s[0:1], 0')
        A('v_mul_u32_u24 v2, 12, v0')
        A('s_mul_i32 s40, s2, 196608')
        A(f's_mov_b32 s{S_X + 2}, {XBYTES}')
        A(f's_mov_b32 s{S_X + 3}, 0x20000')
        A('s_waitcnt lgkmcnt(0)')

        def request():
            A('s_mov_b64 exec, 1')
            A(f'ds_add_rtn_u32 v42, {r("T")}, v43')
            A('s_mov_b64 exec, -1')

        def issue_x(j):
            if j < B:
                if j:
                    A('s_addk_i32 s40, 6144')
                so = 's40'
            else:
                so = f's{S_U + j - B}'
                A('s_waitcnt lgkmcnt(0)')
                A(f'v_readfirstlane_b32 s14, v42')
                if j + 1 < R:
                    request()
                A(f's_mul_i32 {so}, s14, 768')
                A(f's_add_u32 {so}, {so}, s41')
                A(f's_cmp_lt_u32 s14, {NDYN}')
                A(f's_cselect_b32 {so}, {so}, 2.0')
                A('s_addc_u32 s15, s15, 0')
            self.issue(f'X{j}', f'buffer_load_dwordx3 {self.d(j)}, v2, {self.srd(S_X)}, {so} offen {p["lpol"]}'.rstrip())
            if j == B - 1 and R > B:
                request()

        for j in range(D):
            issue_x(j)
            if j == 0:
                A(f's_load_dwordx2 s[{S_DBG}:{S_DBG + 1}], s[0:1], 32')
                A('s_memrealtime s[10:11]')
            if j == 1 and R > B:
                A(f'v_mov_b32 {r("T")}, {L_T}')
                A('v_mov_b32 v43, 0')
                A(f'ds_write_b32 {r("T")}, v43')
                A('s_waitcnt lgkmcnt(0)')
                A('s_barrier')
        self.stamp()
        A('s_cmp_ge_u32 s2, 256')
        A('s_cbranch_scc1 L_end')
        A('v_lshrrev_b32 v3, 6, v0')
        A('v_and_b32 v1, 63, v0')
        A(f's_mov_b32 s{S_DBG + 2}, 256')
        A('v_readfirstlane_b32 s3, v3')
        A(f's_mov_b32 s{S_DBG + 3}, 0x20000')
        A(f'v_mov_b32 {r("zero")}, 0')
        A('s_lshl_b32 s42, s2, 3')
        A('s_add_u32 s42, s42, s3')
        A(f's_cmp_lg_u32 s42, {p["nwg"] * 8}')
        A('s_waitcnt lgkmcnt(0)')
        A('s_cbranch_scc1 L_nononce')
        C('one wave of the grid publishes the nonce of this launch (both words non-zero)')
        A('s_or_b32 s10, s10, 1')
        A('s_or_b32 s11, s11, 0x80000000')
        A('v_mov_b32 v34, s10')
        A('v_mov_b32 v35, s11')
        A('s_mov_b64 exec, 1')
        A(f'buffer_store_dwordx2 v[34:35], {r("zero")}, {self.srd(S_DBG)}, 0 offen sc1')
        A('s_mov_b64 exec, -1')
        L('L_nononce')
        A(f's_load_dwordx2 s[{S_WS}:{S_WS + 1}], s[0:1], 40')
        A(f's_load_dwordx2 s[{S_W1}:{S_W1 + 1}], s[0:1], 8')
        A(f's_load_dwordx2 s[{S_W2}:{S_W2 + 1}], s[0:1], 16')
        A(f's_load_dwordx2 s[{S_OUT}:{S_OUT + 1}], s[0:1], 24')
        A(f's_mov_b32 s{S_WS + 2}, {WS_USE}')
        A(f's_mov_b32 s{S_WS + 3}, 0x20000')
        A(f's_mov_b32 s{S_W1 + 2}, {WBYTES}')
        A(f's_mov_b32 s{S_W1 + 3}, 0x20000')
        A(f's_mov_b32 s{S_W2 + 2}, {WBYTES}')
        A(f's_mov_b32 s{S_W2 + 3}, 0x20000')
        A(f's_mov_b32 s{S_OUT + 2}, {XBYTES}')
        A(f's_mov_b32 s{S_OUT + 3}, 0x20000')
        A('s_mov_b32 s48, 0xffff0000')
        A('s_mov_b32 s12, 0')
        if R > B:
            A('v_mov_b32 v43, 1')
            A('s_mov_b32 s15, 0')
            A('s_lshl_b32 s41, s2, 8')
            A('s_sub_u32 s41, s41, s3')
            A(f's_add_u32 s41, s41, {8 * B}')
            A('s_mul_i32 s41, s41, 768')
        A('s_getreg_b32 s13, hwreg(HW_REG_XCC_ID, 0, 1)')
        A('s_and_b32 s4, s2, 7')
        A('s_lshr_b32 s5, s2, 3')
        A('v_lshlrev_b32 v4, 4, v1')
        prep = []
        save, self.o = self.o, prep
        self.addr_prep()
        self.o = save
        o = self.o

        def unpack(j, t):
            for q in range(3):
                A(f'v_lshlrev_b32 v{t + 2 * q}, 16, v{DATA + 4 * j + q}')
                A(f'v_and_b32 v{t + 2 * q + 1}, s48, v{DATA + 4 * j + q}')

        def pair(j, extra=None):
            for jj in (j, j + 1):
                self.wait_for(f'X{jj}')
                if 'N' in self.vm and self.vm.index('N') < self.vm.index(f'X{jj}') and not getattr(self, 'tagged', 0):
                    self.tagged = 1
                    self.tags()
                t = TMP + 6 * (jj & 1)
                unpack(jj, t)
                if jj + D < R:
                    de = p.get('De')
                    if de:
                        A('s_cmp_lg_u32 s13, 0')
                        A(f's_cbranch_scc1 L_lt{jj}')
                        self.wait_for(f'X{jj + D - de}')
                        L(f'L_lt{jj}')
                    issue_x(jj + D)
                if extra:
                    extra(jj)
                for q in range(3):
                    a = ACC + 4 * q
                    if jj == 1:
                        A(f'v_pk_add_f32 v[{a}:{a + 1}], v[{TMP + 2 * q}:{TMP + 2 * q + 1}], v[{t + 2 * q}:{t + 2 * q + 1}]')
                    elif jj > 1:
                        A(f'v_pk_add_f32 v[{a}:{a + 1}], v[{a}:{a + 1}], v[{t + 2 * q}:{t + 2 * q + 1}]')
            for q in range(3):
                for h in range(2):
                    a = ACC + 4 * q + 2 + h
                    if j == 0:
                        A(f'v_max_f32 v{a}, v{TMP + 2 * q + h}, v{TMP + 6 + 2 * q + h}')
                    else:
                        A(f'v_max3_f32 v{a}, v{a}, v{TMP + 2 * q + h}, v{TMP + 6 + 2 * q + h}')

        nprep = p.get('prepsteps', 1)
        chunk = -(-len(prep) // nprep)
        for j in range(0, B, 2):
            if prep:
                o.extend(prep[:chunk])
                prep = prep[chunk:]
                if not prep:
                    A('s_mov_b32 s49, 0x7fff7fff')
                    A('s_waitcnt lgkmcnt(0)')
            if j == p['npos']:
                self.issue('N', f'buffer_load_dwordx2 v[34:35], {r("zero")}, {self.srd(S_DBG)}, 0 offen sc1')
            if j == p['ipos']:
                A('s_and_b32 s42, s3, 3')
                A('s_cmp_lg_u32 s42, 1')
                A('s_cbranch_scc1 L_noipf')
                C('waves 1, 5: read the kernel text behind the load loop once, to pull it into L2')
                A('s_getpc_b64 s[46:47]')
                L('L_pc')
                A('s_lshl_b32 s42, s3, 10')
                A('s_add_u32 s42, s42, L_acc - L_pc - 1024')
                A('v_lshl_add_u32 v6, v1, 6, s42')
                A('v_min_u32 v6, L_last - L_pc, v6')
                A('v_mov_b32 v7, s47')
                A('v_add_co_u32 v6, vcc, s46, v6')
                A('s_nop 1')
                A('v_addc_co_u32 v7, vcc, 0, v7, vcc')
                A(f'global_load_dword {r("junk")}, v[6:7], off')
                L('L_noipf')
            if j == p['wpf']:
                A('s_cmp_lg_u32 s3, 6')
                A('s_cbranch_scc1 L_nowpf')
                C('wave 6: touch 1/32 of the weights so that they are in L2 when they are staged')
                if p.get('wmall'):
                    A('s_mul_i32 s42, s2, 320')
                    A('v_lshlrev_b32 v6, 6, v1')
                    A('s_mov_b64 exec, 31')
                else:
                    A('s_mul_i32 s42, s5, 2304')
                    A('v_lshlrev_b32 v6, 6, v1')
                    A('s_mov_b32 exec_hi, 15')
                A(f'buffer_load_dword {r("junk")}, v6, {self.srd(S_W1)}, s42 offen')
                A(f'buffer_load_dword {r("junk")}, v6, {self.srd(S_W2)}, s42 offen')
                A('s_mov_b64 exec, -1')
                L('L_nowpf')
            if j == p['tpos']:
                A('s_cmp_lg_u32 s3, 4')
                A('s_cbranch_scc1 L_notch')
                C('wave 4: touch 1/32 of the lines this group will poll')
                if p.get('apos') is not None:
                    A('s_mov_b32 exec_lo, 0')
                    A('s_mov_b32 exec_hi, 0x1fff0000')
                A(f'buffer_load_dword {r("junk")}, {r("tch")}, {self.srd(S_WS)}, 0 offen sc1')
                A('s_mov_b64 exec, -1')
                L('L_notch')
            if j == p.get('apos'):
                assert self.tagged
                A('s_cmp_ge_u32 s3, 3')
                A('s_cbranch_scc1 L_noalloc')
                C('waves 0..2: own the lines of their later records early (check word deliberately wrong)')
                A('v_mov_b32 v50, 0')
                A('v_mov_b32 v51, 0')
                A('v_mov_b32 v52, 0')
                A(f'v_not_b32 v53, {r("tag")}')
                A(f'buffer_store_dwordx4 v[50:53], {r("pub")}, {self.srd(S_WS)}, 0 offen')
                L('L_noalloc')
            if p.get('wtail') and j == 32 - D:
                A('s_cmp_lt_u32 s5, 6')
                A('s_cbranch_scc1 L_wtail')
                self.vm_at_tail = list(self.vm)
            pair(j)
        for j in range(B, R):
            A(f's_cmp_le_u32 s15, {j - B}')
            A('s_cbranch_scc1 L_acc')
            self.wait_for(f'X{j}')
            unpack(j, TMP)
            if j + D < R:
                issue_x(j + D)
            for q in range(3):
                a = ACC + 4 * q
                A(f'v_pk_add_f32 v[{a}:{a + 1}], v[{a}:{a + 1}], v[{TMP + 2 * q}:{TMP + 2 * q + 1}]')
                A(f'v_max_f32 v{a + 2}, v{a + 2}, v{TMP + 2 * q}')
                A(f'v_max_f32 v{a + 3}, v{a + 3}, v{TMP + 2 * q + 1}')
        assert self.tagged
        L('L_acc')
        self.stamp()
        if p.get('p1only'):
            A('s_branch L_stdone')
        for q in range(3):
            A(f'ds_write_b128 {r("Pw")}, v[{ACC + 4 * q}:{ACC + 4 * q + 3}] offset:{16 * q}')
        A('s_min_u32 s42, s10, s11')
        A('s_cmp_eq_u32 s42, 0')
        A('s_cbranch_scc1 L_nonce')
        L('L_nonceback')
        A('s_waitcnt lgkmcnt(0)')
        A('s_barrier')
        A('s_cmp_ge_u32 s3, 3')
        A('s_cbranch_scc1 L_nopub')
        for w in range(8):
            A(f'ds_read_b128 v[{8 + 4 * w}:{11 + 4 * w}], {r("t16")} offset:{3072 * w}')
        for k in range(4):
            A(f's_waitcnt lgkmcnt({6 - 2 * k})')
            ra, rb = 8 + 8 * k, 12 + 8 * k
            if k == 0:
                A(f'v_max_f32 v10, v10, v{rb + 2}')
                A(f'v_max_f32 v11, v11, v{rb + 3}')
            else:
                A(f'v_max3_f32 v10, v10, v{ra + 2}, v{rb + 2}')
                A(f'v_max3_f32 v11, v11, v{ra + 3}, v{rb + 3}')
            A(f'v_pk_add_f32 v[{ra}:{ra + 1}], v[{ra}:{ra + 1}], v[{rb}:{rb + 1}]')
            if k == 1:
                A('v_pk_add_f32 v[8:9], v[8:9], v[16:17]')
            if k == 2:
                A('v_pk_add_f32 v[8:9], v[8:9], v[24:25]')
        A('v_cvt_pk_bf16_f32 v10, v10, v11')
        A('v_pk_add_f32 v[8:9], v[8:9], v[32:33]')
        self.key(10, 12)
        self.seal()
        pubA = f'buffer_store_dwordx4 v[8:11], {r("pub")}, {self.srd(S_WS)}, 0 offen'
        A(pubA if not p.get('force') else pubA + ' sc1')
        self.stamp()
        A('s_cmp_lt_u32 s5, 6')
        A('s_cbranch_scc1 L_mlp')
        if not p['wb']:
            A(f's_sleep {p["dlyA"]}')
            A(pubA + ' sc1')
        A('s_branch L_join')
        L('L_nopub')
        A('s_cmp_lt_u32 s5, 6')
        A('s_cbranch_scc1 L_mlp')
        A('s_cmp_lg_u32 s3, 4')
        A('s_cbranch_scc1 L_mlpback')
        A('s_cmp_lt_u32 s5, 8')
        A('s_cbranch_scc1 L_join')
        def red_in(x):
            self.stamp()
            A(f'v_pk_add_f32 v[8:9], v[{x}:{x + 1}], v[{x + 4}:{x + 5}]')
            A(f'v_pk_add_f32 v[16:17], v[{x + 8}:{x + 9}], v[{x + 12}:{x + 13}]')
            A(f'v_pk_max_i16 v10, v{x + 2}, v{x + 6}')
            A(f'v_pk_max_i16 v18, v{x + 10}, v{x + 14}')
        self.poll('L_poll1', r('in1'), [0, 1024, 2048, 3072], (44, 60), self.check_rec, red_in, p['stag'][0])
        A('v_pk_add_f32 v[8:9], v[8:9], v[16:17]')
        A('v_pk_max_i16 v10, v10, v18')
        A('s_nop 0')
        A('v_add_f32_dpp v8, v8, v8 row_ror:8 row_mask:0xf bank_mask:0xf')
        A('v_add_f32_dpp v9, v9, v9 row_ror:8 row_mask:0xf bank_mask:0xf')
        A('v_mov_b32_dpp v14, v10 row_ror:8 row_mask:0xf bank_mask:0xf')
        A('v_mov_b32 v12, v8')
        A('v_mov_b32 v13, v9')
        A('v_pk_max_i16 v10, v10, v14')
        A('v_permlane16_swap_b32 v8, v12')
        A('v_mov_b32 v14, v10')
        A('v_permlane16_swap_b32 v9, v13')
        A('v_add_f32 v8, v8, v12')
        A('v_permlane16_swap_b32 v10, v14')
        A('v_add_f32 v9, v9, v13')
        A('v_mov_b32 v12, v8')
        A('v_pk_max_i16 v10, v10, v14')
        A('v_mov_b32 v13, v9')
        A('v_permlane32_swap_b32 v8, v12')
        A('v_mov_b32 v14, v10')
        A('v_permlane32_swap_b32 v9, v13')
        A('v_add_f32 v8, v8, v12')
        A('v_permlane32_swap_b32 v10, v14')
        A('v_add_f32 v9, v9, v13')
        A('v_pk_max_i16 v10, v10, v14')
        self.seal()
        A(f'buffer_store_dwordx4 v[8:11], {r("out2")}, {self.srd(S_WS)}, 0 offen sc1')
        self.stamp()
        L('L_mlpback')
        A('s_cmp_lg_u32 s3, 7')
        A('s_cbranch_scc1 L_join')
        A('s_mov_b32 exec_hi, 0xffff')
        def s_out(x):
            A(f'ds_write_b128 {r("Sw")}, v[{x}:{x + 3}]')
            A(f'ds_write_b128 {r("Sw")}, v[{x + 4}:{x + 7}] offset:768')
        self.poll('L_poll3', r('in3'), [0, 768], (76, 84), self.check_scale, s_out, p['stag'][2])
        A('s_mov_b64 exec, -1')
        A('s_waitcnt lgkmcnt(0)')
        L('L_join')
        if p.get('thr'):
            A('s_getreg_b32 vcc_lo, hwreg(HW_REG_XCC_ID, 0, 1)')
            A('s_mov_b32 vcc_hi, 0')
        A('s_mul_i32 s40, s2, 196608')
        A('s_barrier')
        for q in range(3):
            A(f'ds_read_b64 v[{32 + 2 * q}:{33 + 2 * q}], {r("S")} offset:{8 * q}')
        self.stamp()
        pubC = f'buffer_store_dword v40, {r("out3")}, {self.srd(S_WS)}, 0 offen'
        for j in range(R):
            if j >= B:
                A(f's_cmp_le_u32 s15, {j - B}')
                A('s_cbranch_scc1 L_stdone')
            if p['wb'] and j == p.get('c2pos', 8):
                C('the waves that published a part of the scale repeat that store write-through')
                A('s_cmp_eq_u32 s12, 0')
                A('s_cbranch_scc1 L_noc2')
                A('s_mov_b64 exec, 0xffff')
                A(pubC + ' sc1')
                A('s_mov_b64 exec, -1')
                L('L_noc2')
            t = 8 + 6 * (j & 3)
            unpack(j, t)
            if j == 0:
                A('s_waitcnt lgkmcnt(0)')
            for q in range(3):
                A(f'v_pk_mul_f32 v[{t + 2 * q}:{t + 2 * q + 1}], v[{t + 2 * q}:{t + 2 * q + 1}], v[{32 + 2 * q}:{33 + 2 * q}]')
            for q in range(3):
                A(f'v_cvt_pk_bf16_f32 v{DATA + 4 * j + q}, v{t + 2 * q}, v{t + 2 * q + 1}')
            if 0 < j < B:
                A('s_addk_i32 s40, 6144')
            so = 's40' if j < B else f's{S_U + j - B}'
            ne, no = p.get('thr', (0, 0))
            if no and j >= no:
                A(f's_waitcnt vmcnt({no - 1})')
            if isinstance(ne, tuple):
                ne = ne[j % len(ne)]
            if ne and ne != no and j >= ne:
                A(f's_cbranch_vccnz L_thr{j}')
                A(f's_waitcnt vmcnt({ne - 1})')
                L(f'L_thr{j}')
            A(f'buffer_store_dwordx3 {self.d(j)}, v2, {self.srd(S_OUT)}, {so} offen {p["spol"] if p.get("pfirst", 0) <= j < R - p.get("plast", 0) else p.get("spol2", "")}'.rstrip())
        L('L_stdone')
        if p.get('amp') is not None and not p['stamps']:
            A('s_waitcnt vmcnt(0)')
            self.stamp()
            A('s_waitcnt lgkmcnt(0)')
            A('s_sub_u32 s94, s92, s88')
            if len(p['amp']) > 3:
                A('s_min_u32 s94, s94, 500')
                A('s_sub_u32 s94, 500, s94')
            A('s_cmp_eq_u32 s92, 0')
            A('s_cselect_b32 s94, 0, s94')
            A('s_cmp_eq_u32 s88, 0')
            A('s_cselect_b32 s94, 0, s94')
            A('s_min_u32 s94, s94, 3000')
            A(f's_lshl_b32 s94, s94, {p["amp"][2]}')
            A('s_add_u32 s94, s94, 3000')
            L('L_pad')
            A('s_sleep 2')
            A('s_memrealtime s[92:93]')
            A('s_waitcnt lgkmcnt(0)')
            A('s_sub_u32 s95, s92, s90')
            A('s_cmp_lt_u32 s95, s94')
            A('s_cbranch_scc1 L_pad')
        if p['stamps']:
            A('s_waitcnt vmcnt(0)')
            self.stamp()
            A('s_branch L_stamps')
        L('L_end')
        A('s_endpgm')

        L('L_nonce')
        C('the nonce was not there yet when this wave looked: wait for it')
        A(f's_mov_b32 s50, {p["spin"]}')
        L('L_nonceloop')
        A(f'buffer_load_dwordx2 v[34:35], {r("zero")}, {self.srd(S_DBG)}, 0 offen sc1')
        A('s_waitcnt vmcnt(0)')
        self.tags()
        A('s_min_u32 s42, s10, s11')
        A('s_cmp_lg_u32 s42, 0')
        A('s_cbranch_scc1 L_nonceback')
        A('s_sleep 4')
        A('s_sub_u32 s50, s50, 1')
        A('s_cbranch_scc0 L_nonceloop')
        A('s_branch L_nonceback')

        if p.get('wtail'):
            L('L_wtail')
            C('MLP workgroups: last rows, with the weight staging issued while the row loads drain')
            self.vm = self.vm_at_tail
            todo = list(range(p['wtail'][0]))
            def extra(jj):
                for _ in range(p['wtail'][1]):
                    if todo:
                        self.stage_one(todo.pop(0))
            for j in range(32 - D, 32, 2):
                pair(j, extra)
            assert not todo
            A('s_branch L_acc')
        L('L_mlp')
        C('MLP workgroups (ranks 0..5 of every group)')
        first = p['wtail'][0] if p.get('wtail') else 0
        if first < 14:
            A('s_barrier')
            for i in range(first, 14):
                self.stage_one(i)
        A('s_waitcnt vmcnt(0)')
        A('s_barrier')
        if not p['wb']:
            A('s_cmp_ge_u32 s3, 3')
            A('s_cbranch_scc1 L_nopub2')
            A(pubA + ' sc1')
            L('L_nopub2')
        A('s_cmp_ge_u32 s3, 6')
        A('s_cbranch_scc1 L_notr1')
        for b in range(12):
            for h in range(2):
                base = r('a1') if b < 6 else r('a1b')
                x = W1F + 4 * b + 2 * h
                A(f'ds_read_b64_tr_b16 v[{x}:{x + 1}], {base} offset:{(b % 6) * 6144 + h * 1536}')
        L('L_notr1')
        for b in range(3):
            for h in range(2):
                x = W2F + 4 * b + 2 * h
                A(f'ds_read_b64_tr_b16 v[{x}:{x + 1}], {r("a2")} offset:{(32 * b + 8 * h) * 128}')
        self.stamp()
        if p.get('direct'):
            A('s_cmp_ge_u32 s3, 6')
            A('s_cbranch_scc1 L_nog')
            A('s_movk_i32 s42, 6144')
            A('s_movk_i32 s43, 12288')
            A('s_movk_i32 s45, 18432')
            def g_in(x):
                self.stamp()
                A(f'v_pk_add_f32 v[8:9], v[{x}:{x + 1}], v[{x + 4}:{x + 5}]')
                A(f'v_pk_add_f32 v[16:17], v[{x + 8}:{x + 9}], v[{x + 12}:{x + 13}]')
                A(f'v_pk_max_i16 v10, v{x + 2}, v{x + 6}')
                A(f'v_pk_max_i16 v18, v{x + 10}, v{x + 14}')
            self.poll('L_poll2', r('in2'), ['0', 's42', 's43', 's45'], (20, 20), self.check_rec, g_in, 0)
            A('v_pk_add_f32 v[8:9], v[8:9], v[16:17]')
            A('v_pk_max_i16 v10, v10, v18')
            A('v_mov_b32 v12, v8')
            A('v_mov_b32 v13, v9')
            A('v_mov_b32 v14, v10')
            A('v_permlane32_swap_b32 v8, v12')
            A('v_permlane32_swap_b32 v9, v13')
            A('v_permlane32_swap_b32 v10, v14')
            A('v_pk_add_f32 v[8:9], v[8:9], v[12:13]')
            A('v_pk_max_i16 v10, v10, v14')
            A('v_mul_f32 v8, 0x37800000, v8')
            A('v_mul_f32 v9, 0x37800000, v9')
            self.key(10, 12)
            A('v_cvt_pk_bf16_f32 v8, v8, v9')
            A('s_mov_b32 exec_hi, 0')
            A(f'ds_write2_b32 {r("Gw")}, v8, v10 offset0:0 offset1:{GOFF // 4}')
            A('s_mov_b32 exec_hi, -1')
            A('s_waitcnt lgkmcnt(0)')
        else:
            def q_out(x):
                self.stamp()
                for q in range(3):
                    A(f'ds_write_b128 {r("Qw")}, v[{x + 4 * q}:{x + 3 + 4 * q}] offset:{1024 * q}')
            self.poll('L_poll2', r('in2'), [0, 1024, 2048], (104, 116), self.check_rec, q_out, p['stag'][1])
            A('s_waitcnt lgkmcnt(0)')
            A('s_barrier')
            if p.get('fine') and p['stamps']:
                A('s_memrealtime s[68:69]')
            A('s_cmp_ge_u32 s3, 3')
            A('s_cbranch_scc1 L_nog')
            for w in range(8):
                A(f'ds_read_b128 v[{8 + 4 * w}:{11 + 4 * w}], {r("t16")} offset:{3072 * w}')
            for k in range(4):
                A(f's_waitcnt lgkmcnt({6 - 2 * k})')
                ra, rb = 8 + 8 * k, 12 + 8 * k
                A(f'v_pk_add_f32 v[{ra}:{ra + 1}], v[{ra}:{ra + 1}], v[{rb}:{rb + 1}]')
                A(f'v_pk_max_i16 v{ra + 2}, v{ra + 2}, v{rb + 2}')
                if k:
                    A(f'v_pk_add_f32 v[8:9], v[8:9], v[{ra}:{ra + 1}]')
                    A(f'v_pk_max_i16 v10, v10, v{ra + 2}')
            A('v_mul_f32 v8, 0x37800000, v8')
            A('v_mul_f32 v9, 0x37800000, v9')
            self.key(10, 12)
            A('v_cvt_pk_bf16_f32 v8, v8, v9')
            A(f'ds_write2_b32 {r("Gw")}, v8, v10 offset0:0 offset1:{GOFF // 4}')
            A('s_waitcnt lgkmcnt(0)')
        L('L_nog')
        A('s_barrier')
        self.stamp()
        A('s_cmp_ge_u32 s3, 6')
        A('s_cbranch_scc1 L_nol1')
        NB = 8
        for b in range(NB):
            A(f'ds_read_b128 v[{8 + 4 * b}:{11 + 4 * b}], {r("G")} offset:{64 * b}')
        issued = NB
        for b in range(12):
            A(f's_waitcnt lgkmcnt({issued - b - 1})')
            g = 8 + 4 * (b % NB)
            c = '0' if b == 0 else 'v[40:43]'
            A(f'v_mfma_f32_16x16x32_bf16 v[40:43], v[{W1F + 4 * b}:{W1F + 4 * b + 3}], v[{g}:{g + 3}], {c}')
            if issued < 12:
                A(f'ds_read_b128 v[{g}:{g + 3}], {r("G")} offset:{64 * issued}')
                issued += 1
        A('s_nop 7')
        if p.get('fine') and p['stamps']:
            A('v_mov_b32 v7, v43')
            A('s_memrealtime s[62:63]')
        for k in range(4):
            A(f'v_mul_f32 v{8 + k}, 0, v{40 + k}')
            A(f'v_cmp_lt_f32 s[{52 + 2 * k}:{53 + 2 * k}], 0, v{40 + k}')
        A('s_mov_b32 exec_lo, 0x00030003')
        A('s_mov_b32 exec_hi, 0x00030003')
        for k in range(4):
            A(f'v_cndmask_b32 v{8 + k}, v{8 + k}, v{40 + k}, s[{52 + 2 * k}:{53 + 2 * k}]')
        A('v_cvt_pk_bf16_f32 v12, v8, v9')
        A('v_cvt_pk_bf16_f32 v13, v10, v11')
        A(f'ds_write_b64 {r("Hw")}, v[12:13]')
        A('s_mov_b64 exec, -1')
        A('s_waitcnt lgkmcnt(0)')
        L('L_nol1')
        A('s_barrier')
        if p.get('fine') and p['stamps']:
            A('s_memrealtime s[66:67]')
        A('s_cmp_ge_u32 s3, 4')
        A('s_cbranch_scc1 L_mlpback')
        for b in range(3):
            A(f'ds_read_b128 v[{8 + 4 * b}:{11 + 4 * b}], {r("H")} offset:{64 * b}')
        for b in range(3):
            A(f's_waitcnt lgkmcnt({2 - b})')
            c = '0' if b == 0 else 'v[20:23]'
            wf = W2F + 4 * b
            A(f'v_mfma_f32_16x16x32_bf16 v[20:23], v[{8 + 4 * b}:{11 + 4 * b}], v[{wf}:{wf + 3}], {c}')
        A('s_nop 7')
        if p.get('fine') and p['stamps']:
            A('v_mov_b32 v7, v23')
            A('s_memrealtime s[70:71]')
        A('v_cvt_pk_bf16_f32 v8, v20, v21')
        A('v_lshlrev_b32 v9, 16, v8')
        A('v_and_b32 v8, s48, v8')
        A('v_add_f32 v8, v8, v9')
        A('v_cvt_pk_bf16_f32 v8, v8, v8')
        A('v_and_b32 v8, s48, v8')
        A('v_mul_f32 v8, 0xbfb8aa3b, v8')
        A('v_exp_f32 v8, v8')
        A('s_mov_b64 exec, 0xffff')
        A('v_add_f32 v8, 1.0, v8')
        A('v_rcp_f32 v8, v8')
        A('s_nop 0')
        A('v_cvt_pk_bf16_f32 v8, v8, v8')
        A(f'v_and_or_b32 v40, v8, s48, {r("tag16")}')
        A(pubC if not p.get('force') else pubC + ' sc1')
        A('s_mov_b32 s12, 1')
        self.stamp()
        if not p['wb']:
            A(f's_sleep {p["dlyC"]}')
            A(pubC + ' sc1')
        A('s_mov_b64 exec, -1')
        L('L_last')
        A('s_branch L_join')

        if p['stamps']:
            L('L_stamps')
            A('s_waitcnt lgkmcnt(0)')
            A(f's_add_u32 s56, s{S_WS}, 0x8000000')
            A(f's_addc_u32 s57, s{S_WS + 1}, 0')
            A('s_lshl_b32 s58, s2, 4\n    s_add_u32 s58, s58, s3\n    s_lshl_b32 s58, s58, 7')
            A('s_mov_b64 exec, 1')
            A('v_mov_b32 v1, s58')
            A('s_getreg_b32 s59, hwreg(HW_REG_XCC_ID, 0, 4)')
            A('v_mov_b32 v4, s59\n    v_mov_b32 v5, 0')
            A('global_store_dwordx2 v1, v[4:5], s[56:57] offset:120')
            A('s_nop 1')
            A('v_mov_b32 v4, s15')
            A('global_store_dwordx2 v1, v[4:5], s[56:57] offset:112')
            A('s_nop 1')
            order = [0, 1, 2, 3, 4, 5, 8, 9, 10, 11, 6, 7]
            for i, k in enumerate(order):
                A(f'v_mov_b32 v4, s{S_ST + 2 * k}\n    v_mov_b32 v5, s{S_ST + 1 + 2 * k}')
                A(f'global_store_dwordx2 v1, v[4:5], s[56:57] offset:{8 * i}')
                A('s_nop 1')
            A('s_endpgm')
        o.append('.section .rodata,"a"')
        o.append('.p2align 6')
        o.append(f'.amdhsa_kernel {KNAME}')
        o.append('  .amdhsa_next_free_vgpr 256')
        o.append('  .amdhsa_next_free_sgpr 102')
        o.append('  .amdhsa_accum_offset 256')
        o.append('  .amdhsa_group_segment_fixed_size 0')
        o.append('  .amdhsa_kernarg_size 48')
        o.append('  .amdhsa_user_sgpr_count 2')
        o.append('  .amdhsa_user_sgpr_kernarg_segment_ptr 1')
        o.append('  .amdhsa_system_sgpr_workgroup_id_x 1')
        o.append('  .amdhsa_float_denorm_mode_32 3')
        o.append('.end_amdhsa_kernel')
        return '\n'.join(o) + '\n'

    def addr_prep(self):
        A, r = self.A, self.r
        kg, q3, l1, kc, rr, q7 = 'v44', 'v45', 'v46', 'v47', 'v48', 'v49'
        A(f'v_lshrrev_b32 {kg}, 4, v1')
        A(f'v_and_b32 {q3}, 3, v1')
        A(f'v_and_b32 {l1}, 1, v1')
        A(f'v_bfe_u32 {kc}, v1, 4, 1')
        A(f'v_bfe_u32 {rr}, v1, 2, 2')
        A(f'v_and_b32 {q7}, 0x70, v4')
        A('s_mul_i32 s45, s3, 3072')
        A(f's_add_u32 s45, s45, {L_P}')
        A('v_mul_u32_u24 v3, 48, v1')
        A(f'v_add_u32 {r("Pw")}, s45, v3')
        A(f'v_add_u32 {r("Qw")}, s45, v4')
        A('v_lshlrev_b32 v3, 4, v0')
        A(f'v_add_u32 {r("t16")}, {L_P}, v3')
        A('s_mul_i32 s49, s4, 98304')
        A('s_lshl_b32 s45, s5, 7')
        A('s_add_u32 s45, s45, s49')
        A('v_lshrrev_b32 v3, 3, v0')
        A(f'v_lshl_add_u32 v3, v3, 12, {q7}')
        A(f'v_add_u32 {r("pub")}, s45, v3')
        A('s_sub_u32 s51, s5, 8')
        A('s_lshl_b32 s45, s51, 12')
        A('s_add_u32 s45, s45, s49')
        A(f'v_add_u32 {r("in1")}, s45, v4')
        if self.p['tpos'] is not None:
            A('s_mul_i32 s45, s5, 3072')
            A('s_add_u32 s45, s45, s49')
            A('v_lshlrev_b32 v3, 6, v1')
            A('v_add_u32 v5, s45, v3')
            A('s_mul_i32 s45, s4, 24576')
            A('s_mul_i32 s43, s5, 768')
            A('s_add_u32 s45, s45, s43')
            A(f's_add_u32 s45, s45, {O_B - 48 * 64}')
            A('v_add_u32 v6, s45, v3')
            A('v_cmp_gt_u32 vcc, 48, v1')
            A('s_lshl_b32 s45, s4, 11')
            A('s_lshl_b32 s43, s5, 6')
            A('v_cndmask_b32 v5, v6, v5, vcc')
            A('s_add_u32 s45, s45, s43')
            A(f's_add_u32 s45, s45, {O_C}')
            A('v_mov_b32 v6, s45')
            A('v_cmp_gt_u32 vcc, 60, v1')
            A('s_nop 1')
            A(f'v_cndmask_b32 {r("tch")}, v6, v5, vcc')
        A('s_mul_i32 s45, s4, 3072')
        A('s_lshl_b32 s49, s51, 7')
        A('s_add_u32 s45, s45, s49')
        A(f's_add_u32 s45, s45, {O_B}')
        A('v_lshrrev_b32 v3, 3, v1')
        A('v_mul_u32_u24 v3, 24576, v3')
        A(f'v_add3_u32 {r("out2")}, v3, {q7}, s45')
        if self.p.get('direct'):
            A('s_mul_i32 s45, s4, 24576')
            A('s_lshl_b32 s49, s3, 9')
            A('s_add_u32 s45, s45, s49')
            A(f's_add_u32 s45, s45, {O_B}')
            A('v_lshrrev_b32 v3, 5, v1')
            A('v_mul_u32_u24 v3, 2560, v3')
            A(f'v_add3_u32 {r("in2")}, v3, v4, s45')
        else:
            A('s_lshl_b32 s45, s4, 3')
            A('s_add_u32 s45, s45, s3')
            A('s_mul_i32 s45, s45, 3072')
            A(f's_add_u32 s45, s45, {O_B}')
            A(f'v_add_u32 {r("in2")}, s45, v4')
        A('s_lshl_b32 s45, s4, 11')
        A(f's_add_u32 s45, s45, {O_C}')
        A(f'v_add_u32 {r("in3")}, s45, v4')
        A('s_lshl_b32 s49, s5, 2')
        A('s_add_u32 s49, s49, s3')
        A('s_lshl_b32 s49, s49, 6')
        A('s_add_u32 s45, s45, s49')
        A(f'v_lshl_add_u32 {r("out3")}, v1, 2, s45')
        if self.p.get('direct'):
            A('v_and_b32 v3, 0x19, v1')
            A('s_lshl_b32 s45, s3, 5')
            A('v_add_u32 v3, s45, v3')
        else:
            A('v_and_b32 v3, 0x1f9, v0')
        A('v_bfe_u32 v5, v0, 1, 1')
        A('v_lshl_add_u32 v3, v5, 2, v3')
        A('v_bfe_u32 v5, v0, 2, 1')
        A('v_lshl_add_u32 v3, v5, 1, v3')
        A('v_lshlrev_b32 v3, 2, v3')
        A(f'v_add_u32 {r("Gw")}, {L_G}, v3')
        A(f'v_mul_u32_u24 v3, {GOFF}, {l1}')
        A(f'v_lshl_add_u32 v3, {kg}, 4, v3')
        A(f'v_add_u32 {r("G")}, {L_G}, v3')
        A(f'v_mul_u32_u24 v3, 192, {l1}')
        A(f'v_add_u32 v3, {L_H}, v3')
        A(f'v_lshl_add_u32 {r("H")}, {kg}, 4, v3')
        A(f'v_lshl_add_u32 v3, {kc}, 4, v3')
        A('v_lshrrev_b32 v5, 5, v1')
        A('v_lshl_add_u32 v3, v5, 3, v3')
        A('s_lshl_b32 s45, s3, 5')
        A(f'v_add_u32 {r("Hw")}, s45, v3')
        A(f'v_add_u32 {r("Sw")}, {L_S}, v4')
        A('v_mul_u32_u24 v3, 24, v1')
        A(f'v_add_u32 {r("S")}, {L_S}, v3')
        A('s_and_b32 s45, s45, 32')
        A(f'v_xor_b32 {r("vW1")}, s45, v4')
        A('v_lshrrev_b32 v3, 3, v1')
        A('v_mul_u32_u24 v3, 768, v3')
        A('s_lshl_b32 s45, s5, 7')
        A(f'v_add3_u32 {r("vW2")}, v3, {q7}, s45')
        A(f'v_lshl_add_u32 v6, {kc}, 2, {rr}')
        A('v_lshl_add_u32 v7, v5, 4, v6')
        A(f'v_xor_b32 v3, s3, {kc}')
        A('v_lshlrev_b32 v3, 5, v3')
        A(f'v_lshl_add_u32 v3, {q3}, 3, v3')
        A('v_mul_u32_u24 v5, 192, v7')
        A(f'v_add_u32 {r("a1")}, v3, v5')
        A(f'v_add_u32 {r("a1b")}, {6 * 6144}, {r("a1")}')
        A('v_lshlrev_b32 v5, 7, v7')
        A(f'v_lshl_add_u32 v5, {q3}, 3, v5')
        A('s_and_b32 s45, s3, 3')
        A('s_lshl_b32 s45, s45, 5')
        A(f's_add_u32 s45, s45, {L_W2}')
        A(f'v_add_u32 {r("a2")}, s45, v5')


if __name__ == '__main__':
    kw = eval('dict(%s)' % (sys.argv[2] if len(sys.argv) > 2 else ''))
    open(sys.argv[1], 'w').write(Gen(**kw).build())
```

```python
import sys

KNAME = 'standalone__channel_attn_cbam__vision_kernel'
HEADER = """; Kernarg layout for this problem (48 bytes, ptrs only, base s[0:1]):
"""

XBYTES = 50331648
WBYTES = 73728
O_A = 0
O_B = 786432
O_C = O_B + 196608
WS_USE = 1 << 20
L_W1, L_W2 = 0, 73728
L_P = 90112
L_G, L_H, L_S = 114688, 116736, 117248
GOFF = 832
LDS_BYTES = 118784
S_X, S_W1, S_W2, S_OUT, S_DBG, S_WS = 16, 20, 24, 28, 32, 36
ACC, TMP, W1F, W2F, DATA = 8, 20, 44, 92, 104
S_U, S_ST = 60, 76
L_T = 116480
XOR3 = 'bitop3:0x96'


class Gen:
    def __init__(self, **kw):
        self.p = dict(D=8, lpol='nt', spol='sc1', stamps=False, npos=14, ipos=12, wpf=20, tpos=16, thr=(2, 0),
                      spin=1 << 20, dlyA=16, dlyC=10, nwg=0, wb=32, stag=(0, 0, 0), direct=True, B=32, R=32)
        self.p.update(kw)
        self.o = []
        self.vm = []
        self.nstamp = 0
        self.names = {}

    def A(self, s):
        self.o.append('    ' + s)

    def L(self, s):
        self.o.append(s + ':')

    def C(self, s):
        self.o.append('    ; ' + s)

    def srd(self, b):
        return f's[{b}:{b + 3}]'

    def issue(self, tag, text):
        self.A(text)
        self.vm.append(tag)

    def wait_for(self, tag):
        n = len(self.vm) - 1 - self.vm.index(tag)
        assert n <= 63
        self.A(f's_waitcnt vmcnt({n})')

    def stamp(self):
        self.npos = getattr(self, 'npos', -1) + 1
        amp = self.p.get('amp')
        if amp is not None and self.npos == 0:
            self.A('s_memrealtime s[90:91]')
            self.A('s_mov_b32 s88, 0')
            self.A('s_mov_b32 s92, 0')
        if amp is not None and self.npos == amp[0]:
            self.A('s_memrealtime s[88:89]')
        if amp is not None and self.npos == amp[1]:
            self.A('s_memrealtime s[92:93]')
        if self.p['stamps']:
            k = self.nstamp
            assert k < 13
            self.A(f's_memrealtime s[{S_ST + 2 * k}:{S_ST + 1 + 2 * k}]')
            self.nstamp += 1

    def d(self, j):
        return f'v[{DATA + 4 * j}:{DATA + 4 * j + 2}]'

    def r(self, name):
        if name not in self.names:
            self.names[name] = len(self.names)
            assert self.names[name] < 32
        return f'v{DATA + 4 * self.names[name] + 3}'

    def ws_load4(self, reg, addr, off):
        if isinstance(off, str):
            return f'buffer_load_dwordx4 v[{reg}:{reg + 3}], {addr}, {self.srd(S_WS)}, {off} offen sc1'
        o = f' offset:{off}' if off else ''
        return f'buffer_load_dwordx4 v[{reg}:{reg + 3}], {addr}, {self.srd(S_WS)}, 0 offen{o} sc1'

    def check_rec(self, base, n, pend):
        A = self.A
        t = 38
        for i in range(n):
            x = base + 4 * i
            A(f's_waitcnt vmcnt({pend + n - 1 - i})')
            A(f'v_bitop3_b32 v{t + i}, v{x}, v{x + 1}, v{x + 2} {XOR3}')
            A(f'v_bitop3_b32 v{t + i}, v{t + i}, v{x + 3}, {self.r("tag")} {XOR3}')
            if i == 2:
                A(f'v_or3_b32 v{t}, v{t}, v{t + 1}, v{t + 2}')
            if i == 3:
                A(f'v_or_b32 v{t}, v{t}, v{t + 3}')
        A(f'v_cmp_ne_u32 vcc, 0, v{t}')

    def check_scale(self, base, n, pend):
        A = self.A
        for i in range(2):
            A(f's_waitcnt vmcnt({pend + 1 - i})')
            for k in range(4):
                A(f'v_xor_b32 v{base + 4 * i + k}, s{6 + k}, v{base + 4 * i + k}')
            if i == 0:
                A(f'v_or3_b32 v38, v{base}, v{base + 1}, v{base + 2}')
            else:
                A(f'v_or3_b32 v38, v38, v{base + 3}, v{base + 4}')
                A(f'v_or3_b32 v39, v{base + 5}, v{base + 6}, v{base + 7}')
                A('v_or_b32 v38, v38, v39')
        A('v_cmp_ne_u16 vcc, 0, v38')

    def poll(self, lab, addr, offs, sets, check, success, stagger):
        A, L = self.A, self.L
        n = len(offs)

        def loads(base):
            for i, off in enumerate(offs):
                t = self.ws_load4(base + 4 * i, addr, off)
                pol = self.p.get('ppol', {}).get(lab[-1])
                A(t if pol is None else t.replace(' sc1', ' ' + pol))
        A(f's_mov_b32 s50, {self.p["spin"] - 1}')
        if not stagger:
            L(lab)
            loads(sets[0])
            check(sets[0], n, 0)
            A(f's_cbranch_vccz {lab}done')
            self.again(lab)
            L(lab + 'done')
            success(sets[0])
            return
        loads(sets[0])
        A(f's_sleep {stagger}')
        L(lab)
        loads(sets[1])
        check(sets[0], n, n)
        A(f's_cbranch_vccz {lab}x')
        loads(sets[0])
        check(sets[1], n, n)
        A(f's_cbranch_vccz {lab}y')
        self.again(lab)
        L(lab + 'y')
        k = self.nstamp
        success(sets[1])
        A(f's_branch {lab}done')
        L(lab + 'x')
        self.nstamp = k
        success(sets[0])
        L(lab + 'done')

    def again(self, lab):
        A = self.A
        if self.p['wb']:
            A(f's_and_b32 s51, s50, {self.p["wb"] - 1}')
            A(f's_cbranch_scc1 {lab}nowb')
            self.C('still waiting: push plain-stored records of this XCD out, a reader may sit behind another L2')
            A('buffer_wbl2 sc1')
            A('s_waitcnt vmcnt(0)')
            A('buffer_inv sc1')
            self.L(lab + 'nowb')
        A('s_sub_u32 s50, s50, 1')
        A(f's_cbranch_scc0 {lab}')

    def seal(self):
        self.A(f'v_bitop3_b32 v11, v8, v9, v10 {XOR3}')
        self.A(f'v_xor_b32 v11, v11, {self.r("tag")}')

    def key(self, x, t):
        self.A(f'v_pk_ashrrev_i16 v{t}, 15, v{x} op_sel_hi:[0,1]')
        self.A(f'v_bitop3_b32 v{x}, v{x}, v{t}, s49 bitop3:0x78')

    def stage_weights(self):
        A, r = self.A, self.r
        A('s_mov_b32 exec_hi, 0xffff')
        for i in range(12):
            A('s_mul_i32 s44, s3, 768' if i == 0 else 's_addk_i32 s44, 6144')
            A('s_mov_b32 m0, s44')
            A('s_nop 0')
            A(f'buffer_load_dwordx4 {r("vW1")}, {self.srd(S_W1)}, s44 offen lds')
        A('s_mov_b64 exec, -1')
        for k in range(2):
            if k == 0:
                A('s_lshl_b32 s45, s3, 10')
                A(f's_add_u32 m0, s45, {L_W2}')
                A('s_mul_i32 s44, s3, 6144')
            else:
                A('s_add_u32 m0, m0, 8192')
                A('s_add_u32 s44, s44, 49152')
            A(f'buffer_load_dwordx4 {r("vW2")}, {self.srd(S_W2)}, s44 offen lds')

    def stage_one(self, i):
        A, r = self.A, self.r
        if i < 12:
            A('s_mul_i32 s44, s3, 768' if i == 0 else 's_addk_i32 s44, 6144')
            A('s_mov_b32 m0, s44')
            A('s_mov_b32 exec_hi, 0xffff')
            self.issue(f'W{i}', f'buffer_load_dwordx4 {r("vW1")}, {self.srd(S_W1)}, s44 offen lds')
            A('s_mov_b32 exec_hi, -1')
        else:
            if i == 12:
                A('s_lshl_b32 s45, s3, 10')
                A(f's_add_u32 m0, s45, {L_W2}')
                A('s_mul_i32 s44, s3, 6144')
            else:
                A('s_add_u32 m0, m0, 8192')
                A('s_add_u32 s44, s44, 49152')
            self.issue(f'W{i}', f'buffer_load_dwordx4 {r("vW2")}, {self.srd(S_W2)}, s44 offen lds')

    def tags(self):
        A, r = self.A, self.r
        A('v_readfirstlane_b32 s10, v34')
        A('v_readfirstlane_b32 s11, v35')
        A('v_and_b32 v36, 1, v1')
        A('v_cmp_eq_u32 vcc, 1, v36')
        A('v_and_b32 v37, 7, v1')
        A('v_lshlrev_b32 v36, 4, v36')
        A('v_cndmask_b32 v38, v34, v35, vcc')
        A(f'v_add_u32 {r("tag")}, v38, v37')
        A('v_and_b32 v37, 2, v1')
        A('v_cmp_eq_u32 vcc, 2, v37')
        A('s_and_b32 s6, s10, 0xffff')
        A('s_lshr_b32 s7, s10, 16')
        A('v_cndmask_b32 v38, v34, v35, vcc')
        A(f'v_bfe_u32 {r("tag16")}, v38, v36, 16')
        A('s_and_b32 s8, s11, 0xffff')
        A('s_lshr_b32 s9, s11, 16')

    def build(self):
        p = self.p
        A, L, C, r = self.A, self.L, self.C, self.r
        D, B, R = p['D'], p['B'], p['R']
        assert B % 2 == 0 and R - B <= 16 and DATA + 4 * R <= 256
        NDYN = 256 - 8 * B
        o = self.o
        o.append(HEADER.rstrip())
        o.append(f'; @launch grid=(256,1,1) block=(512,1,1) lds={LDS_BYTES}')
        o.append('.amdgcn_target "amdgcn-amd-amdhsa--gfx950"')
        o.append('.text')
        o.append(f'.globl {KNAME}')
        o.append('.p2align 8')
        o.append(f'.type {KNAME},@function')
        L(KNAME)
        self.stamp()
        A(f's_load_dwordx2 s[{S_X}:{S_X + 1}], s[0:1], 0')
        A('v_mul_u32_u24 v2, 12, v0')
        G = p.get('G', 1)
        GS = p.get('Gs', G)
        def base(g):
            if g == 1:
                A('s_mul_i32 s40, s2, 196608')
            else:
                A(f's_and_b32 s40, s2, {g - 1}')
                A('s_mul_i32 s40, s40, -31')
                A('s_lshl_b32 s41, s2, 5')
                A('s_add_u32 s40, s40, s41')
                A('s_mul_i32 s40, s40, 6144')
                A(f's_mov_b32 s41, {g * 6144}')
        def adv(g):
            A('s_addk_i32 s40, 6144' if g == 1 else 's_add_u32 s40, s40, s41')
        base(G)
        A(f's_mov_b32 s{S_X + 2}, {XBYTES}')
        A(f's_mov_b32 s{S_X + 3}, 0x20000')
        A('s_waitcnt lgkmcnt(0)')

        def request():
            A('s_mov_b64 exec, 1')
            A(f'ds_add_rtn_u32 v42, {r("T")}, v43')
            A('s_mov_b64 exec, -1')

        def issue_x(j):
            if j < B:
                if j:
                    adv(G)
                so = 's40'
            else:
                so = f's{S_U + j - B}'
                A('s_waitcnt lgkmcnt(0)')
                A(f'v_readfirstlane_b32 s14, v42')
                if j + 1 < R:
                    request()
                A(f's_mul_i32 {so}, s14, 768')
                A(f's_add_u32 {so}, {so}, s41')
                A(f's_cmp_lt_u32 s14, {NDYN}')
                A(f's_cselect_b32 {so}, {so}, 2.0')
                A('s_addc_u32 s15, s15, 0')
            self.issue(f'X{j}', f'buffer_load_dwordx3 {self.d(j)}, v2, {self.srd(S_X)}, {so} offen {p["lpol"]}'.rstrip())
            if j == B - 1 and R > B:
                request()

        for j in range(D):
            issue_x(j)
            if j == 0:
                A(f's_load_dwordx2 s[{S_DBG}:{S_DBG + 1}], s[0:1], 32')
                A('s_memrealtime s[10:11]')
            if j == 1 and R > B:
                A(f'v_mov_b32 {r("T")}, {L_T}')
                A('v_mov_b32 v43, 0')
                A(f'ds_write_b32 {r("T")}, v43')
                A('s_waitcnt lgkmcnt(0)')
                A('s_barrier')
        self.stamp()
        A('s_cmp_ge_u32 s2, 256')
        A('s_cbranch_scc1 L_end')
        A('v_lshrrev_b32 v3, 6, v0')
        A('v_and_b32 v1, 63, v0')
        A(f's_mov_b32 s{S_DBG + 2}, 256')
        A('v_readfirstlane_b32 s3, v3')
        A(f's_mov_b32 s{S_DBG + 3}, 0x20000')
        A(f'v_mov_b32 {r("zero")}, 0')
        A('s_lshl_b32 s42, s2, 3')
        A('s_add_u32 s42, s42, s3')
        A(f's_cmp_lg_u32 s42, {p["nwg"] * 8}')
        A('s_waitcnt lgkmcnt(0)')
        A('s_cbranch_scc1 L_nononce')
        C('one wave of the grid publishes the nonce of this launch (both words non-zero)')
        A('s_or_b32 s10, s10, 1')
        A('s_or_b32 s11, s11, 0x80000000')
        A('v_mov_b32 v34, s10')
        A('v_mov_b32 v35, s11')
        A('s_mov_b64 exec, 1')
        A(f'buffer_store_dwordx2 v[34:35], {r("zero")}, {self.srd(S_DBG)}, 0 offen sc1')
        A('s_mov_b64 exec, -1')
        L('L_nononce')
        A(f's_load_dwordx2 s[{S_WS}:{S_WS + 1}], s[0:1], 40')
        A(f's_load_dwordx2 s[{S_W1}:{S_W1 + 1}], s[0:1], 8')
        A(f's_load_dwordx2 s[{S_W2}:{S_W2 + 1}], s[0:1], 16')
        A(f's_load_dwordx2 s[{S_OUT}:{S_OUT + 1}], s[0:1], 24')
        A(f's_mov_b32 s{S_WS + 2}, {WS_USE}')
        A(f's_mov_b32 s{S_WS + 3}, 0x20000')
        A(f's_mov_b32 s{S_W1 + 2}, {WBYTES}')
        A(f's_mov_b32 s{S_W1 + 3}, 0x20000')
        A(f's_mov_b32 s{S_W2 + 2}, {WBYTES}')
        A(f's_mov_b32 s{S_W2 + 3}, 0x20000')
        A(f's_mov_b32 s{S_OUT + 2}, {XBYTES}')
        A(f's_mov_b32 s{S_OUT + 3}, 0x20000')
        A('s_mov_b32 s48, 0xffff0000')
        A('s_mov_b32 s12, 0')
        if R > B:
            A('v_mov_b32 v43, 1')
            A('s_mov_b32 s15, 0')
            A('s_lshl_b32 s41, s2, 8')
            A('s_sub_u32 s41, s41, s3')
            A(f's_add_u32 s41, s41, {8 * B}')
            A('s_mul_i32 s41, s41, 768')
        A('s_getreg_b32 s13, hwreg(HW_REG_XCC_ID, 0, 1)')
        A('s_and_b32 s4, s2, 7')
        A('s_lshr_b32 s5, s2, 3')
        A('v_lshlrev_b32 v4, 4, v1')
        prep = []
        save, self.o = self.o, prep
        self.addr_prep()
        self.o = save
        o = self.o

        def unpack(j, t):
            for q in range(3):
                A(f'v_lshlrev_b32 v{t + 2 * q}, 16, v{DATA + 4 * j + q}')
                A(f'v_and_b32 v{t + 2 * q + 1}, s48, v{DATA + 4 * j + q}')

        def pair(j, extra=None):
            for jj in (j, j + 1):
                self.wait_for(f'X{jj}')
                if 'N' in self.vm and self.vm.index('N') < self.vm.index(f'X{jj}') and not getattr(self, 'tagged', 0):
                    self.tagged = 1
                    self.tags()
                t = TMP + 6 * (jj & 1)
                unpack(jj, t)
                if jj + D < R:
                    de = p.get('De')
                    if de:
                        A('s_cmp_lg_u32 s13, 0')
                        A(f's_cbranch_scc1 L_lt{jj}')
                        self.wait_for(f'X{jj + D - de}')
                        L(f'L_lt{jj}')
                    issue_x(jj + D)
                if extra:
                    extra(jj)
                for q in range(3):
                    a = ACC + 4 * q
                    if jj == 1:
                        A(f'v_pk_add_f32 v[{a}:{a + 1}], v[{TMP + 2 * q}:{TMP + 2 * q + 1}], v[{t + 2 * q}:{t + 2 * q + 1}]')
                    elif jj > 1:
                        A(f'v_pk_add_f32 v[{a}:{a + 1}], v[{a}:{a + 1}], v[{t + 2 * q}:{t + 2 * q + 1}]')
            for q in range(3):
                for h in range(2):
                    a = ACC + 4 * q + 2 + h
                    if j == 0:
                        A(f'v_max_f32 v{a}, v{TMP + 2 * q + h}, v{TMP + 6 + 2 * q + h}')
                    else:
                        A(f'v_max3_f32 v{a}, v{a}, v{TMP + 2 * q + h}, v{TMP + 6 + 2 * q + h}')

        nprep = p.get('prepsteps', 1)
        chunk = -(-len(prep) // nprep)
        for j in range(0, B, 2):
            if prep:
                o.extend(prep[:chunk])
                prep = prep[chunk:]
                if not prep:
                    A('s_mov_b32 s49, 0x7fff7fff')
                    A('s_waitcnt lgkmcnt(0)')
            if j == p['npos']:
                self.issue('N', f'buffer_load_dwordx2 v[34:35], {r("zero")}, {self.srd(S_DBG)}, 0 offen sc1')
            if j == p['ipos']:
                A('s_and_b32 s42, s3, 3')
                A('s_cmp_lg_u32 s42, 1')
                A('s_cbranch_scc1 L_noipf')
                C('waves 1, 5: read the kernel text behind the load loop once, to pull it into L2')
                A('s_getpc_b64 s[46:47]')
                L('L_pc')
                A('s_lshl_b32 s42, s3, 10')
                A('s_add_u32 s42, s42, L_acc - L_pc - 1024')
                A('v_lshl_add_u32 v6, v1, 6, s42')
                A('v_min_u32 v6, L_last - L_pc, v6')
                A('v_mov_b32 v7, s47')
                A('v_add_co_u32 v6, vcc, s46, v6')
                A('s_nop 1')
                A('v_addc_co_u32 v7, vcc, 0, v7, vcc')
                A(f'global_load_dword {r("junk")}, v[6:7], off')
                L('L_noipf')
            if j == p['wpf']:
                A('s_cmp_lg_u32 s3, 6')
                A('s_cbranch_scc1 L_nowpf')
                C('wave 6: touch 1/32 of the weights so that they are in L2 when they are staged')
                if p.get('wmall'):
                    A('s_mul_i32 s42, s2, 320')
                    A('v_lshlrev_b32 v6, 6, v1')
                    A('s_mov_b64 exec, 31')
                else:
                    A('s_mul_i32 s42, s5, 2304')
                    A('v_lshlrev_b32 v6, 6, v1')
                    A('s_mov_b32 exec_hi, 15')
                A(f'buffer_load_dword {r("junk")}, v6, {self.srd(S_W1)}, s42 offen')
                A(f'buffer_load_dword {r("junk")}, v6, {self.srd(S_W2)}, s42 offen')
                A('s_mov_b64 exec, -1')
                L('L_nowpf')
            if j == p['tpos']:
                A('s_cmp_lg_u32 s3, 4')
                A('s_cbranch_scc1 L_notch')
                C('wave 4: touch 1/32 of the lines this group will poll')
                if p.get('apos') is not None:
                    A('s_mov_b32 exec_lo, 0')
                    A('s_mov_b32 exec_hi, 0x1fff0000')
                A(f'buffer_load_dword {r("junk")}, {r("tch")}, {self.srd(S_WS)}, 0 offen sc1')
                A('s_mov_b64 exec, -1')
                L('L_notch')
            if j == p.get('apos'):
                assert self.tagged
                A('s_cmp_ge_u32 s3, 3')
                A('s_cbranch_scc1 L_noalloc')
                C('waves 0..2: own the lines of their later records early (check word deliberately wrong)')
                A('v_mov_b32 v50, 0')
                A('v_mov_b32 v51, 0')
                A('v_mov_b32 v52, 0')
                A(f'v_not_b32 v53, {r("tag")}')
                A(f'buffer_store_dwordx4 v[50:53], {r("pub")}, {self.srd(S_WS)}, 0 offen')
                L('L_noalloc')
            if p.get('wtail') and j == 32 - D:
                A('s_cmp_lt_u32 s5, 6')
                A('s_cbranch_scc1 L_wtail')
                self.vm_at_tail = list(self.vm)
            pair(j)
        for j in range(B, R):
            A(f's_cmp_le_u32 s15, {j - B}')
            A('s_cbranch_scc1 L_acc')
            self.wait_for(f'X{j}')
            unpack(j, TMP)
            if j + D < R:
                issue_x(j + D)
            for q in range(3):
                a = ACC + 4 * q
                A(f'v_pk_add_f32 v[{a}:{a + 1}], v[{a}:{a + 1}], v[{TMP + 2 * q}:{TMP + 2 * q + 1}]')
                A(f'v_max_f32 v{a + 2}, v{a + 2}, v{TMP + 2 * q}')
                A(f'v_max_f32 v{a + 3}, v{a + 3}, v{TMP + 2 * q + 1}')
        assert self.tagged
        L('L_acc')
        self.stamp()
        if p.get('p1only'):
            A('s_branch L_stdone')
        for q in range(3):
            A(f'ds_write_b128 {r("Pw")}, v[{ACC + 4 * q}:{ACC + 4 * q + 3}] offset:{16 * q}')
        A('s_min_u32 s42, s10, s11')
        A('s_cmp_eq_u32 s42, 0')
        A('s_cbranch_scc1 L_nonce')
        L('L_nonceback')
        A('s_waitcnt lgkmcnt(0)')
        A('s_barrier')
        A('s_cmp_ge_u32 s3, 3')
        A('s_cbranch_scc1 L_nopub')
        for w in range(8):
            A(f'ds_read_b128 v[{8 + 4 * w}:{11 + 4 * w}], {r("t16")} offset:{3072 * w}')
        for k in range(4):
            A(f's_waitcnt lgkmcnt({6 - 2 * k})')
            ra, rb = 8 + 8 * k, 12 + 8 * k
            if k == 0:
                A(f'v_max_f32 v10, v10, v{rb + 2}')
                A(f'v_max_f32 v11, v11, v{rb + 3}')
            else:
                A(f'v_max3_f32 v10, v10, v{ra + 2}, v{rb + 2}')
                A(f'v_max3_f32 v11, v11, v{ra + 3}, v{rb + 3}')
            A(f'v_pk_add_f32 v[{ra}:{ra + 1}], v[{ra}:{ra + 1}], v[{rb}:{rb + 1}]')
            if k == 1:
                A('v_pk_add_f32 v[8:9], v[8:9], v[16:17]')
            if k == 2:
                A('v_pk_add_f32 v[8:9], v[8:9], v[24:25]')
        A('v_cvt_pk_bf16_f32 v10, v10, v11')
        A('v_pk_add_f32 v[8:9], v[8:9], v[32:33]')
        self.key(10, 12)
        self.seal()
        pubA = f'buffer_store_dwordx4 v[8:11], {r("pub")}, {self.srd(S_WS)}, 0 offen'
        A(pubA if not p.get('force') else pubA + ' sc1')
        self.stamp()
        A('s_cmp_lt_u32 s5, 6')
        A('s_cbranch_scc1 L_mlp')
        if not p['wb']:
            A(f's_sleep {p["dlyA"]}')
            A(pubA + ' sc1')
        A('s_branch L_join')
        L('L_nopub')
        A('s_cmp_lt_u32 s5, 6')
        A('s_cbranch_scc1 L_mlp')
        A('s_cmp_lg_u32 s3, 4')
        A('s_cbranch_scc1 L_mlpback')
        A('s_cmp_lt_u32 s5, 8')
        A('s_cbranch_scc1 L_join')
        def red_in(x):
            self.stamp()
            A(f'v_pk_add_f32 v[8:9], v[{x}:{x + 1}], v[{x + 4}:{x + 5}]')
            A(f'v_pk_add_f32 v[16:17], v[{x + 8}:{x + 9}], v[{x + 12}:{x + 13}]')
            A(f'v_pk_max_i16 v10, v{x + 2}, v{x + 6}')
            A(f'v_pk_max_i16 v18, v{x + 10}, v{x + 14}')
        self.poll('L_poll1', r('in1'), [0, 1024, 2048, 3072], (44, 60), self.check_rec, red_in, p['stag'][0])
        A('v_pk_add_f32 v[8:9], v[8:9], v[16:17]')
        A('v_pk_max_i16 v10, v10, v18')
        A('s_nop 0')
        A('v_add_f32_dpp v8, v8, v8 row_ror:8 row_mask:0xf bank_mask:0xf')
        A('v_add_f32_dpp v9, v9, v9 row_ror:8 row_mask:0xf bank_mask:0xf')
        A('v_mov_b32_dpp v14, v10 row_ror:8 row_mask:0xf bank_mask:0xf')
        A('v_mov_b32 v12, v8')
        A('v_mov_b32 v13, v9')
        A('v_pk_max_i16 v10, v10, v14')
        A('v_permlane16_swap_b32 v8, v12')
        A('v_mov_b32 v14, v10')
        A('v_permlane16_swap_b32 v9, v13')
        A('v_add_f32 v8, v8, v12')
        A('v_permlane16_swap_b32 v10, v14')
        A('v_add_f32 v9, v9, v13')
        A('v_mov_b32 v12, v8')
        A('v_pk_max_i16 v10, v10, v14')
        A('v_mov_b32 v13, v9')
        A('v_permlane32_swap_b32 v8, v12')
        A('v_mov_b32 v14, v10')
        A('v_permlane32_swap_b32 v9, v13')
        A('v_add_f32 v8, v8, v12')
        A('v_permlane32_swap_b32 v10, v14')
        A('v_add_f32 v9, v9, v13')
        A('v_pk_max_i16 v10, v10, v14')
        self.seal()
        A(f'buffer_store_dwordx4 v[8:11], {r("out2")}, {self.srd(S_WS)}, 0 offen sc1')
        self.stamp()
        L('L_mlpback')
        A('s_cmp_lg_u32 s3, 7')
        A('s_cbranch_scc1 L_join')
        A('s_mov_b32 exec_hi, 0xffff')
        def s_out(x):
            A(f'ds_write_b128 {r("Sw")}, v[{x}:{x + 3}]')
            A(f'ds_write_b128 {r("Sw")}, v[{x + 4}:{x + 7}] offset:768')
        self.poll('L_poll3', r('in3'), [0, 768], (76, 84), self.check_scale, s_out, p['stag'][2])
        A('s_mov_b64 exec, -1')
        A('s_waitcnt lgkmcnt(0)')
        L('L_join')
        if p.get('thr'):
            A('s_getreg_b32 vcc_lo, hwreg(HW_REG_XCC_ID, 0, 1)')
            A('s_mov_b32 vcc_hi, 0')
        base(G)
        A('s_barrier')
        for q in range(3):
            A(f'ds_read_b64 v[{32 + 2 * q}:{33 + 2 * q}], {r("S")} offset:{8 * q}')
        self.stamp()
        pubC = f'buffer_store_dword v40, {r("out3")}, {self.srd(S_WS)}, 0 offen'
        for j in range(R):
            if j >= B:
                A(f's_cmp_le_u32 s15, {j - B}')
                A('s_cbranch_scc1 L_stdone')
            if p['wb'] and j == p.get('c2pos', 8):
                C('the waves that published a part of the scale repeat that store write-through')
                A('s_cmp_eq_u32 s12, 0')
                A('s_cbranch_scc1 L_noc2')
                A('s_mov_b64 exec, 0xffff')
                A(pubC + ' sc1')
                A('s_mov_b64 exec, -1')
                L('L_noc2')
            t = 8 + 6 * (j & 3)
            unpack(j, t)
            if j == 0:
                A('s_waitcnt lgkmcnt(0)')
            for q in range(3):
                A(f'v_pk_mul_f32 v[{t + 2 * q}:{t + 2 * q + 1}], v[{t + 2 * q}:{t + 2 * q + 1}], v[{32 + 2 * q}:{33 + 2 * q}]')
            for q in range(3):
                A(f'v_cvt_pk_bf16_f32 v{DATA + 4 * j + q}, v{t + 2 * q}, v{t + 2 * q + 1}')
            if 0 < j < B:
                adv(G)
            so = 's40' if j < B else f's{S_U + j - B}'
            ne, no = p.get('thr', (0, 0))
            if no and j >= no:
                A(f's_waitcnt vmcnt({no - 1})')
            if isinstance(ne, tuple):
                ne = ne[j % len(ne)]
            if ne and ne != no and j >= ne:
                A(f's_cbranch_vccnz L_thr{j}')
                A(f's_waitcnt vmcnt({ne - 1})')
                L(f'L_thr{j}')
            A(f'buffer_store_dwordx3 {self.d(j)}, v2, {self.srd(S_OUT)}, {so} offen {p["spol"] if p.get("pfirst", 0) <= j < R - p.get("plast", 0) else p.get("spol2", "")}'.rstrip())
        L('L_stdone')
        if p.get('amp') is not None and not p['stamps']:
            A('s_waitcnt vmcnt(0)')
            self.stamp()
            A('s_waitcnt lgkmcnt(0)')
            A('s_sub_u32 s94, s92, s88')
            if len(p['amp']) > 3:
                A('s_min_u32 s94, s94, 500')
                A('s_sub_u32 s94, 500, s94')
            A('s_cmp_eq_u32 s92, 0')
            A('s_cselect_b32 s94, 0, s94')
            A('s_cmp_eq_u32 s88, 0')
            A('s_cselect_b32 s94, 0, s94')
            A('s_min_u32 s94, s94, 3000')
            A(f's_lshl_b32 s94, s94, {p["amp"][2]}')
            A('s_add_u32 s94, s94, 3000')
            L('L_pad')
            A('s_sleep 2')
            A('s_memrealtime s[92:93]')
            A('s_waitcnt lgkmcnt(0)')
            A('s_sub_u32 s95, s92, s90')
            A('s_cmp_lt_u32 s95, s94')
            A('s_cbranch_scc1 L_pad')
        if p['stamps']:
            A('s_waitcnt vmcnt(0)')
            self.stamp()
            A('s_branch L_stamps')
        L('L_end')
        A('s_endpgm')

        L('L_nonce')
        C('the nonce was not there yet when this wave looked: wait for it')
        A(f's_mov_b32 s50, {p["spin"]}')
        L('L_nonceloop')
        A(f'buffer_load_dwordx2 v[34:35], {r("zero")}, {self.srd(S_DBG)}, 0 offen sc1')
        A('s_waitcnt vmcnt(0)')
        self.tags()
        A('s_min_u32 s42, s10, s11')
        A('s_cmp_lg_u32 s42, 0')
        A('s_cbranch_scc1 L_nonceback')
        A('s_sleep 4')
        A('s_sub_u32 s50, s50, 1')
        A('s_cbranch_scc0 L_nonceloop')
        A('s_branch L_nonceback')

        if p.get('wtail'):
            L('L_wtail')
            C('MLP workgroups: last rows, with the weight staging issued while the row loads drain')
            self.vm = self.vm_at_tail
            todo = list(range(p['wtail'][0]))
            def extra(jj):
                for _ in range(p['wtail'][1]):
                    if todo:
                        self.stage_one(todo.pop(0))
            for j in range(32 - D, 32, 2):
                pair(j, extra)
            assert not todo
            A('s_branch L_acc')
        L('L_mlp')
        C('MLP workgroups (ranks 0..5 of every group)')
        first = p['wtail'][0] if p.get('wtail') else 0
        if first < 14:
            A('s_barrier')
            for i in range(first, 14):
                self.stage_one(i)
        A('s_waitcnt vmcnt(0)')
        A('s_barrier')
        if not p['wb']:
            A('s_cmp_ge_u32 s3, 3')
            A('s_cbranch_scc1 L_nopub2')
            A(pubA + ' sc1')
            L('L_nopub2')
        A('s_cmp_ge_u32 s3, 6')
        A('s_cbranch_scc1 L_notr1')
        for b in range(12):
            for h in range(2):
                base = r('a1') if b < 6 else r('a1b')
                x = W1F + 4 * b + 2 * h
                A(f'ds_read_b64_tr_b16 v[{x}:{x + 1}], {base} offset:{(b % 6) * 6144 + h * 1536}')
        L('L_notr1')
        for b in range(3):
            for h in range(2):
                x = W2F + 4 * b + 2 * h
                A(f'ds_read_b64_tr_b16 v[{x}:{x + 1}], {r("a2")} offset:{(32 * b + 8 * h) * 128}')
        self.stamp()
        if p.get('direct'):
            A('s_cmp_ge_u32 s3, 6')
            A('s_cbranch_scc1 L_nog')
            A('s_movk_i32 s42, 6144')
            A('s_movk_i32 s43, 12288')
            A('s_movk_i32 s45, 18432')
            def g_in(x):
                self.stamp()
                A(f'v_pk_add_f32 v[8:9], v[{x}:{x + 1}], v[{x + 4}:{x + 5}]')
                A(f'v_pk_add_f32 v[16:17], v[{x + 8}:{x + 9}], v[{x + 12}:{x + 13}]')
                A(f'v_pk_max_i16 v10, v{x + 2}, v{x + 6}')
                A(f'v_pk_max_i16 v18, v{x + 10}, v{x + 14}')
            self.poll('L_poll2', r('in2'), ['0', 's42', 's43', 's45'], (20, 20), self.check_rec, g_in, 0)
            A('v_pk_add_f32 v[8:9], v[8:9], v[16:17]')
            A('v_pk_max_i16 v10, v10, v18')
            A('v_mov_b32 v12, v8')
            A('v_mov_b32 v13, v9')
            A('v_mov_b32 v14, v10')
            A('v_permlane32_swap_b32 v8, v12')
            A('v_permlane32_swap_b32 v9, v13')
            A('v_permlane32_swap_b32 v10, v14')
            A('v_pk_add_f32 v[8:9], v[8:9], v[12:13]')
            A('v_pk_max_i16 v10, v10, v14')
            A('v_mul_f32 v8, 0x37800000, v8')
            A('v_mul_f32 v9, 0x37800000, v9')
            self.key(10, 12)
            A('v_cvt_pk_bf16_f32 v8, v8, v9')
            A('s_mov_b32 exec_hi, 0')
            A(f'ds_write2_b32 {r("Gw")}, v8, v10 offset0:0 offset1:{GOFF // 4}')
            A('s_mov_b32 exec_hi, -1')
            A('s_waitcnt lgkmcnt(0)')
        else:
            def q_out(x):
                self.stamp()
                for q in range(3):
                    A(f'ds_write_b128 {r("Qw")}, v[{x + 4 * q}:{x + 3 + 4 * q}] offset:{1024 * q}')
            self.poll('L_poll2', r('in2'), [0, 1024, 2048], (104, 116), self.check_rec, q_out, p['stag'][1])
            A('s_waitcnt lgkmcnt(0)')
            A('s_barrier')
            if p.get('fine') and p['stamps']:
                A('s_memrealtime s[68:69]')
            A('s_cmp_ge_u32 s3, 3')
            A('s_cbranch_scc1 L_nog')
            for w in range(8):
                A(f'ds_read_b128 v[{8 + 4 * w}:{11 + 4 * w}], {r("t16")} offset:{3072 * w}')
            for k in range(4):
                A(f's_waitcnt lgkmcnt({6 - 2 * k})')
                ra, rb = 8 + 8 * k, 12 + 8 * k
                A(f'v_pk_add_f32 v[{ra}:{ra + 1}], v[{ra}:{ra + 1}], v[{rb}:{rb + 1}]')
                A(f'v_pk_max_i16 v{ra + 2}, v{ra + 2}, v{rb + 2}')
                if k:
                    A(f'v_pk_add_f32 v[8:9], v[8:9], v[{ra}:{ra + 1}]')
                    A(f'v_pk_max_i16 v10, v10, v{ra + 2}')
            A('v_mul_f32 v8, 0x37800000, v8')
            A('v_mul_f32 v9, 0x37800000, v9')
            self.key(10, 12)
            A('v_cvt_pk_bf16_f32 v8, v8, v9')
            A(f'ds_write2_b32 {r("Gw")}, v8, v10 offset0:0 offset1:{GOFF // 4}')
            A('s_waitcnt lgkmcnt(0)')
        L('L_nog')
        A('s_barrier')
        self.stamp()
        A('s_cmp_ge_u32 s3, 6')
        A('s_cbranch_scc1 L_nol1')
        NB = 8
        for b in range(NB):
            A(f'ds_read_b128 v[{8 + 4 * b}:{11 + 4 * b}], {r("G")} offset:{64 * b}')
        issued = NB
        for b in range(12):
            A(f's_waitcnt lgkmcnt({issued - b - 1})')
            g = 8 + 4 * (b % NB)
            c = '0' if b == 0 else 'v[40:43]'
            A(f'v_mfma_f32_16x16x32_bf16 v[40:43], v[{W1F + 4 * b}:{W1F + 4 * b + 3}], v[{g}:{g + 3}], {c}')
            if issued < 12:
                A(f'ds_read_b128 v[{g}:{g + 3}], {r("G")} offset:{64 * issued}')
                issued += 1
        A('s_nop 7')
        if p.get('fine') and p['stamps']:
            A('v_mov_b32 v7, v43')
            A('s_memrealtime s[62:63]')
        for k in range(4):
            A(f'v_mul_f32 v{8 + k}, 0, v{40 + k}')
            A(f'v_cmp_lt_f32 s[{52 + 2 * k}:{53 + 2 * k}], 0, v{40 + k}')
        A('s_mov_b32 exec_lo, 0x00030003')
        A('s_mov_b32 exec_hi, 0x00030003')
        for k in range(4):
            A(f'v_cndmask_b32 v{8 + k}, v{8 + k}, v{40 + k}, s[{52 + 2 * k}:{53 + 2 * k}]')
        A('v_cvt_pk_bf16_f32 v12, v8, v9')
        A('v_cvt_pk_bf16_f32 v13, v10, v11')
        A(f'ds_write_b64 {r("Hw")}, v[12:13]')
        A('s_mov_b64 exec, -1')
        A('s_waitcnt lgkmcnt(0)')
        L('L_nol1')
        A('s_barrier')
        if p.get('fine') and p['stamps']:
            A('s_memrealtime s[66:67]')
        A('s_cmp_ge_u32 s3, 4')
        A('s_cbranch_scc1 L_mlpback')
        for b in range(3):
            A(f'ds_read_b128 v[{8 + 4 * b}:{11 + 4 * b}], {r("H")} offset:{64 * b}')
        for b in range(3):
            A(f's_waitcnt lgkmcnt({2 - b})')
            c = '0' if b == 0 else 'v[20:23]'
            wf = W2F + 4 * b
            A(f'v_mfma_f32_16x16x32_bf16 v[20:23], v[{8 + 4 * b}:{11 + 4 * b}], v[{wf}:{wf + 3}], {c}')
        A('s_nop 7')
        if p.get('fine') and p['stamps']:
            A('v_mov_b32 v7, v23')
            A('s_memrealtime s[70:71]')
        A('v_cvt_pk_bf16_f32 v8, v20, v21')
        A('v_lshlrev_b32 v9, 16, v8')
        A('v_and_b32 v8, s48, v8')
        A('v_add_f32 v8, v8, v9')
        A('v_cvt_pk_bf16_f32 v8, v8, v8')
        A('v_and_b32 v8, s48, v8')
        A('v_mul_f32 v8, 0xbfb8aa3b, v8')
        A('v_exp_f32 v8, v8')
        A('s_mov_b64 exec, 0xffff')
        A('v_add_f32 v8, 1.0, v8')
        A('v_rcp_f32 v8, v8')
        A('s_nop 0')
        A('v_cvt_pk_bf16_f32 v8, v8, v8')
        A(f'v_and_or_b32 v40, v8, s48, {r("tag16")}')
        A(pubC if not p.get('force') else pubC + ' sc1')
        A('s_mov_b32 s12, 1')
        self.stamp()
        if not p['wb']:
            A(f's_sleep {p["dlyC"]}')
            A(pubC + ' sc1')
        A('s_mov_b64 exec, -1')
        L('L_last')
        A('s_branch L_join')

        if p['stamps']:
            L('L_stamps')
            A('s_waitcnt lgkmcnt(0)')
            A(f's_add_u32 s56, s{S_WS}, 0x8000000')
            A(f's_addc_u32 s57, s{S_WS + 1}, 0')
            A('s_lshl_b32 s58, s2, 4\n    s_add_u32 s58, s58, s3\n    s_lshl_b32 s58, s58, 7')
            A('s_mov_b64 exec, 1')
            A('v_mov_b32 v1, s58')
            A('s_getreg_b32 s59, hwreg(HW_REG_XCC_ID, 0, 4)')
            A('v_mov_b32 v4, s59\n    v_mov_b32 v5, 0')
            A('global_store_dwordx2 v1, v[4:5], s[56:57] offset:120')
            A('s_nop 1')
            A('v_mov_b32 v4, s15')
            A('global_store_dwordx2 v1, v[4:5], s[56:57] offset:112')
            A('s_nop 1')
            order = [0, 1, 2, 3, 4, 5, 8, 9, 10, 11, 6, 7]
            for i, k in enumerate(order):
                A(f'v_mov_b32 v4, s{S_ST + 2 * k}\n    v_mov_b32 v5, s{S_ST + 1 + 2 * k}')
                A(f'global_store_dwordx2 v1, v[4:5], s[56:57] offset:{8 * i}')
                A('s_nop 1')
            A('s_endpgm')
        o.append('.section .rodata,"a"')
        o.append('.p2align 6')
        o.append(f'.amdhsa_kernel {KNAME}')
        o.append('  .amdhsa_next_free_vgpr 256')
        o.append('  .amdhsa_next_free_sgpr 102')
        o.append('  .amdhsa_accum_offset 256')
        o.append('  .amdhsa_group_segment_fixed_size 0')
        o.append('  .amdhsa_kernarg_size 48')
        o.append('  .amdhsa_user_sgpr_count 2')
        o.append('  .amdhsa_user_sgpr_kernarg_segment_ptr 1')
        o.append('  .amdhsa_system_sgpr_workgroup_id_x 1')
        o.append('  .amdhsa_float_denorm_mode_32 3')
        o.append('.end_amdhsa_kernel')
        return '\n'.join(o) + '\n'

    def addr_prep(self):
        A, r = self.A, self.r
        kg, q3, l1, kc, rr, q7 = 'v44', 'v45', 'v46', 'v47', 'v48', 'v49'
        A(f'v_lshrrev_b32 {kg}, 4, v1')
        A(f'v_and_b32 {q3}, 3, v1')
        A(f'v_and_b32 {l1}, 1, v1')
        A(f'v_bfe_u32 {kc}, v1, 4, 1')
        A(f'v_bfe_u32 {rr}, v1, 2, 2')
        A(f'v_and_b32 {q7}, 0x70, v4')
        A('s_mul_i32 s45, s3, 3072')
        A(f's_add_u32 s45, s45, {L_P}')
        A('v_mul_u32_u24 v3, 48, v1')
        A(f'v_add_u32 {r("Pw")}, s45, v3')
        A(f'v_add_u32 {r("Qw")}, s45, v4')
        A('v_lshlrev_b32 v3, 4, v0')
        A(f'v_add_u32 {r("t16")}, {L_P}, v3')
        A('s_mul_i32 s49, s4, 98304')
        A('s_lshl_b32 s45, s5, 7')
        A('s_add_u32 s45, s45, s49')
        A('v_lshrrev_b32 v3, 3, v0')
        A(f'v_lshl_add_u32 v3, v3, 12, {q7}')
        A(f'v_add_u32 {r("pub")}, s45, v3')
        A('s_sub_u32 s51, s5, 8')
        A('s_lshl_b32 s45, s51, 12')
        A('s_add_u32 s45, s45, s49')
        A(f'v_add_u32 {r("in1")}, s45, v4')
        if self.p['tpos'] is not None:
            A('s_mul_i32 s45, s5, 3072')
            A('s_add_u32 s45, s45, s49')
            A('v_lshlrev_b32 v3, 6, v1')
            A('v_add_u32 v5, s45, v3')
            A('s_mul_i32 s45, s4, 24576')
            A('s_mul_i32 s43, s5, 768')
            A('s_add_u32 s45, s45, s43')
            A(f's_add_u32 s45, s45, {O_B - 48 * 64}')
            A('v_add_u32 v6, s45, v3')
            A('v_cmp_gt_u32 vcc, 48, v1')
            A('s_lshl_b32 s45, s4, 11')
            A('s_lshl_b32 s43, s5, 6')
            A('v_cndmask_b32 v5, v6, v5, vcc')
            A('s_add_u32 s45, s45, s43')
            A(f's_add_u32 s45, s45, {O_C}')
            A('v_mov_b32 v6, s45')
            A('v_cmp_gt_u32 vcc, 60, v1')
            A('s_nop 1')
            A(f'v_cndmask_b32 {r("tch")}, v6, v5, vcc')
        A('s_mul_i32 s45, s4, 3072')
        A('s_lshl_b32 s49, s51, 7')
        A('s_add_u32 s45, s45, s49')
        A(f's_add_u32 s45, s45, {O_B}')
        A('v_lshrrev_b32 v3, 3, v1')
        A('v_mul_u32_u24 v3, 24576, v3')
        A(f'v_add3_u32 {r("out2")}, v3, {q7}, s45')
        if self.p.get('direct'):
            A('s_mul_i32 s45, s4, 24576')
            A('s_lshl_b32 s49, s3, 9')
            A('s_add_u32 s45, s45, s49')
            A(f's_add_u32 s45, s45, {O_B}')
            A('v_lshrrev_b32 v3, 5, v1')
            A('v_mul_u32_u24 v3, 2560, v3')
            A(f'v_add3_u32 {r("in2")}, v3, v4, s45')
        else:
            A('s_lshl_b32 s45, s4, 3')
            A('s_add_u32 s45, s45, s3')
            A('s_mul_i32 s45, s45, 3072')
            A(f's_add_u32 s45, s45, {O_B}')
            A(f'v_add_u32 {r("in2")}, s45, v4')
        A('s_lshl_b32 s45, s4, 11')
        A(f's_add_u32 s45, s45, {O_C}')
        A(f'v_add_u32 {r("in3")}, s45, v4')
        A('s_lshl_b32 s49, s5, 2')
        A('s_add_u32 s49, s49, s3')
        A('s_lshl_b32 s49, s49, 6')
        A('s_add_u32 s45, s45, s49')
        A(f'v_lshl_add_u32 {r("out3")}, v1, 2, s45')
        if self.p.get('direct'):
            A('v_and_b32 v3, 0x19, v1')
            A('s_lshl_b32 s45, s3, 5')
            A('v_add_u32 v3, s45, v3')
        else:
            A('v_and_b32 v3, 0x1f9, v0')
        A('v_bfe_u32 v5, v0, 1, 1')
        A('v_lshl_add_u32 v3, v5, 2, v3')
        A('v_bfe_u32 v5, v0, 2, 1')
        A('v_lshl_add_u32 v3, v5, 1, v3')
        A('v_lshlrev_b32 v3, 2, v3')
        A(f'v_add_u32 {r("Gw")}, {L_G}, v3')
        A(f'v_mul_u32_u24 v3, {GOFF}, {l1}')
        A(f'v_lshl_add_u32 v3, {kg}, 4, v3')
        A(f'v_add_u32 {r("G")}, {L_G}, v3')
        A(f'v_mul_u32_u24 v3, 192, {l1}')
        A(f'v_add_u32 v3, {L_H}, v3')
        A(f'v_lshl_add_u32 {r("H")}, {kg}, 4, v3')
        A(f'v_lshl_add_u32 v3, {kc}, 4, v3')
        A('v_lshrrev_b32 v5, 5, v1')
        A('v_lshl_add_u32 v3, v5, 3, v3')
        A('s_lshl_b32 s45, s3, 5')
        A(f'v_add_u32 {r("Hw")}, s45, v3')
        A(f'v_add_u32 {r("Sw")}, {L_S}, v4')
        A('v_mul_u32_u24 v3, 24, v1')
        A(f'v_add_u32 {r("S")}, {L_S}, v3')
        A('s_and_b32 s45, s45, 32')
        A(f'v_xor_b32 {r("vW1")}, s45, v4')
        A('v_lshrrev_b32 v3, 3, v1')
        A('v_mul_u32_u24 v3, 768, v3')
        A('s_lshl_b32 s45, s5, 7')
        A(f'v_add3_u32 {r("vW2")}, v3, {q7}, s45')
        A(f'v_lshl_add_u32 v6, {kc}, 2, {rr}')
        A('v_lshl_add_u32 v7, v5, 4, v6')
        A(f'v_xor_b32 v3, s3, {kc}')
        A('v_lshlrev_b32 v3, 5, v3')
        A(f'v_lshl_add_u32 v3, {q3}, 3, v3')
        A('v_mul_u32_u24 v5, 192, v7')
        A(f'v_add_u32 {r("a1")}, v3, v5')
        A(f'v_add_u32 {r("a1b")}, {6 * 6144}, {r("a1")}')
        A('v_lshlrev_b32 v5, 7, v7')
        A(f'v_lshl_add_u32 v5, {q3}, 3, v5')
        A('s_and_b32 s45, s3, 3')
        A('s_lshl_b32 s45, s45, 5')
        A(f's_add_u32 s45, s45, {L_W2}')
        A(f'v_add_u32 {r("a2")}, s45, v5')


if __name__ == '__main__':
    kw = eval('dict(%s)' % (sys.argv[2] if len(sys.argv) > 2 else ''))
    open(sys.argv[1], 'w').write(Gen(**kw).build())
```

```python
import sys

KNAME = 'standalone__channel_attn_cbam__vision_kernel'
HEADER = """; Kernarg layout for this problem (48 bytes, ptrs only, base s[0:1]):
"""

XBYTES = 50331648
WBYTES = 73728
O_A = 0
O_B = 786432
O_C = O_B + 196608
WS_USE = 1 << 20
L_W1, L_W2 = 0, 73728
L_P = 90112
L_G, L_H, L_S = 114688, 116736, 117248
GOFF = 832
LDS_BYTES = 118784
S_X, S_W1, S_W2, S_OUT, S_DBG, S_WS = 16, 20, 24, 28, 32, 36
ACC, TMP, W1F, W2F, DATA = 8, 20, 44, 92, 104
S_U, S_ST = 60, 76
L_T = 116480
XOR3 = 'bitop3:0x96'


class Gen:
    def __init__(self, **kw):
        self.p = dict(D=8, lpol='nt', spol='sc1', stamps=False, npos=14, ipos=12, wpf=20, tpos=16, thr=(2, 0),
                      spin=1 << 20, dlyA=16, dlyC=10, nwg=0, wb=32, stag=(0, 0, 0), direct=True, B=32, R=32)
        self.p.update(kw)
        self.o = []
        self.vm = []
        self.nstamp = 0
        self.names = {}

    def A(self, s):
        self.o.append('    ' + s)

    def L(self, s):
        self.o.append(s + ':')

    def C(self, s):
        self.o.append('    ; ' + s)

    def srd(self, b):
        return f's[{b}:{b + 3}]'

    def issue(self, tag, text):
        self.A(text)
        self.vm.append(tag)

    def wait_for(self, tag):
        n = len(self.vm) - 1 - self.vm.index(tag)
        assert n <= 63
        self.A(f's_waitcnt vmcnt({n})')

    def stamp(self):
        self.npos = getattr(self, 'npos', -1) + 1
        amp = self.p.get('amp')
        if amp is not None and self.npos == 0:
            self.A('s_memrealtime s[90:91]')
            self.A('s_mov_b32 s88, 0')
            self.A('s_mov_b32 s92, 0')
        if amp is not None and self.npos == amp[0]:
            self.A('s_memrealtime s[88:89]')
        if amp is not None and self.npos == amp[1]:
            self.A('s_memrealtime s[92:93]')
        if self.p['stamps']:
            k = self.nstamp
            assert k < 13
            self.A(f's_memrealtime s[{S_ST + 2 * k}:{S_ST + 1 + 2 * k}]')
            self.nstamp += 1

    def d(self, j):
        return f'v[{DATA + 4 * j}:{DATA + 4 * j + 2}]'

    def r(self, name):
        if name not in self.names:
            self.names[name] = len(self.names)
            assert self.names[name] < 32
        return f'v{DATA + 4 * self.names[name] + 3}'

    def ws_load4(self, reg, addr, off):
        if isinstance(off, str):
            return f'buffer_load_dwordx4 v[{reg}:{reg + 3}], {addr}, {self.srd(S_WS)}, {off} offen sc1'
        o = f' offset:{off}' if off else ''
        return f'buffer_load_dwordx4 v[{reg}:{reg + 3}], {addr}, {self.srd(S_WS)}, 0 offen{o} sc1'

    def check_rec(self, base, n, pend):
        A = self.A
        t = 38
        for i in range(n):
            x = base + 4 * i
            A(f's_waitcnt vmcnt({pend + n - 1 - i})')
            A(f'v_bitop3_b32 v{t + i}, v{x}, v{x + 1}, v{x + 2} {XOR3}')
            A(f'v_bitop3_b32 v{t + i}, v{t + i}, v{x + 3}, {self.r("tag")} {XOR3}')
            if i == 2:
                A(f'v_or3_b32 v{t}, v{t}, v{t + 1}, v{t + 2}')
            if i == 3:
                A(f'v_or_b32 v{t}, v{t}, v{t + 3}')
        A(f'v_cmp_ne_u32 vcc, 0, v{t}')

    def check_scale(self, base, n, pend):
        A = self.A
        for i in range(2):
            A(f's_waitcnt vmcnt({pend + 1 - i})')
            for k in range(4):
                A(f'v_xor_b32 v{base + 4 * i + k}, s{6 + k}, v{base + 4 * i + k}')
            if i == 0:
                A(f'v_or3_b32 v38, v{base}, v{base + 1}, v{base + 2}')
            else:
                A(f'v_or3_b32 v38, v38, v{base + 3}, v{base + 4}')
                A(f'v_or3_b32 v39, v{base + 5}, v{base + 6}, v{base + 7}')
                A('v_or_b32 v38, v38, v39')
        A('v_cmp_ne_u16 vcc, 0, v38')

    def poll(self, lab, addr, offs, sets, check, success, stagger):
        A, L = self.A, self.L
        n = len(offs)

        def loads(base):
            for i, off in enumerate(offs):
                t = self.ws_load4(base + 4 * i, addr, off)
                pol = self.p.get('ppol', {}).get(lab[-1])
                A(t if pol is None else t.replace(' sc1', ' ' + pol))
        A(f's_mov_b32 s50, {self.p["spin"] - 1}')
        if not stagger:
            L(lab)
            loads(sets[0])
            check(sets[0], n, 0)
            A(f's_cbranch_vccz {lab}done')
            self.again(lab)
            L(lab + 'done')
            success(sets[0])
            return
        loads(sets[0])
        A(f's_sleep {stagger}')
        L(lab)
        loads(sets[1])
        check(sets[0], n, n)
        A(f's_cbranch_vccz {lab}x')
        loads(sets[0])
        check(sets[1], n, n)
        A(f's_cbranch_vccz {lab}y')
        self.again(lab)
        L(lab + 'y')
        k = self.nstamp
        success(sets[1])
        A(f's_branch {lab}done')
        L(lab + 'x')
        self.nstamp = k
        success(sets[0])
        L(lab + 'done')

    def again(self, lab):
        A = self.A
        if self.p['wb']:
            A(f's_and_b32 s51, s50, {self.p["wb"] - 1}')
            A(f's_cbranch_scc1 {lab}nowb')
            self.C('still waiting: push plain-stored records of this XCD out, a reader may sit behind another L2')
            A('buffer_wbl2 sc1')
            A('s_waitcnt vmcnt(0)')
            A('buffer_inv sc1')
            self.L(lab + 'nowb')
        A('s_sub_u32 s50, s50, 1')
        A(f's_cbranch_scc0 {lab}')

    def seal(self):
        self.A(f'v_bitop3_b32 v11, v8, v9, v10 {XOR3}')
        self.A(f'v_xor_b32 v11, v11, {self.r("tag")}')

    def key(self, x, t):
        self.A(f'v_pk_ashrrev_i16 v{t}, 15, v{x} op_sel_hi:[0,1]')
        self.A(f'v_bitop3_b32 v{x}, v{x}, v{t}, s49 bitop3:0x78')

    def stage_weights(self):
        A, r = self.A, self.r
        A('s_mov_b32 exec_hi, 0xffff')
        for i in range(12):
            A('s_mul_i32 s44, s3, 768' if i == 0 else 's_addk_i32 s44, 6144')
            A('s_mov_b32 m0, s44')
            A('s_nop 0')
            A(f'buffer_load_dwordx4 {r("vW1")}, {self.srd(S_W1)}, s44 offen lds')
        A('s_mov_b64 exec, -1')
        for k in range(2):
            if k == 0:
                A('s_lshl_b32 s45, s3, 10')
                A(f's_add_u32 m0, s45, {L_W2}')
                A('s_mul_i32 s44, s3, 6144')
            else:
                A('s_add_u32 m0, m0, 8192')
                A('s_add_u32 s44, s44, 49152')
            A(f'buffer_load_dwordx4 {r("vW2")}, {self.srd(S_W2)}, s44 offen lds')

    def stage_one(self, i):
        A, r = self.A, self.r
        if i < 12:
            A('s_mul_i32 s44, s3, 768' if i == 0 else 's_addk_i32 s44, 6144')
            A('s_mov_b32 m0, s44')
            A('s_mov_b32 exec_hi, 0xffff')
            self.issue(f'W{i}', f'buffer_load_dwordx4 {r("vW1")}, {self.srd(S_W1)}, s44 offen lds')
            A('s_mov_b32 exec_hi, -1')
        else:
            if i == 12:
                A('s_lshl_b32 s45, s3, 10')
                A(f's_add_u32 m0, s45, {L_W2}')
                A('s_mul_i32 s44, s3, 6144')
            else:
                A('s_add_u32 m0, m0, 8192')
                A('s_add_u32 s44, s44, 49152')
            self.issue(f'W{i}', f'buffer_load_dwordx4 {r("vW2")}, {self.srd(S_W2)}, s44 offen lds')

    def tags(self):
        A, r = self.A, self.r
        A('v_readfirstlane_b32 s10, v34')
        A('v_readfirstlane_b32 s11, v35')
        A('v_and_b32 v36, 1, v1')
        A('v_cmp_eq_u32 vcc, 1, v36')
        A('v_and_b32 v37, 7, v1')
        A('v_lshlrev_b32 v36, 4, v36')
        A('v_cndmask_b32 v38, v34, v35, vcc')
        A(f'v_add_u32 {r("tag")}, v38, v37')
        A('v_and_b32 v37, 2, v1')
        A('v_cmp_eq_u32 vcc, 2, v37')
        A('s_and_b32 s6, s10, 0xffff')
        A('s_lshr_b32 s7, s10, 16')
        A('v_cndmask_b32 v38, v34, v35, vcc')
        A(f'v_bfe_u32 {r("tag16")}, v38, v36, 16')
        A('s_and_b32 s8, s11, 0xffff')
        A('s_lshr_b32 s9, s11, 16')

    def build(self):
        p = self.p
        A, L, C, r = self.A, self.L, self.C, self.r
        D, B, R = p['D'], p['B'], p['R']
        assert B % 2 == 0 and R - B <= 16 and DATA + 4 * R <= 256
        NDYN = 256 - 8 * B
        o = self.o
        o.append(HEADER.rstrip())
        o.append(f'; @launch grid=(256,1,1) block=(512,1,1) lds={LDS_BYTES}')
        o.append('.amdgcn_target "amdgcn-amd-amdhsa--gfx950"')
        o.append('.text')
        o.append(f'.globl {KNAME}')
        o.append('.p2align 8')
        o.append(f'.type {KNAME},@function')
        L(KNAME)
        self.stamp()
        A(f's_load_dwordx2 s[{S_X}:{S_X + 1}], s[0:1], 0')
        G = p.get('G', 1)
        mp = p.get('map')
        if mp is None:
            A('v_mul_u32_u24 v2, 12, v0')
        else:
            wr = mp.get('wr', 1)
            A('v_lshrrev_b32 v3, 6, v0')
            A('v_mul_u32_u24 v2, 12, v0')
            if wr > 1:
                A(f'v_mul_u32_u24 v3, {(wr - 1) * 768}, v3')
                A('v_add_u32 v2, v2, v3')
        self.jj = 0
        def base(g):
            self.jj = 0
            if mp is not None:
                perm = mp.get('perm')
                if perm == 'xcd':
                    A('s_and_b32 s40, s2, 7')
                    A('s_lshl_b32 s40, s40, 5')
                    A('s_lshr_b32 s41, s2, 3')
                    A('s_add_u32 s40, s40, s41')
                    A('s_cmp_ge_u32 s2, 256')
                    A('s_cselect_b32 s40, s2, s40')
                    A('s_mul_i32 s40, s40, 196608')
                else:
                    A('s_mul_i32 s40, s2, 196608')
                if mp.get('rot'):
                    A('s_add_u32 s41, s40, 196608')
                    sh, mul = mp['rot']
                    A(f's_lshr_b32 s43, s2, {sh}')
                    A(f's_mul_i32 s43, s43, {mul}')
                    A(f's_and_b32 s43, s43, {32 // mp.get("wr", 1) - 1}')
                    A(f's_mul_i32 s43, s43, {6144 * mp.get("wr", 1)}')
                    A('s_add_u32 s40, s40, s43')
            elif g == 1:
                A('s_mul_i32 s40, s2, 196608')
            else:
                A(f's_and_b32 s40, s2, {g - 1}')
                A('s_mul_i32 s40, s40, -31')
                A('s_lshl_b32 s41, s2, 5')
                A('s_add_u32 s40, s40, s41')
                A('s_mul_i32 s40, s40, 6144')
                A(f's_mov_b32 s41, {g * 6144}')
        def adv(g):
            self.jj += 1
            if mp is not None:
                wr = mp.get('wr', 1)
                if self.jj % wr:
                    A('s_addk_i32 s40, 768')
                else:
                    A(f's_add_u32 s40, s40, {6144 * wr - (wr - 1) * 768}')
                    if mp.get('rot'):
                        A('s_cmp_ge_u32 s40, s41')
                        A('s_cselect_b32 s43, 196608, 0')
                        A('s_sub_u32 s40, s40, s43')
                return
            A('s_addk_i32 s40, 6144' if g == 1 else 's_add_u32 s40, s40, s41')
        base(G)
        A(f's_mov_b32 s{S_X + 2}, {XBYTES}')
        A(f's_mov_b32 s{S_X + 3}, 0x20000')
        A('s_waitcnt lgkmcnt(0)')

        def request():
            A('s_mov_b64 exec, 1')
            A(f'ds_add_rtn_u32 v42, {r("T")}, v43')
            A('s_mov_b64 exec, -1')

        def issue_x(j):
            if j < B:
                if j:
                    adv(G)
                so = 's40'
            else:
                so = f's{S_U + j - B}'
                A('s_waitcnt lgkmcnt(0)')
                A(f'v_readfirstlane_b32 s14, v42')
                if j + 1 < R:
                    request()
                A(f's_mul_i32 {so}, s14, 768')
                A(f's_add_u32 {so}, {so}, s41')
                A(f's_cmp_lt_u32 s14, {NDYN}')
                A(f's_cselect_b32 {so}, {so}, 2.0')
                A('s_addc_u32 s15, s15, 0')
            self.issue(f'X{j}', f'buffer_load_dwordx3 {self.d(j)}, v2, {self.srd(S_X)}, {so} offen {p["lpol"]}'.rstrip())
            if j == B - 1 and R > B:
                request()

        for j in range(D):
            issue_x(j)
            if j == 0:
                A(f's_load_dwordx2 s[{S_DBG}:{S_DBG + 1}], s[0:1], 32')
                A('s_memrealtime s[10:11]')
            if j == 1 and R > B:
                A(f'v_mov_b32 {r("T")}, {L_T}')
                A('v_mov_b32 v43, 0')
                A(f'ds_write_b32 {r("T")}, v43')
                A('s_waitcnt lgkmcnt(0)')
                A('s_barrier')
        self.stamp()
        A('s_cmp_ge_u32 s2, 256')
        A('s_cbranch_scc1 L_end')
        A('v_lshrrev_b32 v3, 6, v0')
        A('v_and_b32 v1, 63, v0')
        A(f's_mov_b32 s{S_DBG + 2}, 256')
        A('v_readfirstlane_b32 s3, v3')
        A(f's_mov_b32 s{S_DBG + 3}, 0x20000')
        A(f'v_mov_b32 {r("zero")}, 0')
        A('s_lshl_b32 s42, s2, 3')
        A('s_add_u32 s42, s42, s3')
        A(f's_cmp_lg_u32 s42, {p["nwg"] * 8}')
        A('s_waitcnt lgkmcnt(0)')
        A('s_cbranch_scc1 L_nononce')
        C('one wave of the grid publishes the nonce of this launch (both words non-zero)')
        A('s_or_b32 s10, s10, 1')
        A('s_or_b32 s11, s11, 0x80000000')
        A('v_mov_b32 v34, s10')
        A('v_mov_b32 v35, s11')
        A('s_mov_b64 exec, 1')
        A(f'buffer_store_dwordx2 v[34:35], {r("zero")}, {self.srd(S_DBG)}, 0 offen sc1')
        A('s_mov_b64 exec, -1')
        L('L_nononce')
        A(f's_load_dwordx2 s[{S_WS}:{S_WS + 1}], s[0:1], 40')
        A(f's_load_dwordx2 s[{S_W1}:{S_W1 + 1}], s[0:1], 8')
        A(f's_load_dwordx2 s[{S_W2}:{S_W2 + 1}], s[0:1], 16')
        A(f's_load_dwordx2 s[{S_OUT}:{S_OUT + 1}], s[0:1], 24')
        A(f's_mov_b32 s{S_WS + 2}, {WS_USE}')
        A(f's_mov_b32 s{S_WS + 3}, 0x20000')
        A(f's_mov_b32 s{S_W1 + 2}, {WBYTES}')
        A(f's_mov_b32 s{S_W1 + 3}, 0x20000')
        A(f's_mov_b32 s{S_W2 + 2}, {WBYTES}')
        A(f's_mov_b32 s{S_W2 + 3}, 0x20000')
        A(f's_mov_b32 s{S_OUT + 2}, {XBYTES}')
        A(f's_mov_b32 s{S_OUT + 3}, 0x20000')
        A('s_mov_b32 s48, 0xffff0000')
        A('s_mov_b32 s12, 0')
        if R > B:
            A('v_mov_b32 v43, 1')
            A('s_mov_b32 s15, 0')
            A('s_lshl_b32 s41, s2, 8')
            A('s_sub_u32 s41, s41, s3')
            A(f's_add_u32 s41, s41, {8 * B}')
            A('s_mul_i32 s41, s41, 768')
        A('s_getreg_b32 s13, hwreg(HW_REG_XCC_ID, 0, 1)')
        A('s_and_b32 s4, s2, 7')
        A('s_lshr_b32 s5, s2, 3')
        A('v_lshlrev_b32 v4, 4, v1')
        prep = []
        save, self.o = self.o, prep
        self.addr_prep()
        self.o = save
        o = self.o

        def unpack(j, t):
            for q in range(3):
                A(f'v_lshlrev_b32 v{t + 2 * q}, 16, v{DATA + 4 * j + q}')
                A(f'v_and_b32 v{t + 2 * q + 1}, s48, v{DATA + 4 * j + q}')

        def pair(j, extra=None):
            for jj in (j, j + 1):
                self.wait_for(f'X{jj}')
                if 'N' in self.vm and self.vm.index('N') < self.vm.index(f'X{jj}') and not getattr(self, 'tagged', 0):
                    self.tagged = 1
                    self.tags()
                t = TMP + 6 * (jj & 1)
                unpack(jj, t)
                if jj + D < R:
                    de = p.get('De')
                    if de:
                        A('s_cmp_lg_u32 s13, 0')
                        A(f's_cbranch_scc1 L_lt{jj}')
                        self.wait_for(f'X{jj + D - de}')
                        L(f'L_lt{jj}')
                    issue_x(jj + D)
                if extra:
                    extra(jj)
                for q in range(3):
                    a = ACC + 4 * q
                    if jj == 1:
                        A(f'v_pk_add_f32 v[{a}:{a + 1}], v[{TMP + 2 * q}:{TMP + 2 * q + 1}], v[{t + 2 * q}:{t + 2 * q + 1}]')
                    elif jj > 1:
                        A(f'v_pk_add_f32 v[{a}:{a + 1}], v[{a}:{a + 1}], v[{t + 2 * q}:{t + 2 * q + 1}]')
            for q in range(3):
                for h in range(2):
                    a = ACC + 4 * q + 2 + h
                    if j == 0:
                        A(f'v_max_f32 v{a}, v{TMP + 2 * q + h}, v{TMP + 6 + 2 * q + h}')
                    else:
                        A(f'v_max3_f32 v{a}, v{a}, v{TMP + 2 * q + h}, v{TMP + 6 + 2 * q + h}')

        nprep = p.get('prepsteps', 1)
        chunk = -(-len(prep) // nprep)
        for j in range(0, B, 2):
            if prep:
                o.extend(prep[:chunk])
                prep = prep[chunk:]
                if not prep:
                    A('s_mov_b32 s49, 0x7fff7fff')
                    A('s_waitcnt lgkmcnt(0)')
            if j == p['npos']:
                self.issue('N', f'buffer_load_dwordx2 v[34:35], {r("zero")}, {self.srd(S_DBG)}, 0 offen sc1')
            if j == p['ipos']:
                A('s_and_b32 s42, s3, 3')
                A('s_cmp_lg_u32 s42, 1')
                A('s_cbranch_scc1 L_noipf')
                C('waves 1, 5: read the kernel text behind the load loop once, to pull it into L2')
                A('s_getpc_b64 s[46:47]')
                L('L_pc')
                A('s_lshl_b32 s42, s3, 10')
                A('s_add_u32 s42, s42, L_acc - L_pc - 1024')
                A('v_lshl_add_u32 v6, v1, 6, s42')
                A('v_min_u32 v6, L_last - L_pc, v6')
                A('v_mov_b32 v7, s47')
                A('v_add_co_u32 v6, vcc, s46, v6')
                A('s_nop 1')
                A('v_addc_co_u32 v7, vcc, 0, v7, vcc')
                A(f'global_load_dword {r("junk")}, v[6:7], off')
                L('L_noipf')
            if j == p['wpf']:
                A('s_cmp_lg_u32 s3, 6')
                A('s_cbranch_scc1 L_nowpf')
                C('wave 6: touch 1/32 of the weights so that they are in L2 when they are staged')
                if p.get('wmall'):
                    A('s_mul_i32 s42, s2, 320')
                    A('v_lshlrev_b32 v6, 6, v1')
                    A('s_mov_b64 exec, 31')
                else:
                    A('s_mul_i32 s42, s5, 2304')
                    A('v_lshlrev_b32 v6, 6, v1')
                    A('s_mov_b32 exec_hi, 15')
                A(f'buffer_load_dword {r("junk")}, v6, {self.srd(S_W1)}, s42 offen')
                A(f'buffer_load_dword {r("junk")}, v6, {self.srd(S_W2)}, s42 offen')
                A('s_mov_b64 exec, -1')
                L('L_nowpf')
            if j == p['tpos']:
                A('s_cmp_lg_u32 s3, 4')
                A('s_cbranch_scc1 L_notch')
                C('wave 4: touch 1/32 of the lines this group will poll')
                if p.get('apos') is not None:
                    A('s_mov_b32 exec_lo, 0')
                    A('s_mov_b32 exec_hi, 0x1fff0000')
                A(f'buffer_load_dword {r("junk")}, {r("tch")}, {self.srd(S_WS)}, 0 offen sc1')
                A('s_mov_b64 exec, -1')
                L('L_notch')
            if j == p.get('apos'):
                assert self.tagged
                A('s_cmp_ge_u32 s3, 3')
                A('s_cbranch_scc1 L_noalloc')
                C('waves 0..2: own the lines of their later records early (check word deliberately wrong)')
                A('v_mov_b32 v50, 0')
                A('v_mov_b32 v51, 0')
                A('v_mov_b32 v52, 0')
                A(f'v_not_b32 v53, {r("tag")}')
                A(f'buffer_store_dwordx4 v[50:53], {r("pub")}, {self.srd(S_WS)}, 0 offen')
                L('L_noalloc')
            if p.get('wtail') and j == 32 - D:
                A('s_cmp_lt_u32 s5, 6')
                A('s_cbranch_scc1 L_wtail')
                self.vm_at_tail = list(self.vm)
            pair(j)
        for j in range(B, R):
            A(f's_cmp_le_u32 s15, {j - B}')
            A('s_cbranch_scc1 L_acc')
            self.wait_for(f'X{j}')
            unpack(j, TMP)
            if j + D < R:
                issue_x(j + D)
            for q in range(3):
                a = ACC + 4 * q
                A(f'v_pk_add_f32 v[{a}:{a + 1}], v[{a}:{a + 1}], v[{TMP + 2 * q}:{TMP + 2 * q + 1}]')
                A(f'v_max_f32 v{a + 2}, v{a + 2}, v{TMP + 2 * q}')
                A(f'v_max_f32 v{a + 3}, v{a + 3}, v{TMP + 2 * q + 1}')
        assert self.tagged
        L('L_acc')
        self.stamp()
        if p.get('p1only'):
            A('s_branch L_stdone')
        for q in range(3):
            A(f'ds_write_b128 {r("Pw")}, v[{ACC + 4 * q}:{ACC + 4 * q + 3}] offset:{16 * q}')
        A('s_min_u32 s42, s10, s11')
        A('s_cmp_eq_u32 s42, 0')
        A('s_cbranch_scc1 L_nonce')
        L('L_nonceback')
        A('s_waitcnt lgkmcnt(0)')
        A('s_barrier')
        A('s_cmp_ge_u32 s3, 3')
        A('s_cbranch_scc1 L_nopub')
        for w in range(8):
            A(f'ds_read_b128 v[{8 + 4 * w}:{11 + 4 * w}], {r("t16")} offset:{3072 * w}')
        for k in range(4):
            A(f's_waitcnt lgkmcnt({6 - 2 * k})')
            ra, rb = 8 + 8 * k, 12 + 8 * k
            if k == 0:
                A(f'v_max_f32 v10, v10, v{rb + 2}')
                A(f'v_max_f32 v11, v11, v{rb + 3}')
            else:
                A(f'v_max3_f32 v10, v10, v{ra + 2}, v{rb + 2}')
                A(f'v_max3_f32 v11, v11, v{ra + 3}, v{rb + 3}')
            A(f'v_pk_add_f32 v[{ra}:{ra + 1}], v[{ra}:{ra + 1}], v[{rb}:{rb + 1}]')
            if k == 1:
                A('v_pk_add_f32 v[8:9], v[8:9], v[16:17]')
            if k == 2:
                A('v_pk_add_f32 v[8:9], v[8:9], v[24:25]')
        A('v_cvt_pk_bf16_f32 v10, v10, v11')
        A('v_pk_add_f32 v[8:9], v[8:9], v[32:33]')
        self.key(10, 12)
        self.seal()
        pubA = f'buffer_store_dwordx4 v[8:11], {r("pub")}, {self.srd(S_WS)}, 0 offen'
        A(pubA if not p.get('force') else pubA + ' sc1')
        self.stamp()
        A('s_cmp_lt_u32 s5, 6')
        A('s_cbranch_scc1 L_mlp')
        if not p['wb']:
            A(f's_sleep {p["dlyA"]}')
            A(pubA + ' sc1')
        A('s_branch L_join')
        L('L_nopub')
        A('s_cmp_lt_u32 s5, 6')
        A('s_cbranch_scc1 L_mlp')
        A('s_cmp_lg_u32 s3, 4')
        A('s_cbranch_scc1 L_mlpback')
        A('s_cmp_lt_u32 s5, 8')
        A('s_cbranch_scc1 L_join')
        def red_in(x):
            self.stamp()
            A(f'v_pk_add_f32 v[8:9], v[{x}:{x + 1}], v[{x + 4}:{x + 5}]')
            A(f'v_pk_add_f32 v[16:17], v[{x + 8}:{x + 9}], v[{x + 12}:{x + 13}]')
            A(f'v_pk_max_i16 v10, v{x + 2}, v{x + 6}')
            A(f'v_pk_max_i16 v18, v{x + 10}, v{x + 14}')
        self.poll('L_poll1', r('in1'), [0, 1024, 2048, 3072], (44, 60), self.check_rec, red_in, p['stag'][0])
        A('v_pk_add_f32 v[8:9], v[8:9], v[16:17]')
        A('v_pk_max_i16 v10, v10, v18')
        A('s_nop 0')
        A('v_add_f32_dpp v8, v8, v8 row_ror:8 row_mask:0xf bank_mask:0xf')
        A('v_add_f32_dpp v9, v9, v9 row_ror:8 row_mask:0xf bank_mask:0xf')
        A('v_mov_b32_dpp v14, v10 row_ror:8 row_mask:0xf bank_mask:0xf')
        A('v_mov_b32 v12, v8')
        A('v_mov_b32 v13, v9')
        A('v_pk_max_i16 v10, v10, v14')
        A('v_permlane16_swap_b32 v8, v12')
        A('v_mov_b32 v14, v10')
        A('v_permlane16_swap_b32 v9, v13')
        A('v_add_f32 v8, v8, v12')
        A('v_permlane16_swap_b32 v10, v14')
        A('v_add_f32 v9, v9, v13')
        A('v_mov_b32 v12, v8')
        A('v_pk_max_i16 v10, v10, v14')
        A('v_mov_b32 v13, v9')
        A('v_permlane32_swap_b32 v8, v12')
        A('v_mov_b32 v14, v10')
        A('v_permlane32_swap_b32 v9, v13')
        A('v_add_f32 v8, v8, v12')
        A('v_permlane32_swap_b32 v10, v14')
        A('v_add_f32 v9, v9, v13')
        A('v_pk_max_i16 v10, v10, v14')
        self.seal()
        A(f'buffer_store_dwordx4 v[8:11], {r("out2")}, {self.srd(S_WS)}, 0 offen sc1')
        self.stamp()
        L('L_mlpback')
        A('s_cmp_lg_u32 s3, 7')
        A('s_cbranch_scc1 L_join')
        A('s_mov_b32 exec_hi, 0xffff')
        def s_out(x):
            A(f'ds_write_b128 {r("Sw")}, v[{x}:{x + 3}]')
            A(f'ds_write_b128 {r("Sw")}, v[{x + 4}:{x + 7}] offset:768')
        self.poll('L_poll3', r('in3'), [0, 768], (76, 84), self.check_scale, s_out, p['stag'][2])
        A('s_mov_b64 exec, -1')
        A('s_waitcnt lgkmcnt(0)')
        L('L_join')
        if p.get('thr'):
            A('s_getreg_b32 vcc_lo, hwreg(HW_REG_XCC_ID, 0, 1)')
            A('s_mov_b32 vcc_hi, 0')
        base(G)
        A('s_barrier')
        for q in range(3):
            A(f'ds_read_b64 v[{32 + 2 * q}:{33 + 2 * q}], {r("S")} offset:{8 * q}')
        self.stamp()
        pubC = f'buffer_store_dword v40, {r("out3")}, {self.srd(S_WS)}, 0 offen'
        for j in range(R):
            if j >= B:
                A(f's_cmp_le_u32 s15, {j - B}')
                A('s_cbranch_scc1 L_stdone')
            if p['wb'] and j == p.get('c2pos', 8):
                C('the waves that published a part of the scale repeat that store write-through')
                A('s_cmp_eq_u32 s12, 0')
                A('s_cbranch_scc1 L_noc2')
                A('s_mov_b64 exec, 0xffff')
                A(pubC + ' sc1')
                A('s_mov_b64 exec, -1')
                L('L_noc2')
            t = 8 + 6 * (j & 3)
            unpack(j, t)
            if j == 0:
                A('s_waitcnt lgkmcnt(0)')
            for q in range(3):
                A(f'v_pk_mul_f32 v[{t + 2 * q}:{t + 2 * q + 1}], v[{t + 2 * q}:{t + 2 * q + 1}], v[{32 + 2 * q}:{33 + 2 * q}]')
            for q in range(3):
                A(f'v_cvt_pk_bf16_f32 v{DATA + 4 * j + q}, v{t + 2 * q}, v{t + 2 * q + 1}')
            if 0 < j < B:
                adv(G)
            so = 's40' if j < B else f's{S_U + j - B}'
            ne, no = p.get('thr', (0, 0))
            if no and j >= no:
                A(f's_waitcnt vmcnt({no - 1})')
            if isinstance(ne, tuple):
                ne = ne[j % len(ne)]
            if ne and ne != no and j >= ne:
                A(f's_cbranch_vccnz L_thr{j}')
                A(f's_waitcnt vmcnt({ne - 1})')
                L(f'L_thr{j}')
            A(f'buffer_store_dwordx3 {self.d(j)}, v2, {self.srd(S_OUT)}, {so} offen {p["spol"] if p.get("pfirst", 0) <= j < R - p.get("plast", 0) else p.get("spol2", "")}'.rstrip())
        L('L_stdone')
        if p.get('amp') is not None and not p['stamps']:
            A('s_waitcnt vmcnt(0)')
            self.stamp()
            A('s_waitcnt lgkmcnt(0)')
            A('s_sub_u32 s94, s92, s88')
            if len(p['amp']) > 3:
                A('s_min_u32 s94, s94, 500')
                A('s_sub_u32 s94, 500, s94')
            A('s_cmp_eq_u32 s92, 0')
            A('s_cselect_b32 s94, 0, s94')
            A('s_cmp_eq_u32 s88, 0')
            A('s_cselect_b32 s94, 0, s94')
            A('s_min_u32 s94, s94, 3000')
            A(f's_lshl_b32 s94, s94, {p["amp"][2]}')
            A('s_add_u32 s94, s94, 3000')
            L('L_pad')
            A('s_sleep 2')
            A('s_memrealtime s[92:93]')
            A('s_waitcnt lgkmcnt(0)')
            A('s_sub_u32 s95, s92, s90')
            A('s_cmp_lt_u32 s95, s94')
            A('s_cbranch_scc1 L_pad')
        if p['stamps']:
            A('s_waitcnt vmcnt(0)')
            self.stamp()
            A('s_branch L_stamps')
        L('L_end')
        A('s_endpgm')

        L('L_nonce')
        C('the nonce was not there yet when this wave looked: wait for it')
        A(f's_mov_b32 s50, {p["spin"]}')
        L('L_nonceloop')
        A(f'buffer_load_dwordx2 v[34:35], {r("zero")}, {self.srd(S_DBG)}, 0 offen sc1')
        A('s_waitcnt vmcnt(0)')
        self.tags()
        A('s_min_u32 s42, s10, s11')
        A('s_cmp_lg_u32 s42, 0')
        A('s_cbranch_scc1 L_nonceback')
        A('s_sleep 4')
        A('s_sub_u32 s50, s50, 1')
        A('s_cbranch_scc0 L_nonceloop')
        A('s_branch L_nonceback')

        if p.get('wtail'):
            L('L_wtail')
            C('MLP workgroups: last rows, with the weight staging issued while the row loads drain')
            self.vm = self.vm_at_tail
            todo = list(range(p['wtail'][0]))
            def extra(jj):
                for _ in range(p['wtail'][1]):
                    if todo:
                        self.stage_one(todo.pop(0))
            for j in range(32 - D, 32, 2):
                pair(j, extra)
            assert not todo
            A('s_branch L_acc')
        L('L_mlp')
        C('MLP workgroups (ranks 0..5 of every group)')
        first = p['wtail'][0] if p.get('wtail') else 0
        if first < 14:
            A('s_barrier')
            for i in range(first, 14):
                self.stage_one(i)
        A('s_waitcnt vmcnt(0)')
        A('s_barrier')
        if not p['wb']:
            A('s_cmp_ge_u32 s3, 3')
            A('s_cbranch_scc1 L_nopub2')
            A(pubA + ' sc1')
            L('L_nopub2')
        A('s_cmp_ge_u32 s3, 6')
        A('s_cbranch_scc1 L_notr1')
        for b in range(12):
            for h in range(2):
                base = r('a1') if b < 6 else r('a1b')
                x = W1F + 4 * b + 2 * h
                A(f'ds_read_b64_tr_b16 v[{x}:{x + 1}], {base} offset:{(b % 6) * 6144 + h * 1536}')
        L('L_notr1')
        for b in range(3):
            for h in range(2):
                x = W2F + 4 * b + 2 * h
                A(f'ds_read_b64_tr_b16 v[{x}:{x + 1}], {r("a2")} offset:{(32 * b + 8 * h) * 128}')
        self.stamp()
        if p.get('direct'):
            A('s_cmp_ge_u32 s3, 6')
            A('s_cbranch_scc1 L_nog')
            A('s_movk_i32 s42, 6144')
            A('s_movk_i32 s43, 12288')
            A('s_movk_i32 s45, 18432')
            def g_in(x):
                self.stamp()
                A(f'v_pk_add_f32 v[8:9], v[{x}:{x + 1}], v[{x + 4}:{x + 5}]')
                A(f'v_pk_add_f32 v[16:17], v[{x + 8}:{x + 9}], v[{x + 12}:{x + 13}]')
                A(f'v_pk_max_i16 v10, v{x + 2}, v{x + 6}')
                A(f'v_pk_max_i16 v18, v{x + 10}, v{x + 14}')
            self.poll('L_poll2', r('in2'), ['0', 's42', 's43', 's45'], (20, 20), self.check_rec, g_in, 0)
            A('v_pk_add_f32 v[8:9], v[8:9], v[16:17]')
            A('v_pk_max_i16 v10, v10, v18')
            A('v_mov_b32 v12, v8')
            A('v_mov_b32 v13, v9')
            A('v_mov_b32 v14, v10')
            A('v_permlane32_swap_b32 v8, v12')
            A('v_permlane32_swap_b32 v9, v13')
            A('v_permlane32_swap_b32 v10, v14')
            A('v_pk_add_f32 v[8:9], v[8:9], v[12:13]')
            A('v_pk_max_i16 v10, v10, v14')
            A('v_mul_f32 v8, 0x37800000, v8')
            A('v_mul_f32 v9, 0x37800000, v9')
            self.key(10, 12)
            A('v_cvt_pk_bf16_f32 v8, v8, v9')
            A('s_mov_b32 exec_hi, 0')
            A(f'ds_write2_b32 {r("Gw")}, v8, v10 offset0:0 offset1:{GOFF // 4}')
            A('s_mov_b32 exec_hi, -1')
            A('s_waitcnt lgkmcnt(0)')
        else:
            def q_out(x):
                self.stamp()
                for q in range(3):
                    A(f'ds_write_b128 {r("Qw")}, v[{x + 4 * q}:{x + 3 + 4 * q}] offset:{1024 * q}')
            self.poll('L_poll2', r('in2'), [0, 1024, 2048], (104, 116), self.check_rec, q_out, p['stag'][1])
            A('s_waitcnt lgkmcnt(0)')
            A('s_barrier')
            if p.get('fine') and p['stamps']:
                A('s_memrealtime s[68:69]')
            A('s_cmp_ge_u32 s3, 3')
            A('s_cbranch_scc1 L_nog')
            for w in range(8):
                A(f'ds_read_b128 v[{8 + 4 * w}:{11 + 4 * w}], {r("t16")} offset:{3072 * w}')
            for k in range(4):
                A(f's_waitcnt lgkmcnt({6 - 2 * k})')
                ra, rb = 8 + 8 * k, 12 + 8 * k
                A(f'v_pk_add_f32 v[{ra}:{ra + 1}], v[{ra}:{ra + 1}], v[{rb}:{rb + 1}]')
                A(f'v_pk_max_i16 v{ra + 2}, v{ra + 2}, v{rb + 2}')
                if k:
                    A(f'v_pk_add_f32 v[8:9], v[8:9], v[{ra}:{ra + 1}]')
                    A(f'v_pk_max_i16 v10, v10, v{ra + 2}')
            A('v_mul_f32 v8, 0x37800000, v8')
            A('v_mul_f32 v9, 0x37800000, v9')
            self.key(10, 12)
            A('v_cvt_pk_bf16_f32 v8, v8, v9')
            A(f'ds_write2_b32 {r("Gw")}, v8, v10 offset0:0 offset1:{GOFF // 4}')
            A('s_waitcnt lgkmcnt(0)')
        L('L_nog')
        A('s_barrier')
        self.stamp()
        A('s_cmp_ge_u32 s3, 6')
        A('s_cbranch_scc1 L_nol1')
        NB = 8
        for b in range(NB):
            A(f'ds_read_b128 v[{8 + 4 * b}:{11 + 4 * b}], {r("G")} offset:{64 * b}')
        issued = NB
        for b in range(12):
            A(f's_waitcnt lgkmcnt({issued - b - 1})')
            g = 8 + 4 * (b % NB)
            c = '0' if b == 0 else 'v[40:43]'
            A(f'v_mfma_f32_16x16x32_bf16 v[40:43], v[{W1F + 4 * b}:{W1F + 4 * b + 3}], v[{g}:{g + 3}], {c}')
            if issued < 12:
                A(f'ds_read_b128 v[{g}:{g + 3}], {r("G")} offset:{64 * issued}')
                issued += 1
        A('s_nop 7')
        if p.get('fine') and p['stamps']:
            A('v_mov_b32 v7, v43')
            A('s_memrealtime s[62:63]')
        for k in range(4):
            A(f'v_mul_f32 v{8 + k}, 0, v{40 + k}')
            A(f'v_cmp_lt_f32 s[{52 + 2 * k}:{53 + 2 * k}], 0, v{40 + k}')
        A('s_mov_b32 exec_lo, 0x00030003')
        A('s_mov_b32 exec_hi, 0x00030003')
        for k in range(4):
            A(f'v_cndmask_b32 v{8 + k}, v{8 + k}, v{40 + k}, s[{52 + 2 * k}:{53 + 2 * k}]')
        A('v_cvt_pk_bf16_f32 v12, v8, v9')
        A('v_cvt_pk_bf16_f32 v13, v10, v11')
        A(f'ds_write_b64 {r("Hw")}, v[12:13]')
        A('s_mov_b64 exec, -1')
        A('s_waitcnt lgkmcnt(0)')
        L('L_nol1')
        A('s_barrier')
        if p.get('fine') and p['stamps']:
            A('s_memrealtime s[66:67]')
        A('s_cmp_ge_u32 s3, 4')
        A('s_cbranch_scc1 L_mlpback')
        for b in range(3):
            A(f'ds_read_b128 v[{8 + 4 * b}:{11 + 4 * b}], {r("H")} offset:{64 * b}')
        for b in range(3):
            A(f's_waitcnt lgkmcnt({2 - b})')
            c = '0' if b == 0 else 'v[20:23]'
            wf = W2F + 4 * b
            A(f'v_mfma_f32_16x16x32_bf16 v[20:23], v[{8 + 4 * b}:{11 + 4 * b}], v[{wf}:{wf + 3}], {c}')
        A('s_nop 7')
        if p.get('fine') and p['stamps']:
            A('v_mov_b32 v7, v23')
            A('s_memrealtime s[70:71]')
        A('v_cvt_pk_bf16_f32 v8, v20, v21')
        A('v_lshlrev_b32 v9, 16, v8')
        A('v_and_b32 v8, s48, v8')
        A('v_add_f32 v8, v8, v9')
        A('v_cvt_pk_bf16_f32 v8, v8, v8')
        A('v_and_b32 v8, s48, v8')
        A('v_mul_f32 v8, 0xbfb8aa3b, v8')
        A('v_exp_f32 v8, v8')
        A('s_mov_b64 exec, 0xffff')
        A('v_add_f32 v8, 1.0, v8')
        A('v_rcp_f32 v8, v8')
        A('s_nop 0')
        A('v_cvt_pk_bf16_f32 v8, v8, v8')
        A(f'v_and_or_b32 v40, v8, s48, {r("tag16")}')
        A(pubC if not p.get('force') else pubC + ' sc1')
        A('s_mov_b32 s12, 1')
        self.stamp()
        if not p['wb']:
            A(f's_sleep {p["dlyC"]}')
            A(pubC + ' sc1')
        A('s_mov_b64 exec, -1')
        L('L_last')
        A('s_branch L_join')

        if p['stamps']:
            L('L_stamps')
            A('s_waitcnt lgkmcnt(0)')
            A(f's_add_u32 s56, s{S_WS}, 0x8000000')
            A(f's_addc_u32 s57, s{S_WS + 1}, 0')
            A('s_lshl_b32 s58, s2, 4\n    s_add_u32 s58, s58, s3\n    s_lshl_b32 s58, s58, 7')
            A('s_mov_b64 exec, 1')
            A('v_mov_b32 v1, s58')
            A('s_getreg_b32 s59, hwreg(HW_REG_XCC_ID, 0, 4)')
            A('v_mov_b32 v4, s59\n    v_mov_b32 v5, 0')
            A('global_store_dwordx2 v1, v[4:5], s[56:57] offset:120')
            A('s_nop 1')
            A('v_mov_b32 v4, s15')
            A('global_store_dwordx2 v1, v[4:5], s[56:57] offset:112')
            A('s_nop 1')
            order = [0, 1, 2, 3, 4, 5, 8, 9, 10, 11, 6, 7]
            for i, k in enumerate(order):
                A(f'v_mov_b32 v4, s{S_ST + 2 * k}\n    v_mov_b32 v5, s{S_ST + 1 + 2 * k}')
                A(f'global_store_dwordx2 v1, v[4:5], s[56:57] offset:{8 * i}')
                A('s_nop 1')
            A('s_endpgm')
        o.append('.section .rodata,"a"')
        o.append('.p2align 6')
        o.append(f'.amdhsa_kernel {KNAME}')
        o.append('  .amdhsa_next_free_vgpr 256')
        o.append('  .amdhsa_next_free_sgpr 102')
        o.append('  .amdhsa_accum_offset 256')
        o.append('  .amdhsa_group_segment_fixed_size 0')
        o.append('  .amdhsa_kernarg_size 48')
        o.append('  .amdhsa_user_sgpr_count 2')
        o.append('  .amdhsa_user_sgpr_kernarg_segment_ptr 1')
        o.append('  .amdhsa_system_sgpr_workgroup_id_x 1')
        o.append('  .amdhsa_float_denorm_mode_32 3')
        o.append('.end_amdhsa_kernel')
        return '\n'.join(o) + '\n'

    def addr_prep(self):
        A, r = self.A, self.r
        kg, q3, l1, kc, rr, q7 = 'v44', 'v45', 'v46', 'v47', 'v48', 'v49'
        A(f'v_lshrrev_b32 {kg}, 4, v1')
        A(f'v_and_b32 {q3}, 3, v1')
        A(f'v_and_b32 {l1}, 1, v1')
        A(f'v_bfe_u32 {kc}, v1, 4, 1')
        A(f'v_bfe_u32 {rr}, v1, 2, 2')
        A(f'v_and_b32 {q7}, 0x70, v4')
        A('s_mul_i32 s45, s3, 3072')
        A(f's_add_u32 s45, s45, {L_P}')
        A('v_mul_u32_u24 v3, 48, v1')
        A(f'v_add_u32 {r("Pw")}, s45, v3')
        A(f'v_add_u32 {r("Qw")}, s45, v4')
        A('v_lshlrev_b32 v3, 4, v0')
        A(f'v_add_u32 {r("t16")}, {L_P}, v3')
        A('s_mul_i32 s49, s4, 98304')
        A('s_lshl_b32 s45, s5, 7')
        A('s_add_u32 s45, s45, s49')
        A('v_lshrrev_b32 v3, 3, v0')
        A(f'v_lshl_add_u32 v3, v3, 12, {q7}')
        A(f'v_add_u32 {r("pub")}, s45, v3')
        A('s_sub_u32 s51, s5, 8')
        A('s_lshl_b32 s45, s51, 12')
        A('s_add_u32 s45, s45, s49')
        A(f'v_add_u32 {r("in1")}, s45, v4')
        if self.p['tpos'] is not None:
            A('s_mul_i32 s45, s5, 3072')
            A('s_add_u32 s45, s45, s49')
            A('v_lshlrev_b32 v3, 6, v1')
            A('v_add_u32 v5, s45, v3')
            A('s_mul_i32 s45, s4, 24576')
            A('s_mul_i32 s43, s5, 768')
            A('s_add_u32 s45, s45, s43')
            A(f's_add_u32 s45, s45, {O_B - 48 * 64}')
            A('v_add_u32 v6, s45, v3')
            A('v_cmp_gt_u32 vcc, 48, v1')
            A('s_lshl_b32 s45, s4, 11')
            A('s_lshl_b32 s43, s5, 6')
            A('v_cndmask_b32 v5, v6, v5, vcc')
            A('s_add_u32 s45, s45, s43')
            A(f's_add_u32 s45, s45, {O_C}')
            A('v_mov_b32 v6, s45')
            A('v_cmp_gt_u32 vcc, 60, v1')
            A('s_nop 1')
            A(f'v_cndmask_b32 {r("tch")}, v6, v5, vcc')
        A('s_mul_i32 s45, s4, 3072')
        A('s_lshl_b32 s49, s51, 7')
        A('s_add_u32 s45, s45, s49')
        A(f's_add_u32 s45, s45, {O_B}')
        A('v_lshrrev_b32 v3, 3, v1')
        A('v_mul_u32_u24 v3, 24576, v3')
        A(f'v_add3_u32 {r("out2")}, v3, {q7}, s45')
        if self.p.get('direct'):
            A('s_mul_i32 s45, s4, 24576')
            A('s_lshl_b32 s49, s3, 9')
            A('s_add_u32 s45, s45, s49')
            A(f's_add_u32 s45, s45, {O_B}')
            A('v_lshrrev_b32 v3, 5, v1')
            A('v_mul_u32_u24 v3, 2560, v3')
            A(f'v_add3_u32 {r("in2")}, v3, v4, s45')
        else:
            A('s_lshl_b32 s45, s4, 3')
            A('s_add_u32 s45, s45, s3')
            A('s_mul_i32 s45, s45, 3072')
            A(f's_add_u32 s45, s45, {O_B}')
            A(f'v_add_u32 {r("in2")}, s45, v4')
        A('s_lshl_b32 s45, s4, 11')
        A(f's_add_u32 s45, s45, {O_C}')
        A(f'v_add_u32 {r("in3")}, s45, v4')
        A('s_lshl_b32 s49, s5, 2')
        A('s_add_u32 s49, s49, s3')
        A('s_lshl_b32 s49, s49, 6')
        A('s_add_u32 s45, s45, s49')
        A(f'v_lshl_add_u32 {r("out3")}, v1, 2, s45')
        if self.p.get('direct'):
            A('v_and_b32 v3, 0x19, v1')
            A('s_lshl_b32 s45, s3, 5')
            A('v_add_u32 v3, s45, v3')
        else:
            A('v_and_b32 v3, 0x1f9, v0')
        A('v_bfe_u32 v5, v0, 1, 1')
        A('v_lshl_add_u32 v3, v5, 2, v3')
        A('v_bfe_u32 v5, v0, 2, 1')
        A('v_lshl_add_u32 v3, v5, 1, v3')
        A('v_lshlrev_b32 v3, 2, v3')
        A(f'v_add_u32 {r("Gw")}, {L_G}, v3')
        A(f'v_mul_u32_u24 v3, {GOFF}, {l1}')
        A(f'v_lshl_add_u32 v3, {kg}, 4, v3')
        A(f'v_add_u32 {r("G")}, {L_G}, v3')
        A(f'v_mul_u32_u24 v3, 192, {l1}')
        A(f'v_add_u32 v3, {L_H}, v3')
        A(f'v_lshl_add_u32 {r("H")}, {kg}, 4, v3')
        A(f'v_lshl_add_u32 v3, {kc}, 4, v3')
        A('v_lshrrev_b32 v5, 5, v1')
        A('v_lshl_add_u32 v3, v5, 3, v3')
        A('s_lshl_b32 s45, s3, 5')
        A(f'v_add_u32 {r("Hw")}, s45, v3')
        A(f'v_add_u32 {r("Sw")}, {L_S}, v4')
        A('v_mul_u32_u24 v3, 24, v1')
        A(f'v_add_u32 {r("S")}, {L_S}, v3')
        A('s_and_b32 s45, s45, 32')
        A(f'v_xor_b32 {r("vW1")}, s45, v4')
        A('v_lshrrev_b32 v3, 3, v1')
        A('v_mul_u32_u24 v3, 768, v3')
        A('s_lshl_b32 s45, s5, 7')
        A(f'v_add3_u32 {r("vW2")}, v3, {q7}, s45')
        A(f'v_lshl_add_u32 v6, {kc}, 2, {rr}')
        A('v_lshl_add_u32 v7, v5, 4, v6')
        A(f'v_xor_b32 v3, s3, {kc}')
        A('v_lshlrev_b32 v3, 5, v3')
        A(f'v_lshl_add_u32 v3, {q3}, 3, v3')
        A('v_mul_u32_u24 v5, 192, v7')
        A(f'v_add_u32 {r("a1")}, v3, v5')
        A(f'v_add_u32 {r("a1b")}, {6 * 6144}, {r("a1")}')
        A('v_lshlrev_b32 v5, 7, v7')
        A(f'v_lshl_add_u32 v5, {q3}, 3, v5')
        A('s_and_b32 s45, s3, 3')
        A('s_lshl_b32 s45, s45, 5')
        A(f's_add_u32 s45, s45, {L_W2}')
        A(f'v_add_u32 {r("a2")}, s45, v5')


if __name__ == '__main__':
    kw = eval('dict(%s)' % (sys.argv[2] if len(sys.argv) > 2 else ''))
    open(sys.argv[1], 'w').write(Gen(**kw).build())
```

```python
import sys

KNAME = 'standalone__channel_attn_cbam__vision_kernel'
HEADER = """; Kernarg layout for this problem (48 bytes, ptrs only, base s[0:1]):
"""

XBYTES = 50331648
WBYTES = 73728
O_A = 0
O_B = 786432
O_C = O_B + 196608
WS_USE = 1 << 20
L_W1, L_W2 = 0, 73728
L_P = 90112
L_G, L_H, L_S = 114688, 116736, 117248
GOFF = 832
LDS_BYTES = 118784
S_X, S_W1, S_W2, S_OUT, S_DBG, S_WS = 16, 20, 24, 28, 32, 36
ACC, TMP, W1F, W2F, DATA = 8, 20, 44, 92, 104
S_U, S_ST = 60, 76
L_T = 116480
XOR3 = 'bitop3:0x96'


class Gen:
    def __init__(self, **kw):
        self.p = dict(D=8, lpol='nt', spol='sc1', stamps=False, npos=14, ipos=12, wpf=20, tpos=16, thr=((2, 3), 0),
                      spin=1 << 20, dlyA=16, dlyC=10, nwg=0, wb=64, stag=(0, 0, 0), direct=True, hoist=False, bx=1, B=32, R=32)
        self.p.update(kw)
        self.o = []
        self.vm = []
        self.nstamp = 0
        self.names = {}

    def A(self, s):
        self.o.append('    ' + s)

    def L(self, s):
        self.o.append(s + ':')

    def C(self, s):
        self.o.append('    ; ' + s)

    def srd(self, b):
        return f's[{b}:{b + 3}]'

    def issue(self, tag, text):
        self.A(text)
        self.vm.append(tag)

    def wait_for(self, tag):
        n = len(self.vm) - 1 - self.vm.index(tag)
        assert n <= 63
        self.A(f's_waitcnt vmcnt({n})')

    def stamp(self):
        self.npos = getattr(self, 'npos', -1) + 1
        amp = self.p.get('amp')
        if amp is not None and self.npos == 0:
            self.A('s_memrealtime s[90:91]')
            self.A('s_mov_b32 s88, 0')
            self.A('s_mov_b32 s92, 0')
        if amp is not None and self.npos == amp[0]:
            self.A('s_memrealtime s[88:89]')
        if amp is not None and self.npos == amp[1]:
            self.A('s_memrealtime s[92:93]')
        if self.p['stamps']:
            k = self.nstamp
            assert k < 13
            self.A(f's_memrealtime s[{S_ST + 2 * k}:{S_ST + 1 + 2 * k}]')
            self.nstamp += 1

    def d(self, j):
        return f'v[{DATA + 4 * j}:{DATA + 4 * j + 2}]'

    def r(self, name):
        if name not in self.names:
            self.names[name] = len(self.names)
            assert self.names[name] < 32
        return f'v{DATA + 4 * self.names[name] + 3}'

    def ws_load4(self, reg, addr, off):
        if isinstance(off, str):
            return f'buffer_load_dwordx4 v[{reg}:{reg + 3}], {addr}, {self.srd(S_WS)}, {off} offen sc1'
        o = f' offset:{off}' if off else ''
        return f'buffer_load_dwordx4 v[{reg}:{reg + 3}], {addr}, {self.srd(S_WS)}, 0 offen{o} sc1'

    def check_rec(self, base, n, pend):
        A = self.A
        t = 38
        for i in range(n):
            x = base + 4 * i
            A(f's_waitcnt vmcnt({pend + n - 1 - i})')
            A(f'v_bitop3_b32 v{t + i}, v{x}, v{x + 1}, v{x + 2} {XOR3}')
            A(f'v_bitop3_b32 v{t + i}, v{t + i}, v{x + 3}, {self.r("tag")} {XOR3}')
            if i == 2:
                A(f'v_or3_b32 v{t}, v{t}, v{t + 1}, v{t + 2}')
            if i == 3:
                A(f'v_or_b32 v{t}, v{t}, v{t + 3}')
        A(f'v_cmp_ne_u32 vcc, 0, v{t}')

    def check_scale(self, base, n, pend):
        A = self.A
        for i in range(2):
            A(f's_waitcnt vmcnt({pend + 1 - i})')
            for k in range(4):
                A(f'v_xor_b32 v{base + 4 * i + k}, s{6 + k}, v{base + 4 * i + k}')
            if self.p.get('spec', True):
                A(f'ds_write_b128 {self.r("Sw")}, v[{base + 4 * i}:{base + 4 * i + 3}] offset:{768 * i}')
            if i == 0:
                A(f'v_or3_b32 v38, v{base}, v{base + 1}, v{base + 2}')
            else:
                A(f'v_or3_b32 v38, v38, v{base + 3}, v{base + 4}')
                A(f'v_or3_b32 v39, v{base + 5}, v{base + 6}, v{base + 7}')
                A('v_or_b32 v38, v38, v39')
        A('v_cmp_ne_u16 vcc, 0, v38')

    def poll(self, lab, addr, offs, sets, check, success, stagger, between=None):
        A, L = self.A, self.L
        n = len(offs)

        def loads(base):
            for i, off in enumerate(offs):
                t = self.ws_load4(base + 4 * i, addr, off)
                pol = self.p.get('ppol', {}).get(lab[-1])
                A(t if pol is None else t.replace(' sc1', ' ' + pol))
        A(f's_mov_b32 s50, {self.p["spin"] - 1}')
        if between:
            loads(sets[0])
            between()
            L(lab)
            check(sets[0], n, 0)
            A(f's_cbranch_vccz {lab}done')
            self.again(lab, lambda: loads(sets[0]))
            L(lab + 'done')
            success(sets[0])
            return
        if not stagger:
            L(lab)
            loads(sets[0])
            check(sets[0], n, 0)
            A(f's_cbranch_vccz {lab}done')
            self.again(lab)
            L(lab + 'done')
            success(sets[0])
            return
        loads(sets[0])
        A(f's_sleep {stagger}')
        L(lab)
        loads(sets[1])
        check(sets[0], n, n)
        A(f's_cbranch_vccz {lab}x')
        loads(sets[0])
        check(sets[1], n, n)
        A(f's_cbranch_vccz {lab}y')
        self.again(lab)
        L(lab + 'y')
        k = self.nstamp
        success(sets[1])
        A(f's_branch {lab}done')
        L(lab + 'x')
        self.nstamp = k
        success(sets[0])
        L(lab + 'done')

    def again(self, lab, reissue=None):
        A = self.A
        if self.p['wb']:
            A(f's_and_b32 s51, s50, {self.p["wb"] - 1}')
            A(f's_cbranch_scc1 {lab}nowb')
            self.C('still waiting: push plain-stored records of this XCD out, a reader may sit behind another L2')
            A('buffer_wbl2 sc1')
            A('s_waitcnt vmcnt(0)')
            A('buffer_inv sc1')
            self.L(lab + 'nowb')
        if reissue:
            reissue()
        A('s_sub_u32 s50, s50, 1')
        A(f's_cbranch_scc0 {lab}')

    def seal(self):
        self.A(f'v_bitop3_b32 v11, v8, v9, v10 {XOR3}')
        self.A(f'v_xor_b32 v11, v11, {self.r("tag")}')

    def key(self, x, t):
        self.A(f'v_pk_ashrrev_i16 v{t}, 15, v{x} op_sel_hi:[0,1]')
        self.A(f'v_bitop3_b32 v{x}, v{x}, v{t}, s49 bitop3:0x78')

    def stage_weights(self):
        A, r = self.A, self.r
        A('s_mov_b32 exec_hi, 0xffff')
        for i in range(12):
            A('s_mul_i32 s44, s3, 768' if i == 0 else 's_addk_i32 s44, 6144')
            A('s_mov_b32 m0, s44')
            A('s_nop 0')
            A(f'buffer_load_dwordx4 {r("vW1")}, {self.srd(S_W1)}, s44 offen lds')
        A('s_mov_b64 exec, -1')
        for k in range(2):
            if k == 0:
                A('s_lshl_b32 s45, s3, 10')
                A(f's_add_u32 m0, s45, {L_W2}')
                A('s_mul_i32 s44, s3, 6144')
            else:
                A('s_add_u32 m0, m0, 8192')
                A('s_add_u32 s44, s44, 49152')
            A(f'buffer_load_dwordx4 {r("vW2")}, {self.srd(S_W2)}, s44 offen lds')

    def stage_one(self, i):
        A, r = self.A, self.r
        if i < 12:
            A('s_mul_i32 s44, s3, 768' if i == 0 else 's_addk_i32 s44, 6144')
            A('s_mov_b32 m0, s44')
            A('s_mov_b32 exec_hi, 0xffff')
            self.issue(f'W{i}', f'buffer_load_dwordx4 {r("vW1")}, {self.srd(S_W1)}, s44 offen lds')
            A('s_mov_b32 exec_hi, -1')
        else:
            if i == 12:
                A('s_lshl_b32 s45, s3, 10')
                A(f's_add_u32 m0, s45, {L_W2}')
                A('s_mul_i32 s44, s3, 6144')
            else:
                A('s_add_u32 m0, m0, 8192')
                A('s_add_u32 s44, s44, 49152')
            self.issue(f'W{i}', f'buffer_load_dwordx4 {r("vW2")}, {self.srd(S_W2)}, s44 offen lds')

    def tags(self):
        A, r = self.A, self.r
        A('v_readfirstlane_b32 s10, v34')
        A('v_readfirstlane_b32 s11, v35')
        A('v_and_b32 v36, 1, v1')
        A('v_cmp_eq_u32 vcc, 1, v36')
        A('v_and_b32 v37, 7, v1')
        A('v_lshlrev_b32 v36, 4, v36')
        A('v_cndmask_b32 v38, v34, v35, vcc')
        A(f'v_add_u32 {r("tag")}, v38, v37')
        A('v_and_b32 v37, 2, v1')
        A('v_cmp_eq_u32 vcc, 2, v37')
        A('s_and_b32 s6, s10, 0xffff')
        A('s_lshr_b32 s7, s10, 16')
        A('v_cndmask_b32 v38, v34, v35, vcc')
        A(f'v_bfe_u32 {r("tag16")}, v38, v36, 16')
        A('s_and_b32 s8, s11, 0xffff')
        A('s_lshr_b32 s9, s11, 16')

    def build(self):
        p = self.p
        A, L, C, r = self.A, self.L, self.C, self.r
        D, B, R = p['D'], p['B'], p['R']
        assert B % 2 == 0 and R - B <= 16 and DATA + 4 * R <= 256
        NDYN = 256 - 8 * B
        o = self.o
        o.append(HEADER.rstrip())
        o.append(f'; @launch grid=(256,1,1) block=(512,1,1) lds={LDS_BYTES}')
        o.append('.amdgcn_target "amdgcn-amd-amdhsa--gfx950"')
        o.append('.text')
        o.append(f'.globl {KNAME}')
        o.append('.p2align 8')
        o.append(f'.type {KNAME},@function')
        L(KNAME)
        self.stamp()
        A(f's_load_dwordx2 s[{S_X}:{S_X + 1}], s[0:1], 0')
        G = p.get('G', 1)
        mp = p.get('map')
        if mp is None:
            A('v_mul_u32_u24 v2, 12, v0')
        else:
            wr = mp.get('wr', 1)
            A('v_lshrrev_b32 v3, 6, v0')
            A('v_mul_u32_u24 v2, 12, v0')
            if wr > 1:
                A(f'v_mul_u32_u24 v3, {(wr - 1) * 768}, v3')
                A('v_add_u32 v2, v2, v3')
        self.jj = 0
        def base(g):
            self.jj = 0
            if mp is not None:
                perm = mp.get('perm')
                if perm == 'xcd':
                    A('s_and_b32 s40, s2, 7')
                    A('s_lshl_b32 s40, s40, 5')
                    A('s_lshr_b32 s41, s2, 3')
                    A('s_add_u32 s40, s40, s41')
                    A('s_cmp_ge_u32 s2, 256')
                    A('s_cselect_b32 s40, s2, s40')
                    A('s_mul_i32 s40, s40, 196608')
                else:
                    A('s_mul_i32 s40, s2, 196608')
                if mp.get('rot'):
                    A('s_add_u32 s41, s40, 196608')
                    sh, mul = mp['rot']
                    A(f's_lshr_b32 s43, s2, {sh}')
                    A(f's_mul_i32 s43, s43, {mul}')
                    A(f's_and_b32 s43, s43, {32 // mp.get("wr", 1) - 1}')
                    A(f's_mul_i32 s43, s43, {6144 * mp.get("wr", 1)}')
                    A('s_add_u32 s40, s40, s43')
            elif g == 1:
                A('s_mul_i32 s40, s2, 196608')
            else:
                A(f's_and_b32 s40, s2, {g - 1}')
                A('s_mul_i32 s40, s40, -31')
                A('s_lshl_b32 s41, s2, 5')
                A('s_add_u32 s40, s40, s41')
                A('s_mul_i32 s40, s40, 6144')
                A(f's_mov_b32 s41, {g * 6144}')
        def adv(g):
            self.jj += 1
            if mp is not None:
                wr = mp.get('wr', 1)
                if self.jj % wr:
                    A('s_addk_i32 s40, 768')
                else:
                    A(f's_add_u32 s40, s40, {6144 * wr - (wr - 1) * 768}')
                    if mp.get('rot'):
                        A('s_cmp_ge_u32 s40, s41')
                        A('s_cselect_b32 s43, 196608, 0')
                        A('s_sub_u32 s40, s40, s43')
                return
            A('s_addk_i32 s40, 6144' if g == 1 else 's_add_u32 s40, s40, s41')
        base(G)
        A(f's_mov_b32 s{S_X + 2}, {XBYTES}')
        A(f's_mov_b32 s{S_X + 3}, 0x20000')
        A('s_waitcnt lgkmcnt(0)')

        def request():
            A('s_mov_b64 exec, 1')
            A(f'ds_add_rtn_u32 v42, {r("T")}, v43')
            A('s_mov_b64 exec, -1')

        def issue_x(j):
            if j < B:
                if j:
                    adv(G)
                so = 's40'
            else:
                so = f's{S_U + j - B}'
                A('s_waitcnt lgkmcnt(0)')
                A(f'v_readfirstlane_b32 s14, v42')
                if j + 1 < R:
                    request()
                A(f's_mul_i32 {so}, s14, 768')
                A(f's_add_u32 {so}, {so}, s41')
                A(f's_cmp_lt_u32 s14, {NDYN}')
                A(f's_cselect_b32 {so}, {so}, 2.0')
                A('s_addc_u32 s15, s15, 0')
            self.issue(f'X{j}', f'buffer_load_dwordx3 {self.d(j)}, v2, {self.srd(S_X)}, {so} offen {p["lpol"]}'.rstrip())
            if j == B - 1 and R > B:
                request()

        for j in range(D):
            issue_x(j)
            if j == 0:
                A(f's_load_dwordx2 s[{S_DBG}:{S_DBG + 1}], s[0:1], 32')
                A('s_memrealtime s[10:11]')
            if j == 1 and R > B:
                A(f'v_mov_b32 {r("T")}, {L_T}')
                A('v_mov_b32 v43, 0')
                A(f'ds_write_b32 {r("T")}, v43')
                A('s_waitcnt lgkmcnt(0)')
                A('s_barrier')
        self.stamp()
        A('s_cmp_ge_u32 s2, 256')
        A('s_cbranch_scc1 L_end')
        A('v_lshrrev_b32 v3, 6, v0')
        A('v_and_b32 v1, 63, v0')
        A(f's_mov_b32 s{S_DBG + 2}, 256')
        A('v_readfirstlane_b32 s3, v3')
        A(f's_mov_b32 s{S_DBG + 3}, 0x20000')
        A(f'v_mov_b32 {r("zero")}, 0')
        A('s_lshl_b32 s42, s2, 3')
        A('s_add_u32 s42, s42, s3')
        A(f's_cmp_lg_u32 s42, {p["nwg"] * 8}')
        A('s_waitcnt lgkmcnt(0)')
        A('s_cbranch_scc1 L_nononce')
        C('one wave of the grid publishes the nonce of this launch (both words non-zero)')
        A('s_or_b32 s10, s10, 1')
        A('s_or_b32 s11, s11, 0x80000000')
        A('v_mov_b32 v34, s10')
        A('v_mov_b32 v35, s11')
        A('s_mov_b64 exec, 1')
        A(f'buffer_store_dwordx2 v[34:35], {r("zero")}, {self.srd(S_DBG)}, 0 offen sc1')
        A('s_mov_b64 exec, -1')
        L('L_nononce')
        A(f's_load_dwordx2 s[{S_WS}:{S_WS + 1}], s[0:1], 40')
        A(f's_load_dwordx2 s[{S_W1}:{S_W1 + 1}], s[0:1], 8')
        A(f's_load_dwordx2 s[{S_W2}:{S_W2 + 1}], s[0:1], 16')
        A(f's_load_dwordx2 s[{S_OUT}:{S_OUT + 1}], s[0:1], 24')
        A(f's_mov_b32 s{S_WS + 2}, {WS_USE}')
        A(f's_mov_b32 s{S_WS + 3}, 0x20000')
        A(f's_mov_b32 s{S_W1 + 2}, {WBYTES}')
        A(f's_mov_b32 s{S_W1 + 3}, 0x20000')
        A(f's_mov_b32 s{S_W2 + 2}, {WBYTES}')
        A(f's_mov_b32 s{S_W2 + 3}, 0x20000')
        A(f's_mov_b32 s{S_OUT + 2}, {XBYTES}')
        A(f's_mov_b32 s{S_OUT + 3}, 0x20000')
        A('s_mov_b32 s48, 0xffff0000')
        A('s_mov_b32 s12, 0')
        if R > B:
            A('v_mov_b32 v43, 1')
            A('s_mov_b32 s15, 0')
            A('s_lshl_b32 s41, s2, 8')
            A('s_sub_u32 s41, s41, s3')
            A(f's_add_u32 s41, s41, {8 * B}')
            A('s_mul_i32 s41, s41, 768')
        A('s_getreg_b32 s13, hwreg(HW_REG_XCC_ID, 0, 1)')
        A('s_and_b32 s4, s2, 7')
        A('s_lshr_b32 s5, s2, 3')
        A('v_lshlrev_b32 v4, 4, v1')
        prep = []
        save, self.o = self.o, prep
        self.addr_prep()
        self.o = save
        o = self.o

        def unpack(j, t):
            for q in range(3):
                A(f'v_lshlrev_b32 v{t + 2 * q}, 16, v{DATA + 4 * j + q}')
                A(f'v_and_b32 v{t + 2 * q + 1}, s48, v{DATA + 4 * j + q}')

        def pair(j, extra=None):
            for jj in (j, j + 1):
                self.wait_for(f'X{jj}')
                if 'N' in self.vm and self.vm.index('N') < self.vm.index(f'X{jj}') and not getattr(self, 'tagged', 0):
                    self.tagged = 1
                    self.tags()
                t = TMP + 6 * (jj & 1)
                unpack(jj, t)
                if jj + D < R:
                    de = p.get('De')
                    if isinstance(de, tuple):
                        de = de[jj % len(de)]
                    if de:
                        A('s_cmp_lg_u32 s13, 0')
                        A(f's_cbranch_scc1 L_lt{jj}')
                        self.wait_for(f'X{jj + D - de}')
                        L(f'L_lt{jj}')
                    issue_x(jj + D)
                if extra:
                    extra(jj)
                for q in range(3):
                    a = ACC + 4 * q
                    if jj == 1:
                        A(f'v_pk_add_f32 v[{a}:{a + 1}], v[{TMP + 2 * q}:{TMP + 2 * q + 1}], v[{t + 2 * q}:{t + 2 * q + 1}]')
                    elif jj > 1:
                        A(f'v_pk_add_f32 v[{a}:{a + 1}], v[{a}:{a + 1}], v[{t + 2 * q}:{t + 2 * q + 1}]')
            for q in range(3):
                for h in range(2):
                    a = ACC + 4 * q + 2 + h
                    if j == 0:
                        A(f'v_max_f32 v{a}, v{TMP + 2 * q + h}, v{TMP + 6 + 2 * q + h}')
                    else:
                        A(f'v_max3_f32 v{a}, v{a}, v{TMP + 2 * q + h}, v{TMP + 6 + 2 * q + h}')

        nprep = p.get('prepsteps', 1)
        chunk = -(-len(prep) // nprep)
        for j in range(0, B, 2):
            if prep:
                o.extend(prep[:chunk])
                prep = prep[chunk:]
                if not prep:
                    A('s_mov_b32 s49, 0x7fff7fff')
                    A('s_waitcnt lgkmcnt(0)')
            if j == p['npos']:
                self.issue('N', f'buffer_load_dwordx2 v[34:35], {r("zero")}, {self.srd(S_DBG)}, 0 offen sc1')
            if j == p['ipos']:
                A('s_and_b32 s42, s3, 3')
                A('s_cmp_lg_u32 s42, 1')
                A('s_cbranch_scc1 L_noipf')
                C('waves 1, 5: read the kernel text behind the load loop once, to pull it into L2')
                A('s_getpc_b64 s[46:47]')
                L('L_pc')
                A('s_lshl_b32 s42, s3, 10')
                A('s_add_u32 s42, s42, L_acc - L_pc - 1024')
                A('v_lshl_add_u32 v6, v1, 6, s42')
                A('v_min_u32 v6, L_last - L_pc, v6')
                A('v_mov_b32 v7, s47')
                A('v_add_co_u32 v6, vcc, s46, v6')
                A('s_nop 1')
                A('v_addc_co_u32 v7, vcc, 0, v7, vcc')
                A(f'global_load_dword {r("junk")}, v[6:7], off')
                L('L_noipf')
            if j == p['wpf']:
                A('s_cmp_lg_u32 s3, 6')
                A('s_cbranch_scc1 L_nowpf')
                C('wave 6: touch 1/32 of the weights so that they are in L2 when they are staged')
                if p.get('wmall'):
                    A('s_mul_i32 s42, s2, 320')
                    A('v_lshlrev_b32 v6, 6, v1')
                    A('s_mov_b64 exec, 31')
                else:
                    A('s_mul_i32 s42, s5, 2304')
                    A('v_lshlrev_b32 v6, 6, v1')
                    A('s_mov_b32 exec_hi, 15')
                A(f'buffer_load_dword {r("junk")}, v6, {self.srd(S_W1)}, s42 offen')
                A(f'buffer_load_dword {r("junk")}, v6, {self.srd(S_W2)}, s42 offen')
                A('s_mov_b64 exec, -1')
                L('L_nowpf')
            if j == p['tpos']:
                A('s_cmp_lg_u32 s3, 4')
                A('s_cbranch_scc1 L_notch')
                C('wave 4: touch 1/32 of the lines this group will poll')
                if p.get('nobt'):
                    A('s_mov_b32 exec_hi, 0x1000ffff')
                if p.get('apos') is not None:
                    A('s_mov_b32 exec_lo, 0')
                    A('s_mov_b32 exec_hi, 0x1fff0000')
                A(f'buffer_load_dword {r("junk")}, {r("tch")}, {self.srd(S_WS)}, 0 offen {p.get("tpol", "sc1")}')
                A('s_mov_b64 exec, -1')
                L('L_notch')
            if j == p.get('apos'):
                assert self.tagged
                A('s_cmp_ge_u32 s3, 3')
                A('s_cbranch_scc1 L_noalloc')
                C('waves 0..2: own the lines of their later records early (check word deliberately wrong)')
                A('v_mov_b32 v50, 0')
                A('v_mov_b32 v51, 0')
                A('v_mov_b32 v52, 0')
                A(f'v_not_b32 v53, {r("tag")}')
                A(f'buffer_store_dwordx4 v[50:53], {r("pub")}, {self.srd(S_WS)}, 0 offen')
                L('L_noalloc')
            if p.get('wtail') and j == 32 - D:
                A('s_cmp_lt_u32 s5, 6')
                A('s_cbranch_scc1 L_wtail')
                self.vm_at_tail = list(self.vm)
            pair(j)
        for j in range(B, R):
            A(f's_cmp_le_u32 s15, {j - B}')
            A('s_cbranch_scc1 L_acc')
            self.wait_for(f'X{j}')
            unpack(j, TMP)
            if j + D < R:
                issue_x(j + D)
            for q in range(3):
                a = ACC + 4 * q
                A(f'v_pk_add_f32 v[{a}:{a + 1}], v[{a}:{a + 1}], v[{TMP + 2 * q}:{TMP + 2 * q + 1}]')
                A(f'v_max_f32 v{a + 2}, v{a + 2}, v{TMP + 2 * q}')
                A(f'v_max_f32 v{a + 3}, v{a + 3}, v{TMP + 2 * q + 1}')
        assert self.tagged
        L('L_acc')
        self.stamp()
        if p.get('p1only'):
            A('s_branch L_stdone')
        for q in range(3):
            A(f'ds_write_b128 {r("Pw")}, v[{ACC + 4 * q}:{ACC + 4 * q + 3}] offset:{16 * q}')
        A('s_min_u32 s42, s10, s11')
        A('s_cmp_eq_u32 s42, 0')
        A('s_cbranch_scc1 L_nonce')
        L('L_nonceback')
        A('s_waitcnt lgkmcnt(0)')
        A('s_barrier')
        A('s_cmp_ge_u32 s3, 3')
        A('s_cbranch_scc1 L_nopub')
        for w in range(8):
            A(f'ds_read_b128 v[{8 + 4 * w}:{11 + 4 * w}], {r("t16")} offset:{3072 * w}')
        for k in range(4):
            A(f's_waitcnt lgkmcnt({6 - 2 * k})')
            ra, rb = 8 + 8 * k, 12 + 8 * k
            if k == 0:
                A(f'v_max_f32 v10, v10, v{rb + 2}')
                A(f'v_max_f32 v11, v11, v{rb + 3}')
            else:
                A(f'v_max3_f32 v10, v10, v{ra + 2}, v{rb + 2}')
                A(f'v_max3_f32 v11, v11, v{ra + 3}, v{rb + 3}')
            A(f'v_pk_add_f32 v[{ra}:{ra + 1}], v[{ra}:{ra + 1}], v[{rb}:{rb + 1}]')
            if k == 1:
                A('v_pk_add_f32 v[8:9], v[8:9], v[16:17]')
            if k == 2:
                A('v_pk_add_f32 v[8:9], v[8:9], v[24:25]')
        A('v_cvt_pk_bf16_f32 v10, v10, v11')
        A('v_pk_add_f32 v[8:9], v[8:9], v[32:33]')
        self.key(10, 12)
        self.seal()
        pubA = f'buffer_store_dwordx4 v[8:11], {r("pub")}, {self.srd(S_WS)}, 0 offen'
        A(pubA if not p.get('force') else pubA + ' sc1')
        self.stamp()
        A('s_cmp_lt_u32 s5, 6')
        A('s_cbranch_scc1 L_mlp')
        if not p['wb']:
            A(f's_sleep {p["dlyA"]}')
            A(pubA + ' sc1')
        A('s_branch L_join')
        L('L_nopub')
        A('s_cmp_lt_u32 s5, 6')
        A('s_cbranch_scc1 L_mlp')
        A('s_cmp_lg_u32 s3, 4')
        A('s_cbranch_scc1 L_mlpback')
        A('s_cmp_lt_u32 s5, 8')
        A('s_cbranch_scc1 L_join')
        def red_in(x):
            self.stamp()
            A(f'v_pk_add_f32 v[8:9], v[{x}:{x + 1}], v[{x + 4}:{x + 5}]')
            A(f'v_pk_add_f32 v[16:17], v[{x + 8}:{x + 9}], v[{x + 12}:{x + 13}]')
            A(f'v_pk_max_i16 v10, v{x + 2}, v{x + 6}')
            A(f'v_pk_max_i16 v18, v{x + 10}, v{x + 14}')
        self.poll('L_poll1', r('in1'), [0, 1024, 2048, 3072], (44, 60), self.check_rec, red_in, p['stag'][0])
        A('v_pk_add_f32 v[8:9], v[8:9], v[16:17]')
        A('v_pk_max_i16 v10, v10, v18')
        A('s_nop 0')
        A('v_add_f32_dpp v8, v8, v8 row_ror:8 row_mask:0xf bank_mask:0xf')
        A('v_add_f32_dpp v9, v9, v9 row_ror:8 row_mask:0xf bank_mask:0xf')
        A('v_mov_b32_dpp v14, v10 row_ror:8 row_mask:0xf bank_mask:0xf')
        A('v_mov_b32 v12, v8')
        A('v_mov_b32 v13, v9')
        A('v_pk_max_i16 v10, v10, v14')
        A('v_permlane16_swap_b32 v8, v12')
        A('v_mov_b32 v14, v10')
        A('v_permlane16_swap_b32 v9, v13')
        A('v_add_f32 v8, v8, v12')
        A('v_permlane16_swap_b32 v10, v14')
        A('v_add_f32 v9, v9, v13')
        A('v_mov_b32 v12, v8')
        A('v_pk_max_i16 v10, v10, v14')
        A('v_mov_b32 v13, v9')
        A('v_permlane32_swap_b32 v8, v12')
        A('v_mov_b32 v14, v10')
        A('v_permlane32_swap_b32 v9, v13')
        A('v_add_f32 v8, v8, v12')
        A('v_permlane32_swap_b32 v10, v14')
        A('v_add_f32 v9, v9, v13')
        A('v_pk_max_i16 v10, v10, v14')
        self.seal()
        A(f'buffer_store_dwordx4 v[8:11], {r("out2")}, {self.srd(S_WS)}, 0 offen sc1')
        self.stamp()
        L('L_mlpback')
        A('s_cmp_lg_u32 s3, 7')
        A('s_cbranch_scc1 L_join')
        A('s_mov_b32 exec_hi, 0xffff')
        def s_out(x):
            if p.get('spec', True):
                return
            A(f'ds_write_b128 {r("Sw")}, v[{x}:{x + 3}]')
            A(f'ds_write_b128 {r("Sw")}, v[{x + 4}:{x + 7}] offset:768')
        self.poll('L_poll3', r('in3'), [0, 768], (76, 84), self.check_scale, s_out, p['stag'][2])
        A('s_mov_b64 exec, -1')
        A('s_waitcnt lgkmcnt(0)')
        L('L_join')
        A('s_barrier')
        for q in range(3):
            A(f'ds_read_b64 v[{32 + 2 * q}:{33 + 2 * q}], {r("S")} offset:{8 * q}')
        base(G)
        A('s_bitcmp1_b32 s13, 0')
        A('s_cselect_b64 vcc, -1, 0')
        self.stamp()
        pubC = f'buffer_store_dword v40, {r("out3")}, {self.srd(S_WS)}, 0 offen'
        for j in range(R):
            if j >= B:
                A(f's_cmp_le_u32 s15, {j - B}')
                A('s_cbranch_scc1 L_stdone')
            if p['wb'] and j == p.get('c2pos', 8):
                C('the waves that published a part of the scale repeat that store write-through')
                A('s_cmp_eq_u32 s12, 0')
                A('s_cbranch_scc1 L_noc2')
                A('s_mov_b64 exec, 0xffff')
                A(pubC + ' sc1')
                A('s_mov_b64 exec, -1')
                L('L_noc2')
            t = 8 + 6 * (j & 3)
            unpack(j, t)
            if j == 0:
                A('s_waitcnt lgkmcnt(0)')
            for q in range(3):
                A(f'v_pk_mul_f32 v[{t + 2 * q}:{t + 2 * q + 1}], v[{t + 2 * q}:{t + 2 * q + 1}], v[{32 + 2 * q}:{33 + 2 * q}]')
            for q in range(3):
                A(f'v_cvt_pk_bf16_f32 v{DATA + 4 * j + q}, v{t + 2 * q}, v{t + 2 * q + 1}')
            if 0 < j < B:
                adv(G)
            so = 's40' if j < B else f's{S_U + j - B}'
            ne, no = p.get('thr', (0, 0))
            if no and j >= no:
                A(f's_waitcnt vmcnt({no - 1})')
            if isinstance(ne, tuple):
                ne = ne[j % len(ne)]
            if ne and ne != no and j >= ne:
                A(f's_cbranch_vccnz L_thr{j}')
                A(f's_waitcnt vmcnt({ne - 1})')
                L(f'L_thr{j}')
            A(f'buffer_store_dwordx3 {self.d(j)}, v2, {self.srd(S_OUT)}, {so} offen {p["spol"] if p.get("pfirst", 0) <= j < R - p.get("plast", 0) else p.get("spol2", "")}'.rstrip())
        L('L_stdone')
        if p.get('amp') is not None and not p['stamps']:
            A('s_waitcnt vmcnt(0)')
            self.stamp()
            A('s_waitcnt lgkmcnt(0)')
            A('s_sub_u32 s94, s92, s88')
            if len(p['amp']) > 3:
                A('s_min_u32 s94, s94, 500')
                A('s_sub_u32 s94, 500, s94')
            A('s_cmp_eq_u32 s92, 0')
            A('s_cselect_b32 s94, 0, s94')
            A('s_cmp_eq_u32 s88, 0')
            A('s_cselect_b32 s94, 0, s94')
            A('s_min_u32 s94, s94, 3000')
            A(f's_lshl_b32 s94, s94, {p["amp"][2]}')
            A('s_add_u32 s94, s94, 3000')
            L('L_pad')
            A('s_sleep 2')
            A('s_memrealtime s[92:93]')
            A('s_waitcnt lgkmcnt(0)')
            A('s_sub_u32 s95, s92, s90')
            A('s_cmp_lt_u32 s95, s94')
            A('s_cbranch_scc1 L_pad')
        if p['stamps']:
            A('s_waitcnt vmcnt(0)')
            self.stamp()
            A('s_branch L_stamps')
        L('L_end')
        A('s_endpgm')

        L('L_nonce')
        C('the nonce was not there yet when this wave looked: wait for it')
        A(f's_mov_b32 s50, {p["spin"]}')
        L('L_nonceloop')
        A(f'buffer_load_dwordx2 v[34:35], {r("zero")}, {self.srd(S_DBG)}, 0 offen sc1')
        A('s_waitcnt vmcnt(0)')
        self.tags()
        A('s_min_u32 s42, s10, s11')
        A('s_cmp_lg_u32 s42, 0')
        A('s_cbranch_scc1 L_nonceback')
        A('s_sleep 4')
        A('s_sub_u32 s50, s50, 1')
        A('s_cbranch_scc0 L_nonceloop')
        A('s_branch L_nonceback')

        if p.get('wtail'):
            L('L_wtail')
            C('MLP workgroups: last rows, with the weight staging issued while the row loads drain')
            self.vm = self.vm_at_tail
            todo = list(range(p['wtail'][0]))
            def extra(jj):
                for _ in range(p['wtail'][1]):
                    if todo:
                        self.stage_one(todo.pop(0))
            for j in range(32 - D, 32, 2):
                pair(j, extra)
            assert not todo
            A('s_branch L_acc')
        L('L_mlp')
        C('MLP workgroups (ranks 0..5 of every group)')
        first = p['wtail'][0] if p.get('wtail') else 0
        pre = p.get('pre', 0)
        if p.get('cons'):
            n_pub, n_oth = p['cons']
            assert 3 * n_pub + 5 * n_oth == 96
            def run(n, lab):
                A('s_mov_b32 exec_hi, 0xffff')
                for i in range(n):
                    if i % 5 == 0:
                        if i:
                            A('s_addk_i32 s44, 3840')
                        A('s_mov_b32 m0, s44')
                        A('s_nop 0')
                    off = f' offset:{768 * (i % 5)}' if i % 5 else ''
                    A(f'buffer_load_dwordx4 {r("vW1" if i % 2 == 0 else "vW1b")}, {self.srd(S_W1)}, s44 offen{off} lds')
                A('s_mov_b32 exec_hi, -1')
            if n_pub == n_oth:
                A('s_barrier')
                run(n_pub, 'a')
                self.stage_one(12)
                self.stage_one(13)
            else:
                A('s_cmp_ge_u32 s3, 3')
                A('s_cbranch_scc1 L_cons1')
                if not p.get('nob1b'):
                    A('s_barrier')
                run(n_pub, 'a')
                self.stage_one(12)
                self.stage_one(13)
                A('s_branch L_cons2')
                L('L_cons1')
                A('s_mov_b32 s43, s44')
                self.stage_one(12)
                self.stage_one(13)
                A('s_mov_b32 s44, s43')
                if not p.get('nob1b'):
                    A('s_barrier')
                run(n_oth, 'b')
                L('L_cons2')
        elif pre:
            C('waves 3..7 start a few copies while waves 0..2 still publish')
            A('s_cmp_ge_u32 s3, 3')
            A('s_cbranch_scc1 L_pre1')
            A('s_barrier')
            L('L_pre1')
            for i in range(pre):
                self.stage_one(i)
            A('s_cmp_lt_u32 s3, 3')
            A('s_cbranch_scc1 L_pre2')
            A('s_barrier')
            L('L_pre2')
            for i in range(pre, 14):
                self.stage_one(i)
        elif first < 14:
            A('s_barrier')
            for i in range(first, 14):
                self.stage_one(i)
        A('s_movk_i32 s42, 6144')
        A('s_movk_i32 s43, 12288')
        A('s_movk_i32 s45, 18432')
        A('s_waitcnt vmcnt(0)')
        A('s_barrier')
        if not p['wb']:
            A('s_cmp_ge_u32 s3, 3')
            A('s_cbranch_scc1 L_nopub2')
            A(pubA + ' sc1')
            L('L_nopub2')
        def tr_reads():
            for b in range(12):
                for h in range(2):
                    base = r('a1') if b < 6 else r('a1b')
                    x = W1F + 4 * b + 2 * h
                    A(f'ds_read_b64_tr_b16 v[{x}:{x + 1}], {base} offset:{(b % 6) * 6144 + h * 1536}')
            for b in range(3):
                for h in range(2):
                    x = W2F + 4 * b + 2 * h
                    A(f'ds_read_b64_tr_b16 v[{x}:{x + 1}], {r("a2")} offset:{(32 * b + 8 * h) * 128}')
            self.stamp()
        assert p['direct']
        if p.get('direct'):
            A('s_cmp_ge_u32 s3, 6')
            A('s_cbranch_scc1 L_nog')
            if not p.get('hoist', True):
                tr_reads()
            def g_in(x):
                self.stamp()
                A(f'v_pk_add_f32 v[8:9], v[{x}:{x + 1}], v[{x + 4}:{x + 5}]')
                A(f'v_pk_add_f32 v[16:17], v[{x + 8}:{x + 9}], v[{x + 12}:{x + 13}]')
                A(f'v_pk_max_i16 v10, v{x + 2}, v{x + 6}')
                A(f'v_pk_max_i16 v18, v{x + 10}, v{x + 14}')
            self.poll('L_poll2', r('in2'), ['0', 's42', 's43', 's45'], (20, 20), self.check_rec, g_in, 0, between=tr_reads if p.get('hoist', True) else None)
            A('v_pk_add_f32 v[8:9], v[8:9], v[16:17]')
            A('v_pk_max_i16 v10, v10, v18')
            A('v_mov_b32 v12, v8')
            A('v_mov_b32 v13, v9')
            A('v_mov_b32 v14, v10')
            A('v_permlane32_swap_b32 v8, v12')
            A('v_permlane32_swap_b32 v9, v13')
            A('v_permlane32_swap_b32 v10, v14')
            A('v_pk_add_f32 v[8:9], v[8:9], v[12:13]')
            A('v_pk_max_i16 v10, v10, v14')
            A('v_mul_f32 v8, 0x37800000, v8')
            A('v_mul_f32 v9, 0x37800000, v9')
            self.key(10, 12)
            A('v_cvt_pk_bf16_f32 v8, v8, v9')
            A('s_mov_b32 exec_hi, 0')
            A(f'ds_write2_b32 {r("Gw")}, v8, v10 offset0:0 offset1:{GOFF // 4}')
            A('s_mov_b32 exec_hi, -1')
            A('s_waitcnt lgkmcnt(0)')
        else:
            def q_out(x):
                self.stamp()
                for q in range(3):
                    A(f'ds_write_b128 {r("Qw")}, v[{x + 4 * q}:{x + 3 + 4 * q}] offset:{1024 * q}')
            self.poll('L_poll2', r('in2'), [0, 1024, 2048], (104, 116), self.check_rec, q_out, p['stag'][1])
            A('s_waitcnt lgkmcnt(0)')
            A('s_barrier')
            if p.get('fine') and p['stamps']:
                A('s_memrealtime s[68:69]')
            A('s_cmp_ge_u32 s3, 3')
            A('s_cbranch_scc1 L_nog')
            for w in range(8):
                A(f'ds_read_b128 v[{8 + 4 * w}:{11 + 4 * w}], {r("t16")} offset:{3072 * w}')
            for k in range(4):
                A(f's_waitcnt lgkmcnt({6 - 2 * k})')
                ra, rb = 8 + 8 * k, 12 + 8 * k
                A(f'v_pk_add_f32 v[{ra}:{ra + 1}], v[{ra}:{ra + 1}], v[{rb}:{rb + 1}]')
                A(f'v_pk_max_i16 v{ra + 2}, v{ra + 2}, v{rb + 2}')
                if k:
                    A(f'v_pk_add_f32 v[8:9], v[8:9], v[{ra}:{ra + 1}]')
                    A(f'v_pk_max_i16 v10, v10, v{ra + 2}')
            A('v_mul_f32 v8, 0x37800000, v8')
            A('v_mul_f32 v9, 0x37800000, v9')
            self.key(10, 12)
            A('v_cvt_pk_bf16_f32 v8, v8, v9')
            A(f'ds_write2_b32 {r("Gw")}, v8, v10 offset0:0 offset1:{GOFF // 4}')
            A('s_waitcnt lgkmcnt(0)')
        L('L_nog')
        A('s_barrier')
        self.stamp()
        A('s_cmp_ge_u32 s3, 6')
        A('s_cbranch_scc1 L_nol1')
        NB = 8
        for b in range(NB):
            A(f'ds_read_b128 v[{8 + 4 * b}:{11 + 4 * b}], {r("G")} offset:{64 * b}')
        issued = NB
        for b in range(12):
            A(f's_waitcnt lgkmcnt({issued - b - 1})')
            g = 8 + 4 * (b % NB)
            c = '0' if b == 0 else 'v[40:43]'
            A(f'v_mfma_f32_16x16x32_bf16 v[40:43], v[{W1F + 4 * b}:{W1F + 4 * b + 3}], v[{g}:{g + 3}], {c}')
            if issued < 12:
                A(f'ds_read_b128 v[{g}:{g + 3}], {r("G")} offset:{64 * issued}')
                issued += 1
        A('s_nop 7')
        if p.get('fine') and p['stamps']:
            A('v_mov_b32 v7, v43')
            A('s_memrealtime s[62:63]')
        for k in range(4):
            A(f'v_mul_f32 v{8 + k}, 0, v{40 + k}')
            A(f'v_cmp_lt_f32 s[{52 + 2 * k}:{53 + 2 * k}], 0, v{40 + k}')
        A('s_mov_b32 exec_lo, 0x00030003')
        A('s_mov_b32 exec_hi, 0x00030003')
        for k in range(4):
            A(f'v_cndmask_b32 v{8 + k}, v{8 + k}, v{40 + k}, s[{52 + 2 * k}:{53 + 2 * k}]')
        A('v_cvt_pk_bf16_f32 v12, v8, v9')
        A('v_cvt_pk_bf16_f32 v13, v10, v11')
        A(f'ds_write_b64 {r("Hw")}, v[12:13]')
        A('s_mov_b64 exec, -1')
        A('s_waitcnt lgkmcnt(0)')
        L('L_nol1')
        A('s_barrier')
        if p.get('fine') and p['stamps']:
            A('s_memrealtime s[66:67]')
        A('s_cmp_ge_u32 s3, 4')
        A('s_cbranch_scc1 L_mlpback')
        for b in range(3):
            A(f'ds_read_b128 v[{8 + 4 * b}:{11 + 4 * b}], {r("H")} offset:{64 * b}')
        for b in range(3):
            A(f's_waitcnt lgkmcnt({2 - b})')
            c = '0' if b == 0 else 'v[20:23]'
            wf = W2F + 4 * b
            A(f'v_mfma_f32_16x16x32_bf16 v[20:23], v[{8 + 4 * b}:{11 + 4 * b}], v[{wf}:{wf + 3}], {c}')
        A('s_nop 7')
        if p.get('fine') and p['stamps']:
            A('v_mov_b32 v7, v23')
            A('s_memrealtime s[70:71]')
        A('v_cvt_pk_bf16_f32 v8, v20, v21')
        A('v_lshlrev_b32 v9, 16, v8')
        A('v_and_b32 v8, s48, v8')
        A('v_add_f32 v8, v8, v9')
        A('v_cvt_pk_bf16_f32 v8, v8, v8')
        A('v_and_b32 v8, s48, v8')
        A('v_mul_f32 v8, 0xbfb8aa3b, v8')
        A('v_exp_f32 v8, v8')
        A('s_mov_b64 exec, 0xffff')
        A('v_add_f32 v8, 1.0, v8')
        A('v_rcp_f32 v8, v8')
        A('s_nop 0')
        A('v_cvt_pk_bf16_f32 v8, v8, v8')
        A(f'v_and_or_b32 v40, v8, s48, {r("tag16")}')
        A(pubC if not p.get('force') else pubC + ' sc1')
        A('s_mov_b32 s12, 1')
        self.stamp()
        if not p['wb']:
            A(f's_sleep {p["dlyC"]}')
            A(pubC + ' sc1')
        A('s_mov_b64 exec, -1')
        L('L_last')
        A('s_branch L_join')

        if p['stamps']:
            L('L_stamps')
            A('s_waitcnt lgkmcnt(0)')
            A(f's_add_u32 s56, s{S_WS}, 0x8000000')
            A(f's_addc_u32 s57, s{S_WS + 1}, 0')
            A('s_lshl_b32 s58, s2, 4\n    s_add_u32 s58, s58, s3\n    s_lshl_b32 s58, s58, 7')
            A('s_mov_b64 exec, 1')
            A('v_mov_b32 v1, s58')
            A('s_getreg_b32 s59, hwreg(HW_REG_XCC_ID, 0, 4)')
            A('v_mov_b32 v4, s59\n    v_mov_b32 v5, 0')
            A('global_store_dwordx2 v1, v[4:5], s[56:57] offset:120')
            A('s_nop 1')
            A('v_mov_b32 v4, s15')
            A('global_store_dwordx2 v1, v[4:5], s[56:57] offset:112')
            A('s_nop 1')
            order = [0, 1, 2, 3, 4, 5, 8, 9, 10, 11, 6, 7]
            for i, k in enumerate(order):
                A(f'v_mov_b32 v4, s{S_ST + 2 * k}\n    v_mov_b32 v5, s{S_ST + 1 + 2 * k}')
                A(f'global_store_dwordx2 v1, v[4:5], s[56:57] offset:{8 * i}')
                A('s_nop 1')
            A('s_endpgm')
        o.append('.section .rodata,"a"')
        o.append('.p2align 6')
        o.append(f'.amdhsa_kernel {KNAME}')
        o.append('  .amdhsa_next_free_vgpr 256')
        o.append('  .amdhsa_next_free_sgpr 102')
        o.append('  .amdhsa_accum_offset 256')
        o.append('  .amdhsa_group_segment_fixed_size 0')
        o.append('  .amdhsa_kernarg_size 48')
        o.append('  .amdhsa_user_sgpr_count 2')
        o.append('  .amdhsa_user_sgpr_kernarg_segment_ptr 1')
        o.append('  .amdhsa_system_sgpr_workgroup_id_x 1')
        o.append('  .amdhsa_float_denorm_mode_32 3')
        o.append('.end_amdhsa_kernel')
        return '\n'.join(o) + '\n'

    def addr_prep(self):
        A, r = self.A, self.r
        kg, q3, l1, kc, rr, q7 = 'v44', 'v45', 'v46', 'v47', 'v48', 'v49'
        A(f'v_lshrrev_b32 {kg}, 4, v1')
        A(f'v_and_b32 {q3}, 3, v1')
        A(f'v_and_b32 {l1}, 1, v1')
        A(f'v_bfe_u32 {kc}, v1, 4, 1')
        A(f'v_bfe_u32 {rr}, v1, 2, 2')
        A(f'v_and_b32 {q7}, 0x70, v4')
        A('s_mul_i32 s45, s3, 3072')
        A(f's_add_u32 s45, s45, {L_P}')
        A('v_mul_u32_u24 v3, 48, v1')
        A(f'v_add_u32 {r("Pw")}, s45, v3')
        A(f'v_add_u32 {r("Qw")}, s45, v4')
        A('v_lshlrev_b32 v3, 4, v0')
        A(f'v_add_u32 {r("t16")}, {L_P}, v3')
        A('s_mul_i32 s49, s4, 98304')
        A('s_lshl_b32 s45, s5, 7')
        A('s_add_u32 s45, s45, s49')
        A('v_lshrrev_b32 v3, 3, v0')
        A(f'v_lshl_add_u32 v3, v3, 12, {q7}')
        A(f'v_add_u32 {r("pub")}, s45, v3')
        A('s_sub_u32 s51, s5, 8')
        A('s_lshl_b32 s45, s51, 12')
        A('s_add_u32 s45, s45, s49')
        A(f'v_add_u32 {r("in1")}, s45, v4')
        if self.p['tpos'] is not None:
            A('s_mul_i32 s45, s5, 3072')
            A('s_add_u32 s45, s45, s49')
            A('v_lshlrev_b32 v3, 6, v1')
            A('v_add_u32 v5, s45, v3')
            A(f's_xor_b32 s45, s4, {self.p.get("bx", 0)}')
            A('s_mul_i32 s45, s45, 24576')
            A('s_mul_i32 s43, s5, 768')
            A('s_add_u32 s45, s45, s43')
            A(f's_add_u32 s45, s45, {O_B - 48 * 64}')
            A('v_add_u32 v6, s45, v3')
            A('v_cmp_gt_u32 vcc, 48, v1')
            A('s_lshl_b32 s45, s4, 11')
            A('s_lshl_b32 s43, s5, 6')
            A('v_cndmask_b32 v5, v6, v5, vcc')
            A('s_add_u32 s45, s45, s43')
            A(f's_add_u32 s45, s45, {O_C}')
            A('v_mov_b32 v6, s45')
            A('v_cmp_gt_u32 vcc, 60, v1')
            A('s_nop 1')
            A(f'v_cndmask_b32 {r("tch")}, v6, v5, vcc')
        A('s_mul_i32 s45, s4, 3072')
        A('s_lshl_b32 s49, s51, 7')
        A('s_add_u32 s45, s45, s49')
        A(f's_add_u32 s45, s45, {O_B}')
        A('v_lshrrev_b32 v3, 3, v1')
        A('v_mul_u32_u24 v3, 24576, v3')
        A(f'v_add3_u32 {r("out2")}, v3, {q7}, s45')
        if self.p.get('direct'):
            A('s_mul_i32 s45, s4, 24576')
            A('s_lshl_b32 s49, s3, 9')
            A('s_add_u32 s45, s45, s49')
            A(f's_add_u32 s45, s45, {O_B}')
            A('v_lshrrev_b32 v3, 5, v1')
            A('v_mul_u32_u24 v3, 2560, v3')
            A(f'v_add3_u32 {r("in2")}, v3, v4, s45')
        else:
            A('s_lshl_b32 s45, s4, 3')
            A('s_add_u32 s45, s45, s3')
            A('s_mul_i32 s45, s45, 3072')
            A(f's_add_u32 s45, s45, {O_B}')
            A(f'v_add_u32 {r("in2")}, s45, v4')
        A('s_lshl_b32 s45, s4, 11')
        A(f's_add_u32 s45, s45, {O_C}')
        A(f'v_add_u32 {r("in3")}, s45, v4')
        A('s_lshl_b32 s49, s5, 2')
        A('s_add_u32 s49, s49, s3')
        A('s_lshl_b32 s49, s49, 6')
        A('s_add_u32 s45, s45, s49')
        A(f'v_lshl_add_u32 {r("out3")}, v1, 2, s45')
        if self.p.get('direct'):
            A('v_and_b32 v3, 0x19, v1')
            A('s_lshl_b32 s45, s3, 5')
            A('v_add_u32 v3, s45, v3')
        else:
            A('v_and_b32 v3, 0x1f9, v0')
        A('v_bfe_u32 v5, v0, 1, 1')
        A('v_lshl_add_u32 v3, v5, 2, v3')
        A('v_bfe_u32 v5, v0, 2, 1')
        A('v_lshl_add_u32 v3, v5, 1, v3')
        A('v_lshlrev_b32 v3, 2, v3')
        A(f'v_add_u32 {r("Gw")}, {L_G}, v3')
        A(f'v_mul_u32_u24 v3, {GOFF}, {l1}')
        A(f'v_lshl_add_u32 v3, {kg}, 4, v3')
        A(f'v_add_u32 {r("G")}, {L_G}, v3')
        A(f'v_mul_u32_u24 v3, 192, {l1}')
        A(f'v_add_u32 v3, {L_H}, v3')
        A(f'v_lshl_add_u32 {r("H")}, {kg}, 4, v3')
        A(f'v_lshl_add_u32 v3, {kc}, 4, v3')
        A('v_lshrrev_b32 v5, 5, v1')
        A('v_lshl_add_u32 v3, v5, 3, v3')
        A('s_lshl_b32 s45, s3, 5')
        A(f'v_add_u32 {r("Hw")}, s45, v3')
        A(f'v_add_u32 {r("Sw")}, {L_S}, v4')
        A('v_mul_u32_u24 v3, 24, v1')
        A(f'v_add_u32 {r("S")}, {L_S}, v3')
        if self.p.get('cons'):
            n_pub, n_oth = self.p['cons']
            A('s_min_u32 s44, s3, 3')
            A(f's_mul_i32 s44, s44, {n_pub - n_oth}')
            A(f's_mul_i32 s45, s3, {n_oth}')
            A('s_add_u32 s44, s44, s45')
            A('s_lshl_b32 s45, s44, 5')
            A('s_mul_i32 s44, s44, 768')
            A('s_and_b32 s45, s45, 32')
            A(f'v_xor_b32 {r("vW1")}, s45, v4')
            A(f'v_xor_b32 {r("vW1b")}, 32, {r("vW1")}')
        else:
            A('s_and_b32 s45, s45, 32')
            A(f'v_xor_b32 {r("vW1")}, s45, v4')
        A('v_lshrrev_b32 v3, 3, v1')
        A('v_mul_u32_u24 v3, 768, v3')
        A('s_lshl_b32 s45, s5, 7')
        A(f'v_add3_u32 {r("vW2")}, v3, {q7}, s45')
        A(f'v_lshl_add_u32 v6, {kc}, 2, {rr}')
        A('v_lshl_add_u32 v7, v5, 4, v6')
        A(f'v_xor_b32 v3, s3, {kc}')
        A('v_lshlrev_b32 v3, 5, v3')
        A(f'v_lshl_add_u32 v3, {q3}, 3, v3')
        A('v_mul_u32_u24 v5, 192, v7')
        A(f'v_add_u32 {r("a1")}, v3, v5')
        A(f'v_add_u32 {r("a1b")}, {6 * 6144}, {r("a1")}')
        A('v_lshlrev_b32 v5, 7, v7')
        A(f'v_lshl_add_u32 v5, {q3}, 3, v5')
        A('s_and_b32 s45, s3, 3')
        A('s_lshl_b32 s45, s45, 5')
        A(f's_add_u32 s45, s45, {L_W2}')
        A(f'v_add_u32 {r("a2")}, s45, v5')


if __name__ == '__main__':
    kw = eval('dict(%s)' % (sys.argv[2] if len(sys.argv) > 2 else ''))
    open(sys.argv[1], 'w').write(Gen(**kw).build())
```

```python
import sys

KNAME = 'standalone__channel_attn_cbam__vision_kernel'
HEADER = """; Kernarg layout for this problem (48 bytes, ptrs only, base s[0:1]):
"""

XBYTES = 50331648
WBYTES = 73728
O_A = 0
O_B = 786432
O_C = O_B + 196608
WS_USE = 1 << 20
L_W1, L_W2 = 0, 73728
L_P = 90112
L_G, L_H, L_S = 114688, 116736, 117248
GOFF = 832
LDS_BYTES = 118784
S_X, S_W1, S_W2, S_OUT, S_DBG, S_WS = 16, 20, 24, 28, 32, 36
ACC, TMP, W1F, W2F, DATA = 8, 20, 44, 92, 104
S_U, S_ST = 60, 76
L_T = 116480
XOR3 = 'bitop3:0x96'


class Gen:
    def __init__(self, **kw):
        self.p = dict(D=8, lpol='nt', spol='sc1', stamps=False, npos=6, ipos=26, wpf=28, tpos=28, half=True, thr=(0, 0),
                      spin=1 << 20, dlyA=16, dlyC=10, nwg=0, wb=64, stag=(0, 0, 0), uni=True, iuni=True, twave=5, numa=True, NS=3, tilt=(1, 3), gap=40, gapx=30, De=5, direct=True, hoist=False, bx=1, B=32, R=32)
        self.p.update(kw)
        self.o = []
        self.vm = []
        self.nstamp = 0
        self.names = {}

    def A(self, s):
        self.o.append('    ' + s)

    def L(self, s):
        self.o.append(s + ':')

    def C(self, s):
        self.o.append('    ; ' + s)

    def srd(self, b):
        return f's[{b}:{b + 3}]'

    def issue(self, tag, text):
        self.A(text)
        self.vm.append(tag)

    def wait_for(self, tag):
        n = len(self.vm) - 1 - self.vm.index(tag)
        assert n <= 63
        self.A(f's_waitcnt vmcnt({n})')

    def stamp(self):
        self.npos = getattr(self, 'npos', -1) + 1
        amp = self.p.get('amp')
        if amp is not None and self.npos == 0:
            self.A('s_memrealtime s[90:91]')
            self.A('s_mov_b32 s88, 0')
            self.A('s_mov_b32 s92, 0')
        if amp is not None and self.npos == amp[0]:
            self.A('s_memrealtime s[88:89]')
        if amp is not None and self.npos == amp[1]:
            self.A('s_memrealtime s[92:93]')
        if self.p['stamps']:
            k = self.nstamp
            assert k < 13
            self.A(f's_memrealtime s[{S_ST + 2 * k}:{S_ST + 1 + 2 * k}]')
            self.nstamp += 1

    def d(self, j):
        return f'v[{DATA + 4 * j}:{DATA + 4 * j + 2}]'

    def r(self, name):
        if name not in self.names:
            self.names[name] = len(self.names)
            assert self.names[name] < 32
        return f'v{DATA + 4 * self.names[name] + 3}'

    def ws_load4(self, reg, addr, off):
        if isinstance(off, str):
            return f'buffer_load_dwordx4 v[{reg}:{reg + 3}], {addr}, {self.srd(S_WS)}, {off} offen sc1'
        o = f' offset:{off}' if off else ''
        return f'buffer_load_dwordx4 v[{reg}:{reg + 3}], {addr}, {self.srd(S_WS)}, 0 offen{o} sc1'

    def check_rec(self, base, n, pend):
        A = self.A
        t = 38
        for i in range(n):
            x = base + 4 * i
            A(f's_waitcnt vmcnt({pend + n - 1 - i})')
            A(f'v_bitop3_b32 v{t + i}, v{x}, v{x + 1}, v{x + 2} {XOR3}')
            A(f'v_bitop3_b32 v{t + i}, v{t + i}, v{x + 3}, {self.r("tag")} {XOR3}')
            if i == 2:
                A(f'v_or3_b32 v{t}, v{t}, v{t + 1}, v{t + 2}')
            if i == 3:
                A(f'v_or_b32 v{t}, v{t}, v{t + 3}')
        A(f'v_cmp_ne_u32 vcc, 0, v{t}')

    def check_scale(self, base, n, pend):
        A = self.A
        for i in range(2):
            A(f's_waitcnt vmcnt({pend + 1 - i})')
            for k in range(4):
                A(f'v_xor_b32 v{base + 4 * i + k}, s{6 + k}, v{base + 4 * i + k}')
            if self.p.get('spec', True):
                A(f'ds_write_b128 {self.r("Sw")}, v[{base + 4 * i}:{base + 4 * i + 3}] offset:{768 * i}')
            if i == 0:
                A(f'v_or3_b32 v38, v{base}, v{base + 1}, v{base + 2}')
            else:
                A(f'v_or3_b32 v38, v38, v{base + 3}, v{base + 4}')
                A(f'v_or3_b32 v39, v{base + 5}, v{base + 6}, v{base + 7}')
                A('v_or_b32 v38, v38, v39')
        A('v_cmp_ne_u16 vcc, 0, v38')

    def poll(self, lab, addr, offs, sets, check, success, stagger, between=None):
        A, L = self.A, self.L
        n = len(offs)

        def loads(base):
            for i, off in enumerate(offs):
                t = self.ws_load4(base + 4 * i, addr, off)
                pol = self.p.get('ppol', {}).get(lab[-1])
                A(t if pol is None else t.replace(' sc1', ' ' + pol))
        A(f's_mov_b32 s50, {self.p["spin"] - 1}')
        if lab[-1] in self.p.get('sel', ''):
            base = sets[0]
            for i in range(n):
                A(f's_mov_b64 s[{52 + 2 * i}:{53 + 2 * i}], -1')
            L(lab)
            for i, off in enumerate(offs):
                A(f's_or_b64 exec, s[{52 + 2 * i}:{53 + 2 * i}], 1')
                A(self.ws_load4(base + 4 * i, addr, off))
            A('s_mov_b64 exec, -1')
            for i in range(n):
                x = base + 4 * i
                A(f's_waitcnt vmcnt({n - 1 - i})')
                A(f'v_bitop3_b32 v38, v{x}, v{x + 1}, v{x + 2} {XOR3}')
                A(f'v_xor_b32 v38, v38, v{x + 3}')
                A(f'v_cmp_ne_u32 s[{52 + 2 * i}:{53 + 2 * i}], v38, {self.r("tag")}')
                if i == 2:
                    A('s_or_b64 s[46:47], s[52:53], s[54:55]')
            A('s_or_b64 s[46:47], s[46:47], s[56:57]')
            A('s_or_b64 s[46:47], s[46:47], s[58:59]')
            A(f's_cbranch_scc0 {lab}done')
            self.again(lab)
            L(lab + 'done')
            success(base)
            return
        if between:
            loads(sets[0])
            between()
            L(lab)
            check(sets[0], n, 0)
            A(f's_cbranch_vccz {lab}done')
            self.again(lab, lambda: loads(sets[0]))
            L(lab + 'done')
            success(sets[0])
            return
        if not stagger:
            L(lab)
            loads(sets[0])
            check(sets[0], n, 0)
            A(f's_cbranch_vccz {lab}done')
            self.again(lab)
            L(lab + 'done')
            success(sets[0])
            return
        loads(sets[0])
        A(f's_sleep {stagger}')
        L(lab)
        loads(sets[1])
        check(sets[0], n, n)
        A(f's_cbranch_vccz {lab}x')
        loads(sets[0])
        check(sets[1], n, n)
        A(f's_cbranch_vccz {lab}y')
        self.again(lab)
        L(lab + 'y')
        k = self.nstamp
        success(sets[1])
        A(f's_branch {lab}done')
        L(lab + 'x')
        self.nstamp = k
        success(sets[0])
        L(lab + 'done')

    def again(self, lab, reissue=None):
        A = self.A
        if self.p['wb']:
            A(f's_and_b32 s51, s50, {self.p["wb"] - 1}')
            A(f's_cbranch_scc1 {lab}nowb')
            self.C('still waiting: push plain-stored records of this XCD out, a reader may sit behind another L2')
            A('buffer_wbl2 sc1')
            A('s_waitcnt vmcnt(0)')
            A('buffer_inv sc1')
            self.L(lab + 'nowb')
        if reissue:
            reissue()
        A('s_sub_u32 s50, s50, 1')
        A(f's_cbranch_scc0 {lab}')

    def seal(self):
        self.A(f'v_bitop3_b32 v11, v8, v9, v10 {XOR3}')
        self.A(f'v_xor_b32 v11, v11, {self.r("tag")}')

    def key(self, x, t):
        self.A(f'v_pk_ashrrev_i16 v{t}, 15, v{x} op_sel_hi:[0,1]')
        self.A(f'v_bitop3_b32 v{x}, v{x}, v{t}, s49 bitop3:0x78')

    def stage_weights(self):
        A, r = self.A, self.r
        A('s_mov_b32 exec_hi, 0xffff')
        for i in range(12):
            A('s_mul_i32 s44, s3, 768' if i == 0 else 's_addk_i32 s44, 6144')
            A('s_mov_b32 m0, s44')
            A('s_nop 0')
            A(f'buffer_load_dwordx4 {r("vW1")}, {self.srd(S_W1)}, s44 offen lds')
        A('s_mov_b64 exec, -1')
        for k in range(2):
            if k == 0:
                A('s_lshl_b32 s45, s3, 10')
                A(f's_add_u32 m0, s45, {L_W2}')
                A('s_mul_i32 s44, s3, 6144')
            else:
                A('s_add_u32 m0, m0, 8192')
                A('s_add_u32 s44, s44, 49152')
            A(f'buffer_load_dwordx4 {r("vW2")}, {self.srd(S_W2)}, s44 offen lds')

    def stage_one(self, i):
        A, r = self.A, self.r
        if i < 12:
            A('s_mul_i32 s44, s3, 768' if i == 0 else 's_addk_i32 s44, 6144')
            A('s_mov_b32 m0, s44')
            A('s_mov_b32 exec_hi, 0xffff')
            self.issue(f'W{i}', f'buffer_load_dwordx4 {r("vW1")}, {self.srd(S_W1)}, s44 offen lds')
            A('s_mov_b32 exec_hi, -1')
        else:
            if i == 12:
                A('s_lshl_b32 s45, s3, 10')
                A(f's_add_u32 m0, s45, {L_W2}')
                A('s_mul_i32 s44, s3, 6144')
            else:
                A('s_add_u32 m0, m0, 8192')
                A('s_add_u32 s44, s44, 49152')
            self.issue(f'W{i}', f'buffer_load_dwordx4 {r("vW2")}, {self.srd(S_W2)}, s44 offen lds')

    def probe(self):
        A, L, C = self.A, self.L, self.C
        L('L_probe')
        C('ranks 6, 7 of every group: two write-through stores into d_out (overwritten later), acknowledged in order;')
        C('a gap between the two acknowledgements says that the first 8-KiB block is the one homed on this side')
        A('v_readfirstlane_b32 s3, v0')
        A(f's_load_dwordx4 s[{S_OUT}:{S_OUT + 3}], s[0:1], 24')
        A('s_memrealtime s[10:11]')
        A('s_and_b32 s4, s2, 7')
        A('s_cmp_lg_u32 s3, 0')
        A('s_cbranch_scc1 L_probewait')
        A('s_and_b32 s44, s5, 1')
        A('s_xor_b32 s44, s44, 1')
        A('s_lshl_b32 s42, s44, 25')
        A('s_lshl_b32 s43, s4, 14')
        A('s_add_u32 s42, s42, s43')
        A('s_add_u32 s43, s42, 8192')
        A('v_mov_b32 v5, 0')
        A('s_mov_b64 exec, 1')
        A('s_waitcnt lgkmcnt(0)')
        A(f's_mov_b64 s[{S_DBG}:{S_DBG + 1}], s[{S_OUT + 2}:{S_OUT + 3}]')
        A(f's_mov_b32 s{S_OUT + 2}, {XBYTES}')
        A(f's_mov_b32 s{S_OUT + 3}, 0x20000')
        A(f'buffer_store_dword v5, v5, {self.srd(S_OUT)}, s42 offen sc1')
        A(f'buffer_store_dword v5, v5, {self.srd(S_OUT)}, s43 offen sc1')
        A(f'buffer_load_dword v6, v5, {self.srd(S_X)}, s42 offen nt')
        A(f'buffer_load_dword v7, v5, {self.srd(S_X)}, s43 offen nt')
        A('s_barrier')
        A('s_cmp_lg_u32 s2, 56')
        A('s_cbranch_scc1 L_nononce')
        C('one wave of the grid publishes the nonce of this launch (both words non-zero)')
        A('s_or_b32 s10, s10, 1')
        A('s_or_b32 s11, s11, 0x80000000')
        A(f's_atomic_swap_x2 s[10:11], s[{S_DBG}:{S_DBG + 1}], 0 glc')
        L('L_nononce')
        A('s_mov_b64 exec, -1')
        A('s_getreg_b32 s42, hwreg(HW_REG_XCC_ID, 2, 1)')
        A('s_mul_i32 s42, s42, 0x1010100')
        A('s_lshl_b32 s44, s44, 2')
        A('s_add_u32 s44, s44, 8')
        for k in range(4):
            A(f's_waitcnt vmcnt({3 - k})')
            A(f's_memtime s[{52 + 2 * k}:{53 + 2 * k}]')
        A('s_waitcnt lgkmcnt(0)')
        A('s_sub_u32 s43, s54, s52')
        A('s_sub_u32 s58, s58, s56')
        if self.p.get('dbgprobe'):
            A('s_sub_u32 s45, s2, 48')
            A('s_lshl_b32 s45, s45, 2')
            A('s_add_u32 s45, s45, 64')
            A('s_mov_b32 s34, 256')
            A('s_mov_b32 s35, 0x20000')
            A('v_mov_b32 v10, s58')
            A(f'buffer_store_dword v10, v5, {self.srd(S_DBG)}, s45 offen sc1')
        A(f's_cmp_lt_u32 s43, {self.p["gap"]}')
        A('s_cselect_b32 s43, 0x101, 1')
        A('s_xor_b32 s56, s43, s42')
        A(f's_cmp_lt_u32 s58, {self.p["gapx"]}')
        A('s_cselect_b32 s43, 0x1000000, 0')
        A('s_xor_b32 s56, s56, s43')
        A('s_lshl_b32 s56, s56, s4')
        A(f's_atomic_or s56, s[{S_DBG}:{S_DBG + 1}], s44 glc')
        A('s_branch L_probeback2')
        L('L_probewait')
        A('s_barrier')
        A('s_branch L_probeback')

    def select(self):
        A, L, C = self.A, self.L, self.C
        self.wait_for('N')
        self.tagged = 1
        self.tags()
        A('s_cmp_eq_u32 s42, 0')
        A('s_cbranch_scc1 L_nonce')
        L('L_nonceback')
        C('majorities of the votes; the piece of this pair; the side its lower group sits on')
        NS = self.p['NS']

        def maj(dst, src, pos):
            A(f's_bfe_u32 {dst}, {src}, {0x80000 | pos:#x}')
            A(f's_bcnt1_i32_b32 {dst}, {dst}')
            A(f's_cmp_gt_u32 {dst}, 4')
            A(f's_cselect_b32 {dst}, 1, 0')
        n = 4 * NS
        HALF = sum(1 << i for i in range(n) if i % 2 == 1)
        num, den = self.p['tilt']
        TILT = sum(1 << i for i in range(n) if ((i + 1) * num) // den != (i * num) // den)
        maj('s42', 's14', 8)
        maj('s43', 's14', 24)
        A('s_xor_b32 s41, s42, s43')
        maj('s52', 's15', 8)
        maj('s43', 's15', 24)
        A('s_xor_b32 s53, s52, s43')
        A('s_and_b32 s44, s4, 3')
        A('s_add_u32 s44, s44, 16')
        A('s_lshr_b32 s44, s14, s44')
        A('s_lshr_b32 s45, s4, 2')
        A('s_xor_b32 s44, s44, s45')
        A('s_andn2_b32 s46, s2, 4')
        A('s_cmp_lt_u32 s46, 168')
        A('s_cselect_b32 s42, s42, s52')
        A('s_cselect_b32 s43, s41, s53')
        A('s_cmp_lg_u32 s41, 0')
        A(f's_mov_b32 s52, {HALF}')
        A(f's_cselect_b32 s52, {TILT}, s52')
        A('s_and_b32 s41, s41, s53')
        if self.p.get('tilt2'):
            nu2, de2 = self.p['tilt2']
            T2 = sum(1 << i for i in range(n) if ((i + 1) * nu2) // de2 != (i * nu2) // de2)
            if self.p.get('pat2') is not None:
                T2 = self.p['pat2']
            A(f's_cselect_b32 s52, {T2}, s52')
        A('s_mul_i32 s43, s43, s52')
        A('s_xor_b32 s42, s42, s44')
        A('s_bitcmp1_b32 s42, 0')
        A('s_cselect_b32 s42, -1, 0')
        A('s_xor_b32 s43, s43, s42')
        A('s_mul_i32 s45, s46, 196608')
        i = 0
        for sg in range(4 - NS, 4):
            for m in (0, 3):
                for rho in range(2):
                    d = f's{S_U + i}'
                    A(f's_add_u32 {d}, s45, {rho * 4 * 196608 + sg * 49152 + m * 6144}')
                    A(f's_lshr_b32 s47, {d}, {21 - i}')
                    A('s_xor_b32 s47, s47, s43')
                    A(f's_bitcmp1_b32 s47, {i}')
                    A('s_cselect_b32 s47, 24576, 0')
                    A(f's_add_u32 {d}, {d}, s47')
                    i += 1

    def tags(self):
        A, r = self.A, self.r
        A('v_readfirstlane_b32 s10, v34')
        A('v_readfirstlane_b32 s11, v35')
        if self.p['numa']:
            A('v_readfirstlane_b32 s14, v36')
            A('v_readfirstlane_b32 s15, v37')
        A('v_and_b32 v36, 1, v1')
        A('v_cmp_eq_u32 vcc, 1, v36')
        A('v_and_b32 v37, 7, v1')
        A('v_lshlrev_b32 v36, 4, v36')
        A('v_cndmask_b32 v38, v34, v35, vcc')
        A(f'v_add_u32 {r("tag")}, v38, v37')
        A('v_and_b32 v37, 2, v1')
        A('v_cmp_eq_u32 vcc, 2, v37')
        A('s_and_b32 s6, s10, 0xffff')
        A('s_lshr_b32 s7, s10, 16')
        A('v_cndmask_b32 v38, v34, v35, vcc')
        A(f'v_bfe_u32 {r("tag16")}, v38, v36, 16')
        A('s_and_b32 s8, s11, 0xffff')
        A('s_lshr_b32 s9, s11, 16')
        A('s_min_u32 s42, s10, s11')
        if self.p['numa']:
            A('s_and_b32 s43, s14, s15')
            A('s_and_b32 s43, s43, 0xff')
            A('s_cmp_eq_u32 s43, 0xff')
            A('s_cselect_b32 s42, s42, 0')

    def build(self):
        p = self.p
        A, L, C, r = self.A, self.L, self.C, self.r
        D, B, R = p['D'], p['B'], p['R']
        assert B % 2 == 0 and R - B <= 16 and DATA + 4 * R <= 256
        NDYN = 256 - 8 * B
        o = self.o
        o.append(HEADER.rstrip())
        o.append(f'; @launch grid=(256,1,1) block=(512,1,1) lds={LDS_BYTES}')
        o.append('.amdgcn_target "amdgcn-amd-amdhsa--gfx950"')
        o.append('.text')
        o.append(f'.globl {KNAME}')
        o.append('.p2align 8')
        o.append(f'.type {KNAME},@function')
        L(KNAME)
        self.stamp()
        A(f's_load_dwordx2 s[{S_X}:{S_X + 1}], s[0:1], 0')
        G = p.get('G', 1)
        mp = p.get('map')
        if mp is None:
            A('v_mul_u32_u24 v2, 12, v0')
        else:
            wr = mp.get('wr', 1)
            A('v_lshrrev_b32 v3, 6, v0')
            A('v_mul_u32_u24 v2, 12, v0')
            if wr > 1:
                A(f'v_mul_u32_u24 v3, {(wr - 1) * 768}, v3')
                A('v_add_u32 v2, v2, v3')
        self.jj = 0
        def base(g):
            self.jj = 0
            if mp is not None:
                perm = mp.get('perm')
                if perm == 'xcd':
                    A('s_and_b32 s40, s2, 7')
                    A('s_lshl_b32 s40, s40, 5')
                    A('s_lshr_b32 s41, s2, 3')
                    A('s_add_u32 s40, s40, s41')
                    A('s_cmp_ge_u32 s2, 256')
                    A('s_cselect_b32 s40, s2, s40')
                    A('s_mul_i32 s40, s40, 196608')
                else:
                    A('s_mul_i32 s40, s2, 196608')
                if mp.get('rot'):
                    A('s_add_u32 s41, s40, 196608')
                    sh, mul = mp['rot']
                    A(f's_lshr_b32 s43, s2, {sh}')
                    A(f's_mul_i32 s43, s43, {mul}')
                    A(f's_and_b32 s43, s43, {32 // mp.get("wr", 1) - 1}')
                    A(f's_mul_i32 s43, s43, {6144 * mp.get("wr", 1)}')
                    A('s_add_u32 s40, s40, s43')
            elif g == 1:
                A('s_mul_i32 s40, s2, 196608')
            else:
                A(f's_and_b32 s40, s2, {g - 1}')
                A('s_mul_i32 s40, s40, -31')
                A('s_lshl_b32 s41, s2, 5')
                A('s_add_u32 s40, s40, s41')
                A('s_mul_i32 s40, s40, 6144')
                A(f's_mov_b32 s41, {g * 6144}')
        def adv(g):
            self.jj += 1
            if mp is not None:
                wr = mp.get('wr', 1)
                if self.jj % wr:
                    A('s_addk_i32 s40, 768')
                else:
                    A(f's_add_u32 s40, s40, {6144 * wr - (wr - 1) * 768}')
                    if mp.get('rot'):
                        A('s_cmp_ge_u32 s40, s41')
                        A('s_cselect_b32 s43, 196608, 0')
                        A('s_sub_u32 s40, s40, s43')
                return
            A('s_addk_i32 s40, 6144' if g == 1 else 's_add_u32 s40, s40, s41')
        base(G)
        A(f's_mov_b32 s{S_X + 2}, {XBYTES}')
        A(f's_mov_b32 s{S_X + 3}, 0x20000')
        numa = p['numa']
        NS = p['NS']
        S = 32 - 4 * NS
        NEUTRAL = [u for u in range(32) if u < 8 * (4 - NS) or u % 8 in (1, 2, 5, 6)]
        assert len(NEUTRAL) == S
        if numa:
            A('s_lshr_b32 s5, s2, 3')
            A('s_or_b32 s4, s5, 1')
            A('s_cmp_eq_u32 s4, 7')
            A('s_cbranch_scc1 L_probe')
            L('L_probeback')
        A('s_waitcnt lgkmcnt(0)')
        L('L_probeback2')

        def slot(j):
            if j >= S:
                return f's{S_U + j - S}'
            if j == 0 and NEUTRAL[0]:
                A(f's_addk_i32 s40, {6144 * NEUTRAL[0]}')
            if j:
                A(f's_addk_i32 s40, {6144 * (NEUTRAL[j] - NEUTRAL[j - 1])}')
            return 's40'

        def request():
            A('s_mov_b64 exec, 1')
            A(f'ds_add_rtn_u32 v42, {r("T")}, v43')
            A('s_mov_b64 exec, -1')

        def issue_x(j):
            if numa:
                if j == S:
                    self.select()
                so = slot(j)
            elif j < B:
                if j:
                    adv(G)
                so = 's40'
            else:
                so = f's{S_U + j - B}'
                A('s_waitcnt lgkmcnt(0)')
                A(f'v_readfirstlane_b32 s14, v42')
                if j + 1 < R:
                    request()
                A(f's_mul_i32 {so}, s14, 768')
                A(f's_add_u32 {so}, {so}, s41')
                A(f's_cmp_lt_u32 s14, {NDYN}')
                A(f's_cselect_b32 {so}, {so}, 2.0')
                A('s_addc_u32 s15, s15, 0')
            self.issue(f'X{j}', f'buffer_load_dwordx3 {self.d(j)}, v2, {self.srd(S_X)}, {so} offen {p["lpol"]}'.rstrip())
            if j == B - 1 and R > B:
                request()

        for j in range(D):
            issue_x(j)
            if j == 0:
                A(f's_load_dwordx2 s[{S_DBG}:{S_DBG + 1}], s[0:1], 32')
                if not numa:
                    A('s_memrealtime s[10:11]')
            if j == 1 and R > B:
                A(f'v_mov_b32 {r("T")}, {L_T}')
                A('v_mov_b32 v43, 0')
                A(f'ds_write_b32 {r("T")}, v43')
                A('s_waitcnt lgkmcnt(0)')
                A('s_barrier')
        self.stamp()
        if numa:
            A('s_branch L_noprobe')
            self.probe()
            L('L_noprobe')
        A('s_cmp_ge_u32 s2, 256')
        A('s_cbranch_scc1 L_end')
        A('v_lshrrev_b32 v3, 6, v0')
        A('v_and_b32 v1, 63, v0')
        A(f's_mov_b32 s{S_DBG + 2}, 256')
        A('v_readfirstlane_b32 s3, v3')
        A(f's_mov_b32 s{S_DBG + 3}, 0x20000')
        A(f'v_mov_b32 {r("zero")}, 0')
        if not numa:
            A('s_lshl_b32 s42, s2, 3')
            A('s_add_u32 s42, s42, s3')
            A(f's_cmp_lg_u32 s42, {p["nwg"] * 8}')
            A('s_waitcnt lgkmcnt(0)')
            A('s_cbranch_scc1 L_nononce')
            C('one wave of the grid publishes the nonce of this launch (both words non-zero)')
            A('s_or_b32 s10, s10, 1')
            A('s_or_b32 s11, s11, 0x80000000')
            A('v_mov_b32 v34, s10')
            A('v_mov_b32 v35, s11')
            A('s_mov_b64 exec, 1')
            A(f'buffer_store_dwordx2 v[34:35], {r("zero")}, {self.srd(S_DBG)}, 0 offen sc1')
            A('s_mov_b64 exec, -1')
            L('L_nononce')
        A(f's_load_dwordx2 s[{S_WS}:{S_WS + 1}], s[0:1], 40')
        A(f's_load_dwordx2 s[{S_W1}:{S_W1 + 1}], s[0:1], 8')
        A(f's_load_dwordx2 s[{S_W2}:{S_W2 + 1}], s[0:1], 16')
        A(f's_load_dwordx2 s[{S_OUT}:{S_OUT + 1}], s[0:1], 24')
        A(f's_mov_b32 s{S_WS + 2}, {WS_USE}')
        A(f's_mov_b32 s{S_WS + 3}, 0x20000')
        A(f's_mov_b32 s{S_W1 + 2}, {WBYTES}')
        A(f's_mov_b32 s{S_W1 + 3}, 0x20000')
        A(f's_mov_b32 s{S_W2 + 2}, {WBYTES}')
        A(f's_mov_b32 s{S_W2 + 3}, 0x20000')
        A(f's_mov_b32 s{S_OUT + 2}, {XBYTES}')
        A(f's_mov_b32 s{S_OUT + 3}, 0x20000')
        A('s_mov_b32 s48, 0xffff0000')
        A('s_mov_b32 s12, 0')
        if R > B:
            A('v_mov_b32 v43, 1')
            A('s_mov_b32 s15, 0')
            A('s_lshl_b32 s41, s2, 8')
            A('s_sub_u32 s41, s41, s3')
            A(f's_add_u32 s41, s41, {8 * B}')
            A('s_mul_i32 s41, s41, 768')
        A('s_getreg_b32 s13, hwreg(HW_REG_XCC_ID, 0, 1)')
        A('s_and_b32 s4, s2, 7')
        A('s_lshr_b32 s5, s2, 3')
        A('v_lshlrev_b32 v4, 4, v1')
        prep = []
        save, self.o = self.o, prep
        self.addr_prep()
        self.o = save
        o = self.o

        def unpack(j, t):
            for q in range(3):
                A(f'v_lshlrev_b32 v{t + 2 * q}, 16, v{DATA + 4 * j + q}')
                A(f'v_and_b32 v{t + 2 * q + 1}, s48, v{DATA + 4 * j + q}')

        def pair(j, extra=None):
            for jj in (j, j + 1):
                self.wait_for(f'X{jj}')
                if not numa and 'N' in self.vm and self.vm.index('N') < self.vm.index(f'X{jj}') and not getattr(self, 'tagged', 0):
                    self.tagged = 1
                    self.tags()
                t = TMP + 6 * (jj & 1)
                unpack(jj, t)
                if jj + D < R:
                    de = p.get('De')
                    if isinstance(de, tuple):
                        de = de[jj % len(de)]
                    if de:
                        A('s_cmp_lg_u32 s13, 0')
                        A(f's_cbranch_scc1 L_lt{jj}')
                        self.wait_for(f'X{jj + D - de}')
                        L(f'L_lt{jj}')
                    issue_x(jj + D)
                if extra:
                    extra(jj)
                for q in range(3):
                    a = ACC + 4 * q
                    if jj == 1:
                        A(f'v_pk_add_f32 v[{a}:{a + 1}], v[{TMP + 2 * q}:{TMP + 2 * q + 1}], v[{t + 2 * q}:{t + 2 * q + 1}]')
                    elif jj > 1:
                        A(f'v_pk_add_f32 v[{a}:{a + 1}], v[{a}:{a + 1}], v[{t + 2 * q}:{t + 2 * q + 1}]')
            for q in range(3):
                for h in range(2):
                    a = ACC + 4 * q + 2 + h
                    if j == 0:
                        A(f'v_max_f32 v{a}, v{TMP + 2 * q + h}, v{TMP + 6 + 2 * q + h}')
                    else:
                        A(f'v_max3_f32 v{a}, v{a}, v{TMP + 2 * q + h}, v{TMP + 6 + 2 * q + h}')

        def uni(j):
            if not p.get('uni'):
                return
            if j == p['tpos']:
                C('touch 1/32 of the lines this group will poll (lanes of one wave; everything else is out of range)')
                self.issue('PT', f'buffer_load_dword {r("junk")}, {r("tch")}, {self.srd(S_WS)}, 0 offen sc1')
            if j == p['wpf']:
                C('touch 1/32 of the weights')
                self.issue('PW1', f'buffer_load_dword {r("junk")}, {r("wtc")}, {self.srd(S_W1)}, 0 offen')
                self.issue('PW2', f'buffer_load_dword {r("junk")}, {r("wtc")}, {self.srd(S_W2)}, 0 offen')
            if p.get('iuni') and j == p['ipos']:
                C('read the kernel text behind the load loop once (1 KiB per wave), to pull it into L2')
                A('s_getpc_b64 s[46:47]')
                L('L_pc')
                A('s_lshl_b32 s42, s3, 10')
                A('s_add_u32 s42, s42, L_acc - L_pc')
                A('v_lshl_add_u32 v6, v1, 6, s42')
                A('v_min_u32 v6, L_last - L_pc, v6')
                A('v_mov_b32 v7, s47')
                A('v_add_co_u32 v6, vcc, s46, v6')
                A('s_mov_b64 exec, 0xffff')
                A('s_nop 0')
                A('v_addc_co_u32 v7, vcc, 0, v7, vcc')
                self.issue('PI', f'global_load_dword {r("junk")}, v[6:7], off')
                A('s_mov_b64 exec, -1')

        nprep = p.get('prepsteps', 1)
        chunk = -(-len(prep) // nprep)
        for j in range(0, B, 2):
            if prep:
                o.extend(prep[:chunk])
                prep = prep[chunk:]
                if not prep:
                    A('s_mov_b32 s49, 0x7fff7fff')
                    A('s_waitcnt lgkmcnt(0)')
            if j == p['npos']:
                self.issue('N', f'buffer_load_dwordx4 v[34:37], {r("zero")}, {self.srd(S_DBG)}, 0 offen sc1')
            if j == p['ipos'] and not p.get('iuni'):
                A('s_and_b32 s42, s3, 3')
                A('s_cmp_lg_u32 s42, 1')
                A('s_cbranch_scc1 L_noipf')
                C('waves 1, 5: read the kernel text behind the load loop once, to pull it into L2')
                A('s_getpc_b64 s[46:47]')
                L('L_pc')
                A('s_lshl_b32 s42, s3, 10')
                A('s_add_u32 s42, s42, L_acc - L_pc - 1024')
                A('v_lshl_add_u32 v6, v1, 6, s42')
                A('v_min_u32 v6, L_last - L_pc, v6')
                A('v_mov_b32 v7, s47')
                A('v_add_co_u32 v6, vcc, s46, v6')
                A('s_nop 1')
                A('v_addc_co_u32 v7, vcc, 0, v7, vcc')
                A(f'global_load_dword {r("junk")}, v[6:7], off')
                L('L_noipf')
            uni(j)
            if j == p['wpf'] and not p.get('uni'):
                A('s_cmp_lg_u32 s3, 6')
                A('s_cbranch_scc1 L_nowpf')
                C('wave 6: touch 1/32 of the weights so that they are in L2 when they are staged')
                if p.get('wmall'):
                    A('s_mul_i32 s42, s2, 320')
                    A('v_lshlrev_b32 v6, 6, v1')
                    A('s_mov_b64 exec, 31')
                else:
                    A('s_mul_i32 s42, s5, 2304')
                    A('v_lshlrev_b32 v6, 6, v1')
                    A('s_mov_b32 exec_hi, 15')
                A(f'buffer_load_dword {r("junk")}, v6, {self.srd(S_W1)}, s42 offen')
                A(f'buffer_load_dword {r("junk")}, v6, {self.srd(S_W2)}, s42 offen')
                A('s_mov_b64 exec, -1')
                L('L_nowpf')
            if j == p['tpos'] and not p.get('uni'):
                A('s_cmp_lg_u32 s3, 4')
                A('s_cbranch_scc1 L_notch')
                C('wave 4: touch 1/32 of the lines this group will poll')
                if p.get('nobt'):
                    A('s_mov_b32 exec_hi, 0x1000ffff')
                if p.get('apos') is not None:
                    A('s_mov_b32 exec_lo, 0')
                    A('s_mov_b32 exec_hi, 0x1fff0000')
                A(f'buffer_load_dword {r("junk")}, {r("tch")}, {self.srd(S_WS)}, 0 offen {p.get("tpol", "sc1")}')
                A('s_mov_b64 exec, -1')
                L('L_notch')
            if j == p.get('apos'):
                assert self.tagged
                A('s_cmp_ge_u32 s3, 3')
                A('s_cbranch_scc1 L_noalloc')
                C('waves 0..2: own the lines of their later records early (check word deliberately wrong)')
                A('v_mov_b32 v50, 0')
                A('v_mov_b32 v51, 0')
                A('v_mov_b32 v52, 0')
                A(f'v_not_b32 v53, {r("tag")}')
                A(f'buffer_store_dwordx4 v[50:53], {r("pub")}, {self.srd(S_WS)}, 0 offen')
                L('L_noalloc')
            if p.get('wtail') and j == 32 - D:
                A('s_cmp_lt_u32 s5, 6')
                A('s_cbranch_scc1 L_wtail')
                self.vm_at_tail = list(self.vm)
            pair(j)
        for j in range(B, R):
            A(f's_cmp_le_u32 s15, {j - B}')
            A('s_cbranch_scc1 L_acc')
            self.wait_for(f'X{j}')
            unpack(j, TMP)
            if j + D < R:
                issue_x(j + D)
            for q in range(3):
                a = ACC + 4 * q
                A(f'v_pk_add_f32 v[{a}:{a + 1}], v[{a}:{a + 1}], v[{TMP + 2 * q}:{TMP + 2 * q + 1}]')
                A(f'v_max_f32 v{a + 2}, v{a + 2}, v{TMP + 2 * q}')
                A(f'v_max_f32 v{a + 3}, v{a + 3}, v{TMP + 2 * q + 1}')
        assert self.tagged
        L('L_acc')
        self.stamp()
        if p.get('p1only'):
            A('s_branch L_stdone')
        for q in range(3):
            A(f'ds_write_b128 {r("Pw")}, v[{ACC + 4 * q}:{ACC + 4 * q + 3}] offset:{16 * q}')
        uni(32)
        if not numa:
            A('s_min_u32 s42, s10, s11')
            A('s_cmp_eq_u32 s42, 0')
            A('s_cbranch_scc1 L_nonce')
            L('L_nonceback')
        A('s_waitcnt lgkmcnt(0)')
        A('s_barrier')
        A('s_cmp_ge_u32 s3, 3')
        A('s_cbranch_scc1 L_nopub')
        for w in range(8):
            A(f'ds_read_b128 v[{8 + 4 * w}:{11 + 4 * w}], {r("t16")} offset:{3072 * w}')
        for k in range(4):
            A(f's_waitcnt lgkmcnt({6 - 2 * k})')
            ra, rb = 8 + 8 * k, 12 + 8 * k
            if k == 0:
                A(f'v_max_f32 v10, v10, v{rb + 2}')
                A(f'v_max_f32 v11, v11, v{rb + 3}')
            else:
                A(f'v_max3_f32 v10, v10, v{ra + 2}, v{rb + 2}')
                A(f'v_max3_f32 v11, v11, v{ra + 3}, v{rb + 3}')
            A(f'v_pk_add_f32 v[{ra}:{ra + 1}], v[{ra}:{ra + 1}], v[{rb}:{rb + 1}]')
            if k == 1:
                A('v_pk_add_f32 v[8:9], v[8:9], v[16:17]')
            if k == 2:
                A('v_pk_add_f32 v[8:9], v[8:9], v[24:25]')
        A('v_cvt_pk_bf16_f32 v10, v10, v11')
        A('v_pk_add_f32 v[8:9], v[8:9], v[32:33]')
        self.key(10, 12)
        self.seal()
        pubA = f'buffer_store_dwordx4 v[8:11], {r("pub")}, {self.srd(S_WS)}, 0 offen'
        A(pubA if not p.get('force') else pubA + ' sc1')
        self.stamp()
        A('s_cmp_lt_u32 s5, 6')
        A('s_cbranch_scc1 L_mlp')
        if not p['wb']:
            A(f's_sleep {p["dlyA"]}')
            A(pubA + ' sc1')
        A('s_branch L_join')
        L('L_nopub')
        A('s_cmp_lt_u32 s5, 6')
        A('s_cbranch_scc1 L_mlp')
        A('s_cmp_lg_u32 s3, 4')
        A('s_cbranch_scc1 L_mlpback')
        A('s_cmp_lt_u32 s5, 8')
        A('s_cbranch_scc1 L_join')
        def red_in(x):
            self.stamp()
            A(f'v_pk_add_f32 v[8:9], v[{x}:{x + 1}], v[{x + 4}:{x + 5}]')
            A(f'v_pk_add_f32 v[16:17], v[{x + 8}:{x + 9}], v[{x + 12}:{x + 13}]')
            A(f'v_pk_max_i16 v10, v{x + 2}, v{x + 6}')
            A(f'v_pk_max_i16 v18, v{x + 10}, v{x + 14}')
        self.poll('L_poll1', r('in1'), [0, 1024, 2048, 3072], (44, 60), self.check_rec, red_in, p['stag'][0])
        A('v_pk_add_f32 v[8:9], v[8:9], v[16:17]')
        A('v_pk_max_i16 v10, v10, v18')
        A('s_nop 0')
        A('v_add_f32_dpp v8, v8, v8 row_ror:8 row_mask:0xf bank_mask:0xf')
        A('v_add_f32_dpp v9, v9, v9 row_ror:8 row_mask:0xf bank_mask:0xf')
        A('v_mov_b32_dpp v14, v10 row_ror:8 row_mask:0xf bank_mask:0xf')
        A('v_mov_b32 v12, v8')
        A('v_mov_b32 v13, v9')
        A('v_pk_max_i16 v10, v10, v14')
        A('v_permlane16_swap_b32 v8, v12')
        A('v_mov_b32 v14, v10')
        A('v_permlane16_swap_b32 v9, v13')
        A('v_add_f32 v8, v8, v12')
        A('v_permlane16_swap_b32 v10, v14')
        A('v_add_f32 v9, v9, v13')
        A('v_mov_b32 v12, v8')
        A('v_pk_max_i16 v10, v10, v14')
        A('v_mov_b32 v13, v9')
        A('v_permlane32_swap_b32 v8, v12')
        A('v_mov_b32 v14, v10')
        A('v_permlane32_swap_b32 v9, v13')
        A('v_add_f32 v8, v8, v12')
        A('v_permlane32_swap_b32 v10, v14')
        A('v_add_f32 v9, v9, v13')
        A('v_pk_max_i16 v10, v10, v14')
        self.seal()
        A(f'buffer_store_dwordx4 v[8:11], {r("out2")}, {self.srd(S_WS)}, 0 offen sc1')
        self.stamp()
        L('L_mlpback')
        A('s_cmp_lg_u32 s3, 7')
        A('s_cbranch_scc1 L_join')
        A('s_mov_b32 exec_hi, 0xffff')
        def s_out(x):
            if p.get('spec', True):
                return
            A(f'ds_write_b128 {r("Sw")}, v[{x}:{x + 3}]')
            A(f'ds_write_b128 {r("Sw")}, v[{x + 4}:{x + 7}] offset:768')
        self.poll('L_poll3', r('in3'), [0, 768], (76, 84), self.check_scale, s_out, p['stag'][2])
        A('s_mov_b64 exec, -1')
        A('s_waitcnt lgkmcnt(0)')
        L('L_join')
        A('s_barrier')
        for q in range(3):
            A(f'ds_read_b64 v[{32 + 2 * q}:{33 + 2 * q}], {r("S")} offset:{8 * q}')
        base(G)
        if numa:
            A('s_orn2_b32 s13, s13, s41')
        A('s_bitcmp1_b32 s13, 0')
        A('s_cselect_b64 vcc, -1, 0')
        self.stamp()
        pubC = f'buffer_store_dword v40, {r("out3")}, {self.srd(S_WS)}, 0 offen'
        order = list(range(R))
        if numa:
            order, a_, b_ = [], 0, S
            for k in range(32):
                if ((k + 1) * 4 * NS) // 32 != (k * 4 * NS) // 32:
                    order.append(b_)
                    b_ += 1
                else:
                    order.append(a_)
                    a_ += 1
        for n, j in enumerate(order):
            if j >= B:
                A(f's_cmp_le_u32 s15, {j - B}')
                A('s_cbranch_scc1 L_stdone')
            if p['wb'] and n == p.get('c2pos', 8):
                C('the waves that published a part of the scale repeat that store write-through')
                A('s_cmp_eq_u32 s12, 0')
                A('s_cbranch_scc1 L_noc2')
                A('s_mov_b64 exec, 0xffff')
                A(pubC + ' sc1')
                A('s_mov_b64 exec, -1')
                L('L_noc2')
            t = 8 + 6 * (n & 3)
            unpack(j, t)
            if n == 0:
                A('s_waitcnt lgkmcnt(0)')
            for q in range(3):
                A(f'v_pk_mul_f32 v[{t + 2 * q}:{t + 2 * q + 1}], v[{t + 2 * q}:{t + 2 * q + 1}], v[{32 + 2 * q}:{33 + 2 * q}]')
            for q in range(3):
                A(f'v_cvt_pk_bf16_f32 v{DATA + 4 * j + q}, v{t + 2 * q}, v{t + 2 * q + 1}')
            if numa:
                so = slot(j)
            else:
                if 0 < j < B:
                    adv(G)
                so = 's40' if j < B else f's{S_U + j - B}'
            ne, no = p.get('thr', (0, 0))
            if no and n >= no:
                A(f's_waitcnt vmcnt({no - 1})')
            if isinstance(ne, tuple):
                ne = ne[n % len(ne)]
            if ne and ne != no and n >= ne:
                A(f's_cbranch_vccnz L_thr{j}')
                A(f's_waitcnt vmcnt({ne - 1})')
                L(f'L_thr{j}')
            A(f'buffer_store_dwordx3 {self.d(j)}, v2, {self.srd(S_OUT)}, {so} offen {p["spol"] if p.get("pfirst", 0) <= j < R - p.get("plast", 0) else p.get("spol2", "")}'.rstrip())
        L('L_stdone')
        if p.get('dumpptr'):
            A('s_cmp_lg_u32 s2, 0')
            A('s_cbranch_scc1 L_nodump')
            A('s_mov_b64 exec, 1')
            for k, sr in enumerate((S_X, S_X + 1, S_OUT, S_OUT + 1, S_WS, S_WS + 1, S_W1, S_DBG)):
                A(f'v_mov_b32 v8, s{sr}')
                A(f'buffer_store_dword v8, {r("zero")}, {self.srd(S_DBG)}, 0 offen offset:{16 + 4 * k}')
                A('s_nop 1')
            L('L_nodump')
        if p.get('amp') is not None and not p['stamps']:
            A('s_waitcnt vmcnt(0)')
            self.stamp()
            A('s_waitcnt lgkmcnt(0)')
            A('s_sub_u32 s94, s92, s88')
            if len(p['amp']) > 3:
                A('s_min_u32 s94, s94, 500')
                A('s_sub_u32 s94, 500, s94')
            A('s_cmp_eq_u32 s92, 0')
            A('s_cselect_b32 s94, 0, s94')
            A('s_cmp_eq_u32 s88, 0')
            A('s_cselect_b32 s94, 0, s94')
            A('s_min_u32 s94, s94, 3000')
            A(f's_lshl_b32 s94, s94, {p["amp"][2]}')
            A('s_add_u32 s94, s94, 3000')
            L('L_pad')
            A('s_sleep 2')
            A('s_memrealtime s[92:93]')
            A('s_waitcnt lgkmcnt(0)')
            A('s_sub_u32 s95, s92, s90')
            A('s_cmp_lt_u32 s95, s94')
            A('s_cbranch_scc1 L_pad')
        if p['stamps']:
            A('s_waitcnt vmcnt(0)')
            self.stamp()
            A('s_branch L_stamps')
        L('L_end')
        A('s_endpgm')

        L('L_nonce')
        C('the nonce was not there yet when this wave looked: wait for it')
        A(f's_mov_b32 s50, {p["spin"]}')
        L('L_nonceloop')
        A(f'buffer_load_dwordx4 v[34:37], {r("zero")}, {self.srd(S_DBG)}, 0 offen sc1')
        A('s_waitcnt vmcnt(0)')
        self.tags()
        A('s_cmp_lg_u32 s42, 0')
        A('s_cbranch_scc1 L_nonceback')
        A('s_sleep 4')
        A('s_sub_u32 s50, s50, 1')
        A('s_cbranch_scc0 L_nonceloop')
        A('s_branch L_nonceback')

        if p.get('wtail'):
            L('L_wtail')
            C('MLP workgroups: last rows, with the weight staging issued while the row loads drain')
            self.vm = self.vm_at_tail
            todo = list(range(p['wtail'][0]))
            def extra(jj):
                for _ in range(p['wtail'][1]):
                    if todo:
                        self.stage_one(todo.pop(0))
            for j in range(32 - D, 32, 2):
                pair(j, extra)
            assert not todo
            A('s_branch L_acc')
        L('L_mlp')
        C('MLP workgroups (ranks 0..5 of every group)')
        first = p['wtail'][0] if p.get('wtail') else 0
        pre = p.get('pre', 0)
        if p.get('cons'):
            n_pub, n_oth = p['cons']
            assert 3 * n_pub + 5 * n_oth == 96
            def run(n, lab):
                A('s_mov_b32 exec_hi, 0xffff')
                for i in range(n):
                    if i % 5 == 0:
                        if i:
                            A('s_addk_i32 s44, 3840')
                        A('s_mov_b32 m0, s44')
                        A('s_nop 0')
                    off = f' offset:{768 * (i % 5)}' if i % 5 else ''
                    A(f'buffer_load_dwordx4 {r("vW1" if i % 2 == 0 else "vW1b")}, {self.srd(S_W1)}, s44 offen{off} lds')
                A('s_mov_b32 exec_hi, -1')
            if n_pub == n_oth:
                A('s_barrier')
                run(n_pub, 'a')
                self.stage_one(12)
                self.stage_one(13)
            else:
                A('s_cmp_ge_u32 s3, 3')
                A('s_cbranch_scc1 L_cons1')
                if not p.get('nob1b'):
                    A('s_barrier')
                run(n_pub, 'a')
                self.stage_one(12)
                self.stage_one(13)
                A('s_branch L_cons2')
                L('L_cons1')
                A('s_mov_b32 s43, s44')
                self.stage_one(12)
                self.stage_one(13)
                A('s_mov_b32 s44, s43')
                if not p.get('nob1b'):
                    A('s_barrier')
                run(n_oth, 'b')
                L('L_cons2')
        elif pre:
            C('waves 3..7 start a few copies while waves 0..2 still publish')
            A('s_cmp_ge_u32 s3, 3')
            A('s_cbranch_scc1 L_pre1')
            A('s_barrier')
            L('L_pre1')
            for i in range(pre):
                self.stage_one(i)
            A('s_cmp_lt_u32 s3, 3')
            A('s_cbranch_scc1 L_pre2')
            A('s_barrier')
            L('L_pre2')
            for i in range(pre, 14):
                self.stage_one(i)
        elif first < 14:
            A('s_barrier')
            for i in range(first, 14):
                self.stage_one(i)
        A('s_movk_i32 s42, 6144')
        A('s_movk_i32 s43, 12288')
        A('s_movk_i32 s45, 18432')
        A('s_waitcnt vmcnt(0)')
        A('s_barrier')
        if not p['wb']:
            A('s_cmp_ge_u32 s3, 3')
            A('s_cbranch_scc1 L_nopub2')
            A(pubA + ' sc1')
            L('L_nopub2')
        def tr_reads():
            for b in range(12):
                for h in range(2):
                    base = r('a1') if b < 6 else r('a1b')
                    x = W1F + 4 * b + 2 * h
                    A(f'ds_read_b64_tr_b16 v[{x}:{x + 1}], {base} offset:{(b % 6) * 6144 + h * 1536}')
            for b in range(3):
                for h in range(2):
                    x = W2F + 4 * b + 2 * h
                    A(f'ds_read_b64_tr_b16 v[{x}:{x + 1}], {r("a2")} offset:{(32 * b + 8 * h) * 128}')
            self.stamp()
        assert p['direct']
        if p.get('direct'):
            A('s_cmp_ge_u32 s3, 6')
            A('s_cbranch_scc1 L_nog')
            if not p.get('hoist', True):
                tr_reads()
            def g_in(x):
                self.stamp()
                A(f'v_pk_add_f32 v[8:9], v[{x}:{x + 1}], v[{x + 4}:{x + 5}]')
                A(f'v_pk_add_f32 v[16:17], v[{x + 8}:{x + 9}], v[{x + 12}:{x + 13}]')
                A(f'v_pk_max_i16 v10, v{x + 2}, v{x + 6}')
                A(f'v_pk_max_i16 v18, v{x + 10}, v{x + 14}')
            self.poll('L_poll2', r('in2'), ['0', 's42', 's43', 's45'], (20, 20), self.check_rec, g_in, 0, between=tr_reads if p.get('hoist', True) else None)
            A('v_pk_add_f32 v[8:9], v[8:9], v[16:17]')
            A('v_pk_max_i16 v10, v10, v18')
            A('v_mov_b32 v12, v8')
            A('v_mov_b32 v13, v9')
            A('v_mov_b32 v14, v10')
            A('v_permlane32_swap_b32 v8, v12')
            A('v_permlane32_swap_b32 v9, v13')
            A('v_permlane32_swap_b32 v10, v14')
            A('v_pk_add_f32 v[8:9], v[8:9], v[12:13]')
            A('v_pk_max_i16 v10, v10, v14')
            A('v_mul_f32 v8, 0x37800000, v8')
            A('v_mul_f32 v9, 0x37800000, v9')
            self.key(10, 12)
            A('v_cvt_pk_bf16_f32 v8, v8, v9')
            A('s_mov_b32 exec_hi, 0')
            A(f'ds_write2_b32 {r("Gw")}, v8, v10 offset0:0 offset1:{GOFF // 4}')
            A('s_mov_b32 exec_hi, -1')
            A('s_waitcnt lgkmcnt(0)')
        else:
            def q_out(x):
                self.stamp()
                for q in range(3):
                    A(f'ds_write_b128 {r("Qw")}, v[{x + 4 * q}:{x + 3 + 4 * q}] offset:{1024 * q}')
            self.poll('L_poll2', r('in2'), [0, 1024, 2048], (104, 116), self.check_rec, q_out, p['stag'][1])
            A('s_waitcnt lgkmcnt(0)')
            A('s_barrier')
            if p.get('fine') and p['stamps']:
                A('s_memrealtime s[68:69]')
            A('s_cmp_ge_u32 s3, 3')
            A('s_cbranch_scc1 L_nog')
            for w in range(8):
                A(f'ds_read_b128 v[{8 + 4 * w}:{11 + 4 * w}], {r("t16")} offset:{3072 * w}')
            for k in range(4):
                A(f's_waitcnt lgkmcnt({6 - 2 * k})')
                ra, rb = 8 + 8 * k, 12 + 8 * k
                A(f'v_pk_add_f32 v[{ra}:{ra + 1}], v[{ra}:{ra + 1}], v[{rb}:{rb + 1}]')
                A(f'v_pk_max_i16 v{ra + 2}, v{ra + 2}, v{rb + 2}')
                if k:
                    A(f'v_pk_add_f32 v[8:9], v[8:9], v[{ra}:{ra + 1}]')
                    A(f'v_pk_max_i16 v10, v10, v{ra + 2}')
            A('v_mul_f32 v8, 0x37800000, v8')
            A('v_mul_f32 v9, 0x37800000, v9')
            self.key(10, 12)
            A('v_cvt_pk_bf16_f32 v8, v8, v9')
            A(f'ds_write2_b32 {r("Gw")}, v8, v10 offset0:0 offset1:{GOFF // 4}')
            A('s_waitcnt lgkmcnt(0)')
        L('L_nog')
        A('s_barrier')
        self.stamp()
        A('s_cmp_ge_u32 s3, 6')
        A('s_cbranch_scc1 L_nol1')
        NB = 8
        for b in range(NB):
            A(f'ds_read_b128 v[{8 + 4 * b}:{11 + 4 * b}], {r("G")} offset:{64 * b}')
        issued = NB
        for b in range(12):
            A(f's_waitcnt lgkmcnt({issued - b - 1})')
            g = 8 + 4 * (b % NB)
            c = '0' if b == 0 else 'v[40:43]'
            A(f'v_mfma_f32_16x16x32_bf16 v[40:43], v[{W1F + 4 * b}:{W1F + 4 * b + 3}], v[{g}:{g + 3}], {c}')
            if issued < 12:
                A(f'ds_read_b128 v[{g}:{g + 3}], {r("G")} offset:{64 * issued}')
                issued += 1
        A('s_nop 7')
        if p.get('fine') and p['stamps']:
            A('v_mov_b32 v7, v43')
            A('s_memrealtime s[62:63]')
        for k in range(4):
            A(f'v_mul_f32 v{8 + k}, 0, v{40 + k}')
            A(f'v_cmp_lt_f32 s[{52 + 2 * k}:{53 + 2 * k}], 0, v{40 + k}')
        A('s_mov_b32 exec_lo, 0x00030003')
        A('s_mov_b32 exec_hi, 0x00030003')
        for k in range(4):
            A(f'v_cndmask_b32 v{8 + k}, v{8 + k}, v{40 + k}, s[{52 + 2 * k}:{53 + 2 * k}]')
        A('v_cvt_pk_bf16_f32 v12, v8, v9')
        A('v_cvt_pk_bf16_f32 v13, v10, v11')
        A(f'ds_write_b64 {r("Hw")}, v[12:13]')
        A('s_mov_b64 exec, -1')
        A('s_waitcnt lgkmcnt(0)')
        L('L_nol1')
        A('s_barrier')
        if p.get('fine') and p['stamps']:
            A('s_memrealtime s[66:67]')
        A('s_cmp_ge_u32 s3, 4')
        A('s_cbranch_scc1 L_mlpback')
        for b in range(3):
            A(f'ds_read_b128 v[{8 + 4 * b}:{11 + 4 * b}], {r("H")} offset:{64 * b}')
        for b in range(3):
            A(f's_waitcnt lgkmcnt({2 - b})')
            c = '0' if b == 0 else 'v[20:23]'
            wf = W2F + 4 * b
            A(f'v_mfma_f32_16x16x32_bf16 v[20:23], v[{8 + 4 * b}:{11 + 4 * b}], v[{wf}:{wf + 3}], {c}')
        A('s_nop 7')
        if p.get('fine') and p['stamps']:
            A('v_mov_b32 v7, v23')
            A('s_memrealtime s[70:71]')
        A('v_cvt_pk_bf16_f32 v8, v20, v21')
        A('v_lshlrev_b32 v9, 16, v8')
        A('v_and_b32 v8, s48, v8')
        A('v_add_f32 v8, v8, v9')
        A('v_cvt_pk_bf16_f32 v8, v8, v8')
        A('v_and_b32 v8, s48, v8')
        A('v_mul_f32 v8, 0xbfb8aa3b, v8')
        A('v_exp_f32 v8, v8')
        A('s_mov_b64 exec, 0xffff')
        A('v_add_f32 v8, 1.0, v8')
        A('v_rcp_f32 v8, v8')
        A('s_nop 0')
        A('v_cvt_pk_bf16_f32 v8, v8, v8')
        A(f'v_and_or_b32 v40, v8, s48, {r("tag16")}')
        A(pubC if not p.get('force') else pubC + ' sc1')
        A('s_mov_b32 s12, 1')
        self.stamp()
        if not p['wb']:
            A(f's_sleep {p["dlyC"]}')
            A(pubC + ' sc1')
        A('s_mov_b64 exec, -1')
        L('L_last')
        A('s_branch L_join')

        if p['stamps']:
            L('L_stamps')
            A('s_waitcnt lgkmcnt(0)')
            A(f's_add_u32 s56, s{S_WS}, 0x8000000')
            A(f's_addc_u32 s57, s{S_WS + 1}, 0')
            A('s_lshl_b32 s58, s2, 4\n    s_add_u32 s58, s58, s3\n    s_lshl_b32 s58, s58, 7')
            A('s_mov_b64 exec, 1')
            A('v_mov_b32 v1, s58')
            A('s_getreg_b32 s59, hwreg(HW_REG_XCC_ID, 0, 4)')
            A('v_mov_b32 v4, s59\n    v_mov_b32 v5, 0')
            A('global_store_dwordx2 v1, v[4:5], s[56:57] offset:120')
            A('s_nop 1')
            A('v_mov_b32 v4, s15')
            A('global_store_dwordx2 v1, v[4:5], s[56:57] offset:112')
            A('s_nop 1')
            order = [0, 1, 2, 3, 4, 5, 8, 9, 10, 11, 6, 7]
            for i, k in enumerate(order):
                A(f'v_mov_b32 v4, s{S_ST + 2 * k}\n    v_mov_b32 v5, s{S_ST + 1 + 2 * k}')
                A(f'global_store_dwordx2 v1, v[4:5], s[56:57] offset:{8 * i}')
                A('s_nop 1')
            A('s_endpgm')
        o.append('.section .rodata,"a"')
        o.append('.p2align 6')
        o.append(f'.amdhsa_kernel {KNAME}')
        o.append('  .amdhsa_next_free_vgpr 256')
        o.append('  .amdhsa_next_free_sgpr 102')
        o.append('  .amdhsa_accum_offset 256')
        o.append('  .amdhsa_group_segment_fixed_size 0')
        o.append('  .amdhsa_kernarg_size 48')
        o.append('  .amdhsa_user_sgpr_count 2')
        o.append('  .amdhsa_user_sgpr_kernarg_segment_ptr 1')
        o.append('  .amdhsa_system_sgpr_workgroup_id_x 1')
        o.append('  .amdhsa_float_denorm_mode_32 3')
        o.append('.end_amdhsa_kernel')
        return '\n'.join(o) + '\n'

    def addr_prep(self):
        A, r = self.A, self.r
        kg, q3, l1, kc, rr, q7 = 'v44', 'v45', 'v46', 'v47', 'v48', 'v49'
        A(f'v_lshrrev_b32 {kg}, 4, v1')
        A(f'v_and_b32 {q3}, 3, v1')
        A(f'v_and_b32 {l1}, 1, v1')
        A(f'v_bfe_u32 {kc}, v1, 4, 1')
        A(f'v_bfe_u32 {rr}, v1, 2, 2')
        A(f'v_and_b32 {q7}, 0x70, v4')
        A('s_mul_i32 s45, s3, 3072')
        A(f's_add_u32 s45, s45, {L_P}')
        A('v_mul_u32_u24 v3, 48, v1')
        A(f'v_add_u32 {r("Pw")}, s45, v3')
        A(f'v_add_u32 {r("Qw")}, s45, v4')
        A('v_lshlrev_b32 v3, 4, v0')
        A(f'v_add_u32 {r("t16")}, {L_P}, v3')
        A('s_mul_i32 s49, s4, 98304')
        A('s_lshl_b32 s45, s5, 7')
        A('s_add_u32 s45, s45, s49')
        A('v_lshrrev_b32 v3, 3, v0')
        A(f'v_lshl_add_u32 v3, v3, 12, {q7}')
        A(f'v_add_u32 {r("pub")}, s45, v3')
        A('s_sub_u32 s51, s5, 8')
        A('s_lshl_b32 s45, s51, 12')
        A('s_add_u32 s45, s45, s49')
        A(f'v_add_u32 {r("in1")}, s45, v4')
        if self.p['tpos'] is not None:
            A('s_mul_i32 s45, s5, 3072')
            A('s_add_u32 s45, s45, s49')
            A('v_lshlrev_b32 v3, 6, v1')
            A('v_add_u32 v5, s45, v3')
            A(f's_xor_b32 s45, s4, {self.p.get("bx", 0)}')
            A('s_mul_i32 s45, s45, 24576')
            A('s_mul_i32 s43, s5, 768')
            A('s_add_u32 s45, s45, s43')
            A(f's_add_u32 s45, s45, {O_B - 48 * 64}')
            A('v_add_u32 v6, s45, v3')
            A('v_cmp_gt_u32 vcc, 48, v1')
            A('s_lshl_b32 s45, s4, 11')
            A('s_lshl_b32 s43, s5, 6')
            A('v_cndmask_b32 v5, v6, v5, vcc')
            A('s_add_u32 s45, s45, s43')
            A(f's_add_u32 s45, s45, {O_C}')
            A('v_mov_b32 v6, s45')
            A('v_cmp_gt_u32 vcc, 60, v1')
            A('s_nop 1')
            A(f'v_cndmask_b32 {r("tch")}, v6, v5, vcc')
            if self.p.get('uni'):
                A(f's_cmp_eq_u32 s3, {self.p.get("twave", 4)}')
                A('s_cselect_b32 s45, 0, 2.0')
                A(f'v_add_u32 {r("tch")}, s45, {r("tch")}')
                A('s_mul_i32 s45, s5, 2304')
                A(f's_cmp_eq_u32 s3, {self.p.get("wwave", 6)}')
                A('s_cselect_b32 s45, s45, 2.0')
                A('v_add_u32 v5, s45, v3')
                A('v_cmp_gt_u32 vcc, 36, v1')
                A('v_mov_b32 v6, 2.0')
                A('s_nop 0')
                A(f'v_cndmask_b32 {r("wtc")}, v6, v5, vcc')
                if self.p.get('half'):
                    A(f'v_lshlrev_b32 v5, 30, {l1}')
                    A(f'v_or_b32 {r("wtc")}, v5, {r("wtc")}')
                    A(f'v_or_b32 {r("tch")}, v5, {r("tch")}')
        A('s_mul_i32 s45, s4, 3072')
        A('s_lshl_b32 s49, s51, 7')
        A('s_add_u32 s45, s45, s49')
        A(f's_add_u32 s45, s45, {O_B}')
        A('v_lshrrev_b32 v3, 3, v1')
        A('v_mul_u32_u24 v3, 24576, v3')
        A(f'v_add3_u32 {r("out2")}, v3, {q7}, s45')
        if self.p.get('direct'):
            A('s_mul_i32 s45, s4, 24576')
            A('s_lshl_b32 s49, s3, 9')
            A('s_add_u32 s45, s45, s49')
            A(f's_add_u32 s45, s45, {O_B}')
            A('v_lshrrev_b32 v3, 5, v1')
            A('v_mul_u32_u24 v3, 2560, v3')
            A(f'v_add3_u32 {r("in2")}, v3, v4, s45')
        else:
            A('s_lshl_b32 s45, s4, 3')
            A('s_add_u32 s45, s45, s3')
            A('s_mul_i32 s45, s45, 3072')
            A(f's_add_u32 s45, s45, {O_B}')
            A(f'v_add_u32 {r("in2")}, s45, v4')
        A('s_lshl_b32 s45, s4, 11')
        A(f's_add_u32 s45, s45, {O_C}')
        A(f'v_add_u32 {r("in3")}, s45, v4')
        A('s_lshl_b32 s49, s5, 2')
        A('s_add_u32 s49, s49, s3')
        A('s_lshl_b32 s49, s49, 6')
        A('s_add_u32 s45, s45, s49')
        A(f'v_lshl_add_u32 {r("out3")}, v1, 2, s45')
        if self.p.get('direct'):
            A('v_and_b32 v3, 0x19, v1')
            A('s_lshl_b32 s45, s3, 5')
            A('v_add_u32 v3, s45, v3')
        else:
            A('v_and_b32 v3, 0x1f9, v0')
        A('v_bfe_u32 v5, v0, 1, 1')
        A('v_lshl_add_u32 v3, v5, 2, v3')
        A('v_bfe_u32 v5, v0, 2, 1')
        A('v_lshl_add_u32 v3, v5, 1, v3')
        A('v_lshlrev_b32 v3, 2, v3')
        A(f'v_add_u32 {r("Gw")}, {L_G}, v3')
        A(f'v_mul_u32_u24 v3, {GOFF}, {l1}')
        A(f'v_lshl_add_u32 v3, {kg}, 4, v3')
        A(f'v_add_u32 {r("G")}, {L_G}, v3')
        A(f'v_mul_u32_u24 v3, 192, {l1}')
        A(f'v_add_u32 v3, {L_H}, v3')
        A(f'v_lshl_add_u32 {r("H")}, {kg}, 4, v3')
        A(f'v_lshl_add_u32 v3, {kc}, 4, v3')
        A('v_lshrrev_b32 v5, 5, v1')
        A('v_lshl_add_u32 v3, v5, 3, v3')
        A('s_lshl_b32 s45, s3, 5')
        A(f'v_add_u32 {r("Hw")}, s45, v3')
        A(f'v_add_u32 {r("Sw")}, {L_S}, v4')
        A('v_mul_u32_u24 v3, 24, v1')
        A(f'v_add_u32 {r("S")}, {L_S}, v3')
        if self.p.get('cons'):
            n_pub, n_oth = self.p['cons']
            A('s_min_u32 s44, s3, 3')
            A(f's_mul_i32 s44, s44, {n_pub - n_oth}')
            A(f's_mul_i32 s45, s3, {n_oth}')
            A('s_add_u32 s44, s44, s45')
            A('s_lshl_b32 s45, s44, 5')
            A('s_mul_i32 s44, s44, 768')
            A('s_and_b32 s45, s45, 32')
            A(f'v_xor_b32 {r("vW1")}, s45, v4')
            A(f'v_xor_b32 {r("vW1b")}, 32, {r("vW1")}')
        else:
            A('s_and_b32 s45, s45, 32')
            A(f'v_xor_b32 {r("vW1")}, s45, v4')
        A('v_lshrrev_b32 v3, 3, v1')
        A('v_mul_u32_u24 v3, 768, v3')
        A('s_lshl_b32 s45, s5, 7')
        A(f'v_add3_u32 {r("vW2")}, v3, {q7}, s45')
        A(f'v_lshl_add_u32 v6, {kc}, 2, {rr}')
        A('v_lshl_add_u32 v7, v5, 4, v6')
        A(f'v_xor_b32 v3, s3, {kc}')
        A('v_lshlrev_b32 v3, 5, v3')
        A(f'v_lshl_add_u32 v3, {q3}, 3, v3')
        A('v_mul_u32_u24 v5, 192, v7')
        A(f'v_add_u32 {r("a1")}, v3, v5')
        A(f'v_add_u32 {r("a1b")}, {6 * 6144}, {r("a1")}')
        A('v_lshlrev_b32 v5, 7, v7')
        A(f'v_lshl_add_u32 v5, {q3}, 3, v5')
        A('s_and_b32 s45, s3, 3')
        A('s_lshl_b32 s45, s45, 5')
        A(f's_add_u32 s45, s45, {L_W2}')
        A(f'v_add_u32 {r("a2")}, s45, v5')


if __name__ == '__main__':
    kw = eval('dict(%s)' % (sys.argv[2] if len(sys.argv) > 2 else ''))
    open(sys.argv[1], 'w').write(Gen(**kw).build())
```

```python
import sys

KNAME = 'standalone__channel_attn_cbam__vision_kernel'
HEADER = """; Kernarg layout for this problem (48 bytes, ptrs only, base s[0:1]):
"""

XBYTES = 50331648
WBYTES = 73728
O_A = 0
O_B = 786432
O_C = O_B + 196608
WS_USE = 1 << 20
L_W1, L_W2 = 0, 73728
L_P = 90112
L_G, L_H, L_S = 114688, 116736, 117248
GOFF = 832
LDS_BYTES = 118784
S_X, S_W1, S_W2, S_OUT, S_DBG, S_WS = 16, 20, 24, 28, 32, 36
ACC, TMP, W1F, W2F, DATA = 8, 20, 44, 92, 104
S_U, S_ST = 60, 76
L_T = 116480
XOR3 = 'bitop3:0x96'


class Gen:
    def __init__(self, **kw):
        self.p = dict(D=8, lpol='nt', spol='sc1', stamps=False, npos=6, ipos=26, wpf=28, tpos=28, half=True, thr=(0, 0),
                      spin=1 << 20, dlyA=16, dlyC=10, nwg=0, wb=64, stag=(0, 0, 0), uni=True, iuni=True, twave=5, numa=True, NS=3, tilt=(1, 3), gap=40, gapx=30, De=5, direct=True, hoist=False, bx=1, B=32, R=32)
        self.p.update(kw)
        self.o = []
        self.vm = []
        self.nstamp = 0
        self.names = {}

    def A(self, s):
        self.o.append('    ' + s)

    def L(self, s):
        self.o.append(s + ':')

    def C(self, s):
        self.o.append('    ; ' + s)

    def srd(self, b):
        return f's[{b}:{b + 3}]'

    def issue(self, tag, text):
        self.A(text)
        self.vm.append(tag)

    def wait_for(self, tag):
        n = len(self.vm) - 1 - self.vm.index(tag)
        assert n <= 63
        self.A(f's_waitcnt vmcnt({n})')

    def stamp(self):
        self.npos = getattr(self, 'npos', -1) + 1
        amp = self.p.get('amp')
        if amp is not None and self.npos == 0:
            self.A('s_memrealtime s[90:91]')
            self.A('s_mov_b32 s88, 0')
            self.A('s_mov_b32 s92, 0')
        if amp is not None and self.npos == amp[0]:
            self.A('s_memrealtime s[88:89]')
        if amp is not None and self.npos == amp[1]:
            self.A('s_memrealtime s[92:93]')
        if self.p['stamps']:
            k = self.nstamp
            assert k < 13
            self.A(f's_memrealtime s[{S_ST + 2 * k}:{S_ST + 1 + 2 * k}]')
            self.nstamp += 1

    def d(self, j):
        return f'v[{DATA + 4 * j}:{DATA + 4 * j + 2}]'

    def r(self, name):
        if name not in self.names:
            self.names[name] = len(self.names)
            assert self.names[name] < 32
        return f'v{DATA + 4 * self.names[name] + 3}'

    def ws_load4(self, reg, addr, off):
        if isinstance(off, str):
            return f'buffer_load_dwordx4 v[{reg}:{reg + 3}], {addr}, {self.srd(S_WS)}, {off} offen sc1'
        o = f' offset:{off}' if off else ''
        return f'buffer_load_dwordx4 v[{reg}:{reg + 3}], {addr}, {self.srd(S_WS)}, 0 offen{o} sc1'

    def check_rec(self, base, n, pend):
        A = self.A
        t = 38
        for i in range(n):
            x = base + 4 * i
            A(f's_waitcnt vmcnt({pend + n - 1 - i})')
            A(f'v_bitop3_b32 v{t + i}, v{x}, v{x + 1}, v{x + 2} {XOR3}')
            A(f'v_bitop3_b32 v{t + i}, v{t + i}, v{x + 3}, {self.r("tag")} {XOR3}')
            if i == 2:
                A(f'v_or3_b32 v{t}, v{t}, v{t + 1}, v{t + 2}')
            if i == 3:
                A(f'v_or_b32 v{t}, v{t}, v{t + 3}')
        A(f'v_cmp_ne_u32 vcc, 0, v{t}')

    def check_scale(self, base, n, pend):
        A = self.A
        for i in range(2):
            A(f's_waitcnt vmcnt({pend + 1 - i})')
            for k in range(4):
                A(f'v_xor_b32 v{base + 4 * i + k}, s{6 + k}, v{base + 4 * i + k}')
            if self.p.get('spec', True):
                A(f'ds_write_b128 {self.r("Sw")}, v[{base + 4 * i}:{base + 4 * i + 3}] offset:{768 * i}')
            if i == 0:
                A(f'v_or3_b32 v38, v{base}, v{base + 1}, v{base + 2}')
            else:
                A(f'v_or3_b32 v38, v38, v{base + 3}, v{base + 4}')
                A(f'v_or3_b32 v39, v{base + 5}, v{base + 6}, v{base + 7}')
                A('v_or_b32 v38, v38, v39')
        A('v_cmp_ne_u16 vcc, 0, v38')

    def poll(self, lab, addr, offs, sets, check, success, stagger, between=None):
        A, L = self.A, self.L
        n = len(offs)

        def loads(base):
            for i, off in enumerate(offs):
                t = self.ws_load4(base + 4 * i, addr, off)
                pol = self.p.get('ppol', {}).get(lab[-1])
                A(t if pol is None else t.replace(' sc1', ' ' + pol))
        A(f's_mov_b32 s50, {self.p["spin"] - 1}')
        if lab[-1] in self.p.get('sel', ''):
            base = sets[0]
            for i in range(n):
                A(f's_mov_b64 s[{52 + 2 * i}:{53 + 2 * i}], -1')
            L(lab)
            for i, off in enumerate(offs):
                A(f's_or_b64 exec, s[{52 + 2 * i}:{53 + 2 * i}], 1')
                A(self.ws_load4(base + 4 * i, addr, off))
            A('s_mov_b64 exec, -1')
            for i in range(n):
                x = base + 4 * i
                A(f's_waitcnt vmcnt({n - 1 - i})')
                A(f'v_bitop3_b32 v38, v{x}, v{x + 1}, v{x + 2} {XOR3}')
                A(f'v_xor_b32 v38, v38, v{x + 3}')
                A(f'v_cmp_ne_u32 s[{52 + 2 * i}:{53 + 2 * i}], v38, {self.r("tag")}')
                if i == 2:
                    A('s_or_b64 s[46:47], s[52:53], s[54:55]')
            A('s_or_b64 s[46:47], s[46:47], s[56:57]')
            A('s_or_b64 s[46:47], s[46:47], s[58:59]')
            A(f's_cbranch_scc0 {lab}done')
            self.again(lab)
            L(lab + 'done')
            success(base)
            return
        if between:
            loads(sets[0])
            between()
            L(lab)
            check(sets[0], n, 0)
            A(f's_cbranch_vccz {lab}done')
            self.again(lab, lambda: loads(sets[0]))
            L(lab + 'done')
            success(sets[0])
            return
        if not stagger:
            L(lab)
            loads(sets[0])
            check(sets[0], n, 0)
            A(f's_cbranch_vccz {lab}done')
            self.again(lab)
            L(lab + 'done')
            success(sets[0])
            return
        loads(sets[0])
        A(f's_sleep {stagger}')
        L(lab)
        loads(sets[1])
        check(sets[0], n, n)
        A(f's_cbranch_vccz {lab}x')
        loads(sets[0])
        check(sets[1], n, n)
        A(f's_cbranch_vccz {lab}y')
        self.again(lab)
        L(lab + 'y')
        k = self.nstamp
        success(sets[1])
        A(f's_branch {lab}done')
        L(lab + 'x')
        self.nstamp = k
        success(sets[0])
        L(lab + 'done')

    def again(self, lab, reissue=None):
        A = self.A
        if self.p['wb']:
            A(f's_and_b32 s51, s50, {self.p["wb"] - 1}')
            A(f's_cbranch_scc1 {lab}nowb')
            self.C('still waiting: push plain-stored records of this XCD out, a reader may sit behind another L2')
            A('buffer_wbl2 sc1')
            A('s_waitcnt vmcnt(0)')
            A('buffer_inv sc1')
            self.L(lab + 'nowb')
        if reissue:
            reissue()
        A('s_sub_u32 s50, s50, 1')
        A(f's_cbranch_scc0 {lab}')

    def seal(self):
        self.A(f'v_bitop3_b32 v11, v8, v9, v10 {XOR3}')
        self.A(f'v_xor_b32 v11, v11, {self.r("tag")}')

    def key(self, x, t):
        self.A(f'v_pk_ashrrev_i16 v{t}, 15, v{x} op_sel_hi:[0,1]')
        self.A(f'v_bitop3_b32 v{x}, v{x}, v{t}, s49 bitop3:0x78')

    def stage_weights(self):
        A, r = self.A, self.r
        A('s_mov_b32 exec_hi, 0xffff')
        for i in range(12):
            A('s_mul_i32 s44, s3, 768' if i == 0 else 's_addk_i32 s44, 6144')
            A('s_mov_b32 m0, s44')
            A('s_nop 0')
            A(f'buffer_load_dwordx4 {r("vW1")}, {self.srd(S_W1)}, s44 offen lds')
        A('s_mov_b64 exec, -1')
        for k in range(2):
            if k == 0:
                A('s_lshl_b32 s45, s3, 10')
                A(f's_add_u32 m0, s45, {L_W2}')
                A('s_mul_i32 s44, s3, 6144')
            else:
                A('s_add_u32 m0, m0, 8192')
                A('s_add_u32 s44, s44, 49152')
            A(f'buffer_load_dwordx4 {r("vW2")}, {self.srd(S_W2)}, s44 offen lds')

    def stage_one(self, i):
        A, r = self.A, self.r
        if i < 12:
            A('s_mul_i32 s44, s3, 768' if i == 0 else 's_addk_i32 s44, 6144')
            A('s_mov_b32 m0, s44')
            A('s_mov_b32 exec_hi, 0xffff')
            self.issue(f'W{i}', f'buffer_load_dwordx4 {r("vW1")}, {self.srd(S_W1)}, s44 offen lds')
            A('s_mov_b32 exec_hi, -1')
        else:
            if i == 12:
                A('s_lshl_b32 s45, s3, 10')
                A(f's_add_u32 m0, s45, {L_W2}')
                A('s_mul_i32 s44, s3, 6144')
            else:
                A('s_add_u32 m0, m0, 8192')
                A('s_add_u32 s44, s44, 49152')
            self.issue(f'W{i}', f'buffer_load_dwordx4 {r("vW2")}, {self.srd(S_W2)}, s44 offen lds')

    def probe(self):
        A, L, C = self.A, self.L, self.C
        L('L_probe')
        C('ranks 6, 7 of every group: two write-through stores into d_out (overwritten later), acknowledged in order;')
        C('a gap between the two acknowledgements says that the first 8-KiB block is the one homed on this side')
        A('v_readfirstlane_b32 s3, v0')
        A(f's_load_dwordx2 s[{S_DBG}:{S_DBG + 1}], s[0:1], 32')
        A('s_memrealtime s[10:11]')
        A('s_and_b32 s4, s2, 7')
        A('s_cmp_lg_u32 s3, 0')
        A('s_cbranch_scc1 L_probewait')
        A('s_and_b32 s44, s5, 1')
        A('s_xor_b32 s44, s44, 1')
        A('s_lshl_b32 s42, s44, 25')
        A('s_lshl_b32 s43, s4, 14')
        A('s_add_u32 s42, s42, s43')
        A('v_mov_b32 v5, 0')
        A('s_mov_b64 exec, 1')
        A(f's_mov_b32 s{S_OUT + 2}, {XBYTES}')
        A(f's_mov_b32 s{S_OUT + 3}, 0x20000')
        A('s_waitcnt lgkmcnt(0)')
        A(f's_sub_u32 s43, 0x800, s{S_OUT}')
        A('s_and_b32 s43, s43, 0x3ffc')
        A('s_add_u32 s42, s42, s43')
        A('s_add_u32 s43, s42, 8192')
        A(f'buffer_store_dword v5, v5, {self.srd(S_OUT)}, s42 offen sc1')
        A(f'buffer_store_dword v5, v5, {self.srd(S_OUT)}, s43 offen sc1')
        A(f'buffer_load_dword v6, v5, {self.srd(S_X)}, s42 offen nt')
        A(f'buffer_load_dword v7, v5, {self.srd(S_X)}, s43 offen nt')
        A('s_barrier')
        A('s_cmp_lg_u32 s2, 56')
        A('s_cbranch_scc1 L_nononce')
        C('one wave of the grid publishes the nonce of this launch (both words non-zero)')
        A('s_or_b32 s10, s10, 1')
        A('s_or_b32 s11, s11, 0x80000000')
        A(f's_atomic_swap_x2 s[10:11], s[{S_DBG}:{S_DBG + 1}], 0 glc')
        L('L_nononce')
        A('s_mov_b64 exec, -1')
        A(f's_add_u32 s43, s42, s{S_OUT}')
        A('s_bfe_u32 s43, s43, 0x10015')
        A('s_mul_i32 s43, s43, 0x1000100')
        A('s_getreg_b32 s42, hwreg(HW_REG_XCC_ID, 2, 1)')
        A('s_mul_i32 s42, s42, 0x1010100')
        A('s_xor_b32 s42, s42, s43')
        A('s_lshl_b32 s44, s44, 2')
        A('s_add_u32 s44, s44, 8')
        for k in range(4):
            A(f's_waitcnt vmcnt({3 - k})')
            A(f's_memtime s[{52 + 2 * k}:{53 + 2 * k}]')
        A('s_waitcnt lgkmcnt(0)')
        A('s_sub_u32 s43, s54, s52')
        A('s_sub_u32 s58, s58, s56')
        if self.p.get('dbgprobe'):
            A('s_sub_u32 s45, s2, 48')
            A('s_lshl_b32 s45, s45, 2')
            A('s_add_u32 s45, s45, 64')
            A('s_mov_b32 s34, 256')
            A('s_mov_b32 s35, 0x20000')
            A('v_mov_b32 v10, s58')
            A(f'buffer_store_dword v10, v5, {self.srd(S_DBG)}, s45 offen sc1')
        A(f's_cmp_lt_u32 s43, {self.p["gap"]}')
        A('s_cselect_b32 s43, 0x101, 1')
        A('s_xor_b32 s56, s43, s42')
        A(f's_cmp_lt_u32 s58, {self.p["gapx"]}')
        A('s_cselect_b32 s43, 0x1000000, 0')
        A('s_xor_b32 s56, s56, s43')
        A('s_lshl_b32 s56, s56, s4')
        A(f's_atomic_or s56, s[{S_DBG}:{S_DBG + 1}], s44 glc')
        A('s_branch L_probeback2')
        L('L_probewait')
        A('s_barrier')
        A('s_branch L_probeback')

    def select(self):
        A, L, C = self.A, self.L, self.C
        self.wait_for('N')
        self.tagged = 1
        self.tags()
        A('s_cmp_eq_u32 s42, 0')
        A('s_cbranch_scc1 L_nonce')
        L('L_nonceback')
        C('majorities of the votes; the piece of this pair; the side its lower group sits on')
        NS = self.p['NS']

        def maj(dst, src, pos):
            A(f's_bfe_u32 {dst}, {src}, {0x80000 | pos:#x}')
            A(f's_bcnt1_i32_b32 {dst}, {dst}')
            A(f's_cmp_gt_u32 {dst}, 4')
            A(f's_cselect_b32 {dst}, 1, 0')
        n = 4 * NS
        HALF = sum(1 << i for i in range(n) if i % 2 == 1)
        num, den = self.p['tilt']
        TILT = sum(1 << i for i in range(n) if ((i + 1) * num) // den != (i * num) // den)
        maj('s42', 's14', 8)
        maj('s43', 's14', 24)
        A('s_xor_b32 s54, s42, s43')
        maj('s52', 's15', 8)
        maj('s43', 's15', 24)
        A('s_xor_b32 s53, s52, s43')
        A('s_and_b32 s44, s4, 3')
        A('s_add_u32 s44, s44, 16')
        A('s_lshr_b32 s44, s14, s44')
        A('s_lshr_b32 s45, s4, 2')
        A('s_xor_b32 s44, s44, s45')
        A('s_andn2_b32 s46, s2, 4')
        A('s_cmp_lt_u32 s46, 168')
        A('s_cselect_b32 s42, s42, s52')
        A('s_cselect_b32 s43, s54, s53')
        A('s_cmp_lg_u32 s54, 0')
        A(f's_mov_b32 s52, {HALF}')
        A(f's_cselect_b32 s52, {TILT}, s52')
        A('s_mul_i32 s43, s43, s52')
        A(f's_sub_u32 s52, s{S_X}, s{S_OUT}')
        A('s_addk_i32 s52, 2048')
        A('s_bitcmp1_b32 s52, 12')
        A('s_cselect_b32 s43, 0, s43')
        A('s_xor_b32 s42, s42, s44')
        A('s_bitcmp1_b32 s42, 0')
        A('s_cselect_b32 s42, -1, 0')
        A('s_xor_b32 s43, s43, s42')
        A('s_mul_i32 s45, s46, 196608')
        A('s_add_u32 s45, s45, s41')
        i = 0
        for sg in range(3 - NS, 3):
            for m in (0, 3):
                for rho in range(2):
                    d = f's{S_U + i}'
                    A(f's_add_u32 {d}, s45, {rho * 4 * 196608 + sg * 49152 + m * 6144}')
                    A(f's_add_u32 s47, {d}, s{S_OUT}')
                    A(f's_lshr_b32 s47, s47, {21 - i}')
                    A('s_xor_b32 s47, s47, s43')
                    A(f's_bitcmp1_b32 s47, {i}')
                    A('s_cselect_b32 s47, 24576, 0')
                    A(f's_add_u32 {d}, {d}, s47')
                    i += 1

    def tags(self):
        A, r = self.A, self.r
        A('v_readfirstlane_b32 s10, v34')
        A('v_readfirstlane_b32 s11, v35')
        if self.p['numa']:
            A('v_readfirstlane_b32 s14, v36')
            A('v_readfirstlane_b32 s15, v37')
        A('v_and_b32 v36, 1, v1')
        A('v_cmp_eq_u32 vcc, 1, v36')
        A('v_and_b32 v37, 7, v1')
        A('v_lshlrev_b32 v36, 4, v36')
        A('v_cndmask_b32 v38, v34, v35, vcc')
        A(f'v_add_u32 {r("tag")}, v38, v37')
        A('v_and_b32 v37, 2, v1')
        A('v_cmp_eq_u32 vcc, 2, v37')
        A('s_and_b32 s6, s10, 0xffff')
        A('s_lshr_b32 s7, s10, 16')
        A('v_cndmask_b32 v38, v34, v35, vcc')
        A(f'v_bfe_u32 {r("tag16")}, v38, v36, 16')
        A('s_and_b32 s8, s11, 0xffff')
        A('s_lshr_b32 s9, s11, 16')
        A('s_min_u32 s42, s10, s11')
        if self.p['numa']:
            A('s_and_b32 s43, s14, s15')
            A('s_and_b32 s43, s43, 0xff')
            A('s_cmp_eq_u32 s43, 0xff')
            A('s_cselect_b32 s42, s42, 0')

    def build(self):
        p = self.p
        A, L, C, r = self.A, self.L, self.C, self.r
        D, B, R = p['D'], p['B'], p['R']
        assert B % 2 == 0 and R - B <= 16 and DATA + 4 * R <= 256
        NDYN = 256 - 8 * B
        o = self.o
        o.append(HEADER.rstrip())
        o.append(f'; @launch grid=(256,1,1) block=(512,1,1) lds={LDS_BYTES}')
        o.append('.amdgcn_target "amdgcn-amd-amdhsa--gfx950"')
        o.append('.text')
        o.append(f'.globl {KNAME}')
        o.append('.p2align 8')
        o.append(f'.type {KNAME},@function')
        L(KNAME)
        self.stamp()
        A(f's_load_dwordx2 s[{S_X}:{S_X + 1}], s[0:1], 0')
        A(f's_load_dwordx2 s[{S_OUT}:{S_OUT + 1}], s[0:1], 24')
        G = p.get('G', 1)
        mp = p.get('map')
        if mp is None:
            A('v_mul_u32_u24 v2, 12, v0')
        else:
            wr = mp.get('wr', 1)
            A('v_lshrrev_b32 v3, 6, v0')
            A('v_mul_u32_u24 v2, 12, v0')
            if wr > 1:
                A(f'v_mul_u32_u24 v3, {(wr - 1) * 768}, v3')
                A('v_add_u32 v2, v2, v3')
        self.jj = 0
        def base(g):
            self.jj = 0
            if mp is not None:
                perm = mp.get('perm')
                if perm == 'xcd':
                    A('s_and_b32 s40, s2, 7')
                    A('s_lshl_b32 s40, s40, 5')
                    A('s_lshr_b32 s41, s2, 3')
                    A('s_add_u32 s40, s40, s41')
                    A('s_cmp_ge_u32 s2, 256')
                    A('s_cselect_b32 s40, s2, s40')
                    A('s_mul_i32 s40, s40, 196608')
                else:
                    A('s_mul_i32 s40, s2, 196608')
                if mp.get('rot'):
                    A('s_add_u32 s41, s40, 196608')
                    sh, mul = mp['rot']
                    A(f's_lshr_b32 s43, s2, {sh}')
                    A(f's_mul_i32 s43, s43, {mul}')
                    A(f's_and_b32 s43, s43, {32 // mp.get("wr", 1) - 1}')
                    A(f's_mul_i32 s43, s43, {6144 * mp.get("wr", 1)}')
                    A('s_add_u32 s40, s40, s43')
            elif g == 1:
                A('s_mul_i32 s40, s2, 196608')
            else:
                A(f's_and_b32 s40, s2, {g - 1}')
                A('s_mul_i32 s40, s40, -31')
                A('s_lshl_b32 s41, s2, 5')
                A('s_add_u32 s40, s40, s41')
                A('s_mul_i32 s40, s40, 6144')
                A(f's_mov_b32 s41, {g * 6144}')
        def adv(g):
            self.jj += 1
            if mp is not None:
                wr = mp.get('wr', 1)
                if self.jj % wr:
                    A('s_addk_i32 s40, 768')
                else:
                    A(f's_add_u32 s40, s40, {6144 * wr - (wr - 1) * 768}')
                    if mp.get('rot'):
                        A('s_cmp_ge_u32 s40, s41')
                        A('s_cselect_b32 s43, 196608, 0')
                        A('s_sub_u32 s40, s40, s43')
                return
            A('s_addk_i32 s40, 6144' if g == 1 else 's_add_u32 s40, s40, s41')
        base(G)
        A(f's_mov_b32 s{S_X + 2}, {XBYTES}')
        A(f's_mov_b32 s{S_X + 3}, 0x20000')
        numa = p['numa']
        NS = p['NS']
        S = 32 - 4 * NS
        NEUTRAL = [u for u in range(32) if u < 8 * (3 - NS) or u >= 24 or u % 8 in (1, 2, 5, 6)]
        assert len(NEUTRAL) == S
        if numa:
            A('s_lshr_b32 s5, s2, 3')
            A('s_or_b32 s4, s5, 1')
            A('s_cmp_eq_u32 s4, 7')
            A('s_cbranch_scc1 L_probe')
            L('L_probeback')
        A('s_waitcnt lgkmcnt(0)')
        L('L_probeback2')

        def shift():
            C('first unit (8 rows) of this workgroup that starts a 16-KiB period of d_out (to within 2 KiB)')
            A(f's_bfe_u32 s41, s{S_OUT}, 0x3000b')
            A('s_mul_i32 s41, s41, 5')
            A('s_and_b32 s41, s41, 7')
            A('s_mulk_i32 s41, 6144')
            A('s_add_u32 s40, s40, s41')
        shift()

        def slot(j):
            if j >= S:
                return f's{S_U + j - S}'
            if j == 0 and NEUTRAL[0]:
                A(f's_addk_i32 s40, {6144 * NEUTRAL[0]}')
            if j:
                A(f's_addk_i32 s40, {6144 * (NEUTRAL[j] - NEUTRAL[j - 1])}')
            if NEUTRAL[j] > 24:
                A('s_cmp_ge_u32 s40, s51')
                A('s_cselect_b32 s47, 196608, 0')
                A('s_sub_u32 s40, s40, s47')
            return 's40'

        def voff(j):
            return r('rev') if (p.get('rev', True) and numa and j >= S and (j - S) % 2 == 1) else 'v2'

        def request():
            A('s_mov_b64 exec, 1')
            A(f'ds_add_rtn_u32 v42, {r("T")}, v43')
            A('s_mov_b64 exec, -1')

        def issue_x(j):
            if numa:
                if j == S:
                    self.select()
                so = slot(j)
            elif j < B:
                if j:
                    adv(G)
                so = 's40'
            else:
                so = f's{S_U + j - B}'
                A('s_waitcnt lgkmcnt(0)')
                A(f'v_readfirstlane_b32 s14, v42')
                if j + 1 < R:
                    request()
                A(f's_mul_i32 {so}, s14, 768')
                A(f's_add_u32 {so}, {so}, s41')
                A(f's_cmp_lt_u32 s14, {NDYN}')
                A(f's_cselect_b32 {so}, {so}, 2.0')
                A('s_addc_u32 s15, s15, 0')
            self.issue(f'X{j}', f'buffer_load_dwordx3 {self.d(j)}, {voff(j)}, {self.srd(S_X)}, {so} offen {p["lpol"]}'.rstrip())
            if j == B - 1 and R > B:
                request()

        for j in range(D):
            issue_x(j)
            if j == 0:
                A(f's_load_dwordx2 s[{S_DBG}:{S_DBG + 1}], s[0:1], 32')
                if not numa:
                    A('s_memrealtime s[10:11]')
            if j == 1 and R > B:
                A(f'v_mov_b32 {r("T")}, {L_T}')
                A('v_mov_b32 v43, 0')
                A(f'ds_write_b32 {r("T")}, v43')
                A('s_waitcnt lgkmcnt(0)')
                A('s_barrier')
        self.stamp()
        if numa:
            A('s_branch L_noprobe')
            self.probe()
            L('L_noprobe')
        A('s_cmp_ge_u32 s2, 256')
        A('s_cbranch_scc1 L_end')
        A('v_lshrrev_b32 v3, 6, v0')
        A('v_and_b32 v1, 63, v0')
        A(f's_mov_b32 s{S_DBG + 2}, 256')
        A('v_readfirstlane_b32 s3, v3')
        A(f's_mov_b32 s{S_DBG + 3}, 0x20000')
        A(f'v_mov_b32 {r("zero")}, 0')
        if not numa:
            A('s_lshl_b32 s42, s2, 3')
            A('s_add_u32 s42, s42, s3')
            A(f's_cmp_lg_u32 s42, {p["nwg"] * 8}')
            A('s_waitcnt lgkmcnt(0)')
            A('s_cbranch_scc1 L_nononce')
            C('one wave of the grid publishes the nonce of this launch (both words non-zero)')
            A('s_or_b32 s10, s10, 1')
            A('s_or_b32 s11, s11, 0x80000000')
            A('v_mov_b32 v34, s10')
            A('v_mov_b32 v35, s11')
            A('s_mov_b64 exec, 1')
            A(f'buffer_store_dwordx2 v[34:35], {r("zero")}, {self.srd(S_DBG)}, 0 offen sc1')
            A('s_mov_b64 exec, -1')
            L('L_nononce')
        A(f's_load_dwordx2 s[{S_WS}:{S_WS + 1}], s[0:1], 40')
        A(f's_load_dwordx2 s[{S_W1}:{S_W1 + 1}], s[0:1], 8')
        A(f's_load_dwordx2 s[{S_W2}:{S_W2 + 1}], s[0:1], 16')
        A(f's_mov_b32 s{S_WS + 2}, {WS_USE}')
        A(f's_mov_b32 s{S_WS + 3}, 0x20000')
        A(f's_mov_b32 s{S_W1 + 2}, {WBYTES}')
        A(f's_mov_b32 s{S_W1 + 3}, 0x20000')
        A(f's_mov_b32 s{S_W2 + 2}, {WBYTES}')
        A(f's_mov_b32 s{S_W2 + 3}, 0x20000')
        A(f's_mov_b32 s{S_OUT + 2}, {XBYTES}')
        A(f's_mov_b32 s{S_OUT + 3}, 0x20000')
        A('s_mov_b32 s48, 0xffff0000')
        A('s_mov_b32 s12, 0')
        if R > B:
            A('v_mov_b32 v43, 1')
            A('s_mov_b32 s15, 0')
            A('s_lshl_b32 s41, s2, 8')
            A('s_sub_u32 s41, s41, s3')
            A(f's_add_u32 s41, s41, {8 * B}')
            A('s_mul_i32 s41, s41, 768')
        A('s_getreg_b32 s13, hwreg(HW_REG_XCC_ID, 0, 1)')
        A('s_and_b32 s4, s2, 7')
        A('s_lshr_b32 s5, s2, 3')
        A('v_lshlrev_b32 v4, 4, v1')
        A('v_xor_b32 v3, 0x1c0, v0')
        A(f'v_mul_u32_u24 {r("rev")}, 12, v3')
        prep = []
        save, self.o = self.o, prep
        self.addr_prep()
        self.o = save
        o = self.o

        def unpack(j, t):
            for q in range(3):
                A(f'v_lshlrev_b32 v{t + 2 * q}, 16, v{DATA + 4 * j + q}')
                A(f'v_and_b32 v{t + 2 * q + 1}, s48, v{DATA + 4 * j + q}')

        def pair(j, extra=None):
            for jj in (j, j + 1):
                self.wait_for(f'X{jj}')
                if not numa and 'N' in self.vm and self.vm.index('N') < self.vm.index(f'X{jj}') and not getattr(self, 'tagged', 0):
                    self.tagged = 1
                    self.tags()
                t = TMP + 6 * (jj & 1)
                unpack(jj, t)
                if jj + D < R:
                    de = p.get('De')
                    if isinstance(de, tuple):
                        de = de[jj % len(de)]
                    if de:
                        A('s_cmp_lg_u32 s13, 0')
                        A(f's_cbranch_scc1 L_lt{jj}')
                        self.wait_for(f'X{jj + D - de}')
                        L(f'L_lt{jj}')
                    issue_x(jj + D)
                if extra:
                    extra(jj)
                for q in range(3):
                    a = ACC + 4 * q
                    if jj == 1:
                        A(f'v_pk_add_f32 v[{a}:{a + 1}], v[{TMP + 2 * q}:{TMP + 2 * q + 1}], v[{t + 2 * q}:{t + 2 * q + 1}]')
                    elif jj > 1:
                        A(f'v_pk_add_f32 v[{a}:{a + 1}], v[{a}:{a + 1}], v[{t + 2 * q}:{t + 2 * q + 1}]')
            for q in range(3):
                for h in range(2):
                    a = ACC + 4 * q + 2 + h
                    if j == 0:
                        A(f'v_max_f32 v{a}, v{TMP + 2 * q + h}, v{TMP + 6 + 2 * q + h}')
                    else:
                        A(f'v_max3_f32 v{a}, v{a}, v{TMP + 2 * q + h}, v{TMP + 6 + 2 * q + h}')

        def uni(j):
            if not p.get('uni'):
                return
            if j == p['tpos']:
                C('touch 1/32 of the lines this group will poll (lanes of one wave; everything else is out of range)')
                self.issue('PT', f'buffer_load_dword {r("junk")}, {r("tch")}, {self.srd(S_WS)}, 0 offen sc1')
            if j == p['wpf']:
                C('touch 1/32 of the weights')
                self.issue('PW1', f'buffer_load_dword {r("junk")}, {r("wtc")}, {self.srd(S_W1)}, 0 offen')
                self.issue('PW2', f'buffer_load_dword {r("junk")}, {r("wtc")}, {self.srd(S_W2)}, 0 offen')
            if p.get('iuni') and j == p['ipos']:
                C('read the kernel text behind the load loop once (1 KiB per wave), to pull it into L2')
                A('s_getpc_b64 s[46:47]')
                L('L_pc')
                A('s_lshl_b32 s42, s3, 10')
                A('s_add_u32 s42, s42, L_acc - L_pc')
                A('v_lshl_add_u32 v6, v1, 6, s42')
                A('v_min_u32 v6, L_last - L_pc, v6')
                A('v_mov_b32 v7, s47')
                A('v_add_co_u32 v6, vcc, s46, v6')
                A('s_mov_b64 exec, 0xffff')
                A('s_nop 0')
                A('v_addc_co_u32 v7, vcc, 0, v7, vcc')
                self.issue('PI', f'global_load_dword {r("junk")}, v[6:7], off')
                A('s_mov_b64 exec, -1')

        nprep = p.get('prepsteps', 1)
        chunk = -(-len(prep) // nprep)
        for j in range(0, B, 2):
            if prep:
                o.extend(prep[:chunk])
                prep = prep[chunk:]
                if not prep:
                    A('s_mov_b32 s49, 0x7fff7fff')
                    A('s_add_u32 s51, s2, 1')
                    A('s_mul_i32 s51, s51, 196608')
                    A('s_waitcnt lgkmcnt(0)')
            if j == p['npos']:
                self.issue('N', f'buffer_load_dwordx4 v[34:37], {r("zero")}, {self.srd(S_DBG)}, 0 offen sc1')
            if j == p['ipos'] and not p.get('iuni'):
                A('s_and_b32 s42, s3, 3')
                A('s_cmp_lg_u32 s42, 1')
                A('s_cbranch_scc1 L_noipf')
                C('waves 1, 5: read the kernel text behind the load loop once, to pull it into L2')
                A('s_getpc_b64 s[46:47]')
                L('L_pc')
                A('s_lshl_b32 s42, s3, 10')
                A('s_add_u32 s42, s42, L_acc - L_pc - 1024')
                A('v_lshl_add_u32 v6, v1, 6, s42')
                A('v_min_u32 v6, L_last - L_pc, v6')
                A('v_mov_b32 v7, s47')
                A('v_add_co_u32 v6, vcc, s46, v6')
                A('s_nop 1')
                A('v_addc_co_u32 v7, vcc, 0, v7, vcc')
                A(f'global_load_dword {r("junk")}, v[6:7], off')
                L('L_noipf')
            uni(j)
            if j == p['wpf'] and not p.get('uni'):
                A('s_cmp_lg_u32 s3, 6')
                A('s_cbranch_scc1 L_nowpf')
                C('wave 6: touch 1/32 of the weights so that they are in L2 when they are staged')
                if p.get('wmall'):
                    A('s_mul_i32 s42, s2, 320')
                    A('v_lshlrev_b32 v6, 6, v1')
                    A('s_mov_b64 exec, 31')
                else:
                    A('s_mul_i32 s42, s5, 2304')
                    A('v_lshlrev_b32 v6, 6, v1')
                    A('s_mov_b32 exec_hi, 15')
                A(f'buffer_load_dword {r("junk")}, v6, {self.srd(S_W1)}, s42 offen')
                A(f'buffer_load_dword {r("junk")}, v6, {self.srd(S_W2)}, s42 offen')
                A('s_mov_b64 exec, -1')
                L('L_nowpf')
            if j == p['tpos'] and not p.get('uni'):
                A('s_cmp_lg_u32 s3, 4')
                A('s_cbranch_scc1 L_notch')
                C('wave 4: touch 1/32 of the lines this group will poll')
                if p.get('nobt'):
                    A('s_mov_b32 exec_hi, 0x1000ffff')
                if p.get('apos') is not None:
                    A('s_mov_b32 exec_lo, 0')
                    A('s_mov_b32 exec_hi, 0x1fff0000')
                A(f'buffer_load_dword {r("junk")}, {r("tch")}, {self.srd(S_WS)}, 0 offen {p.get("tpol", "sc1")}')
                A('s_mov_b64 exec, -1')
                L('L_notch')
            if j == p.get('apos'):
                assert self.tagged
                A('s_cmp_ge_u32 s3, 3')
                A('s_cbranch_scc1 L_noalloc')
                C('waves 0..2: own the lines of their later records early (check word deliberately wrong)')
                A('v_mov_b32 v50, 0')
                A('v_mov_b32 v51, 0')
                A('v_mov_b32 v52, 0')
                A(f'v_not_b32 v53, {r("tag")}')
                A(f'buffer_store_dwordx4 v[50:53], {r("pub")}, {self.srd(S_WS)}, 0 offen')
                L('L_noalloc')
            if p.get('wtail') and j == 32 - D:
                A('s_cmp_lt_u32 s5, 6')
                A('s_cbranch_scc1 L_wtail')
                self.vm_at_tail = list(self.vm)
            pair(j)
        for j in range(B, R):
            A(f's_cmp_le_u32 s15, {j - B}')
            A('s_cbranch_scc1 L_acc')
            self.wait_for(f'X{j}')
            unpack(j, TMP)
            if j + D < R:
                issue_x(j + D)
            for q in range(3):
                a = ACC + 4 * q
                A(f'v_pk_add_f32 v[{a}:{a + 1}], v[{a}:{a + 1}], v[{TMP + 2 * q}:{TMP + 2 * q + 1}]')
                A(f'v_max_f32 v{a + 2}, v{a + 2}, v{TMP + 2 * q}')
                A(f'v_max_f32 v{a + 3}, v{a + 3}, v{TMP + 2 * q + 1}')
        assert self.tagged
        L('L_acc')
        self.stamp()
        if p.get('p1only'):
            A('s_branch L_stdone')
        for q in range(3):
            A(f'ds_write_b128 {r("Pw")}, v[{ACC + 4 * q}:{ACC + 4 * q + 3}] offset:{16 * q}')
        uni(32)
        if not numa:
            A('s_min_u32 s42, s10, s11')
            A('s_cmp_eq_u32 s42, 0')
            A('s_cbranch_scc1 L_nonce')
            L('L_nonceback')
        A('s_waitcnt lgkmcnt(0)')
        A('s_barrier')
        A('s_cmp_ge_u32 s3, 3')
        A('s_cbranch_scc1 L_nopub')
        for w in range(8):
            A(f'ds_read_b128 v[{8 + 4 * w}:{11 + 4 * w}], {r("t16")} offset:{3072 * w}')
        for k in range(4):
            A(f's_waitcnt lgkmcnt({6 - 2 * k})')
            ra, rb = 8 + 8 * k, 12 + 8 * k
            if k == 0:
                A(f'v_max_f32 v10, v10, v{rb + 2}')
                A(f'v_max_f32 v11, v11, v{rb + 3}')
            else:
                A(f'v_max3_f32 v10, v10, v{ra + 2}, v{rb + 2}')
                A(f'v_max3_f32 v11, v11, v{ra + 3}, v{rb + 3}')
            A(f'v_pk_add_f32 v[{ra}:{ra + 1}], v[{ra}:{ra + 1}], v[{rb}:{rb + 1}]')
            if k == 1:
                A('v_pk_add_f32 v[8:9], v[8:9], v[16:17]')
            if k == 2:
                A('v_pk_add_f32 v[8:9], v[8:9], v[24:25]')
        A('v_cvt_pk_bf16_f32 v10, v10, v11')
        A('v_pk_add_f32 v[8:9], v[8:9], v[32:33]')
        self.key(10, 12)
        self.seal()
        pubA = f'buffer_store_dwordx4 v[8:11], {r("pub")}, {self.srd(S_WS)}, 0 offen'
        A(pubA if not p.get('force') else pubA + ' sc1')
        self.stamp()
        A('s_cmp_lt_u32 s5, 6')
        A('s_cbranch_scc1 L_mlp')
        if not p['wb']:
            A(f's_sleep {p["dlyA"]}')
            A(pubA + ' sc1')
        A('s_branch L_join')
        L('L_nopub')
        A('s_cmp_lt_u32 s5, 6')
        A('s_cbranch_scc1 L_mlp')
        A('s_cmp_lg_u32 s3, 4')
        A('s_cbranch_scc1 L_mlpback')
        A('s_cmp_lt_u32 s5, 8')
        A('s_cbranch_scc1 L_join')
        def red_in(x):
            self.stamp()
            A(f'v_pk_add_f32 v[8:9], v[{x}:{x + 1}], v[{x + 4}:{x + 5}]')
            A(f'v_pk_add_f32 v[16:17], v[{x + 8}:{x + 9}], v[{x + 12}:{x + 13}]')
            A(f'v_pk_max_i16 v10, v{x + 2}, v{x + 6}')
            A(f'v_pk_max_i16 v18, v{x + 10}, v{x + 14}')
        self.poll('L_poll1', r('in1'), [0, 1024, 2048, 3072], (44, 60), self.check_rec, red_in, p['stag'][0])
        A('v_pk_add_f32 v[8:9], v[8:9], v[16:17]')
        A('v_pk_max_i16 v10, v10, v18')
        A('s_nop 0')
        A('v_add_f32_dpp v8, v8, v8 row_ror:8 row_mask:0xf bank_mask:0xf')
        A('v_add_f32_dpp v9, v9, v9 row_ror:8 row_mask:0xf bank_mask:0xf')
        A('v_mov_b32_dpp v14, v10 row_ror:8 row_mask:0xf bank_mask:0xf')
        A('v_mov_b32 v12, v8')
        A('v_mov_b32 v13, v9')
        A('v_pk_max_i16 v10, v10, v14')
        A('v_permlane16_swap_b32 v8, v12')
        A('v_mov_b32 v14, v10')
        A('v_permlane16_swap_b32 v9, v13')
        A('v_add_f32 v8, v8, v12')
        A('v_permlane16_swap_b32 v10, v14')
        A('v_add_f32 v9, v9, v13')
        A('v_mov_b32 v12, v8')
        A('v_pk_max_i16 v10, v10, v14')
        A('v_mov_b32 v13, v9')
        A('v_permlane32_swap_b32 v8, v12')
        A('v_mov_b32 v14, v10')
        A('v_permlane32_swap_b32 v9, v13')
        A('v_add_f32 v8, v8, v12')
        A('v_permlane32_swap_b32 v10, v14')
        A('v_add_f32 v9, v9, v13')
        A('v_pk_max_i16 v10, v10, v14')
        self.seal()
        A(f'buffer_store_dwordx4 v[8:11], {r("out2")}, {self.srd(S_WS)}, 0 offen sc1')
        self.stamp()
        L('L_mlpback')
        A('s_cmp_lg_u32 s3, 7')
        A('s_cbranch_scc1 L_join')
        A('s_mov_b32 exec_hi, 0xffff')
        def s_out(x):
            if p.get('spec', True):
                return
            A(f'ds_write_b128 {r("Sw")}, v[{x}:{x + 3}]')
            A(f'ds_write_b128 {r("Sw")}, v[{x + 4}:{x + 7}] offset:768')
        self.poll('L_poll3', r('in3'), [0, 768], (76, 84), self.check_scale, s_out, p['stag'][2])
        A('s_mov_b64 exec, -1')
        A('s_waitcnt lgkmcnt(0)')
        L('L_join')
        A('s_barrier')
        for q in range(3):
            A(f'ds_read_b64 v[{32 + 2 * q}:{33 + 2 * q}], {r("S")} offset:{8 * q}')
        base(G)
        A('s_add_u32 s51, s40, 196608')
        A('s_add_u32 s40, s40, s41')
        self.stamp()
        pubC = f'buffer_store_dword v40, {r("out3")}, {self.srd(S_WS)}, 0 offen'
        order = list(range(R))
        if numa:
            order, a_, b_ = [], 0, S
            for k in range(32):
                if ((k + 1) * 4 * NS) // 32 != (k * 4 * NS) // 32:
                    order.append(b_)
                    b_ += 1
                else:
                    order.append(a_)
                    a_ += 1
        for n, j in enumerate(order):
            if j >= B:
                A(f's_cmp_le_u32 s15, {j - B}')
                A('s_cbranch_scc1 L_stdone')
            if p['wb'] and n == p.get('c2pos', 8):
                C('the waves that published a part of the scale repeat that store write-through')
                A('s_cmp_eq_u32 s12, 0')
                A('s_cbranch_scc1 L_noc2')
                A('s_mov_b64 exec, 0xffff')
                A(pubC + ' sc1')
                A('s_mov_b64 exec, -1')
                L('L_noc2')
            t = 8 + 6 * (n & 3)
            unpack(j, t)
            if n == 0:
                A('s_waitcnt lgkmcnt(0)')
            for q in range(3):
                A(f'v_pk_mul_f32 v[{t + 2 * q}:{t + 2 * q + 1}], v[{t + 2 * q}:{t + 2 * q + 1}], v[{32 + 2 * q}:{33 + 2 * q}]')
            for q in range(3):
                A(f'v_cvt_pk_bf16_f32 v{DATA + 4 * j + q}, v{t + 2 * q}, v{t + 2 * q + 1}')
            if numa:
                so = slot(j)
            else:
                if 0 < j < B:
                    adv(G)
                so = 's40' if j < B else f's{S_U + j - B}'
            ne, no = p.get('thr', (0, 0))
            if no and n >= no:
                A(f's_waitcnt vmcnt({no - 1})')
            if isinstance(ne, tuple):
                ne = ne[n % len(ne)]
            if ne and ne != no and n >= ne:
                A(f's_cbranch_vccnz L_thr{j}')
                A(f's_waitcnt vmcnt({ne - 1})')
                L(f'L_thr{j}')
            A(f'buffer_store_dwordx3 {self.d(j)}, {voff(j)}, {self.srd(S_OUT)}, {so} offen {p["spol"] if p.get("pfirst", 0) <= j < R - p.get("plast", 0) else p.get("spol2", "")}'.rstrip())
        L('L_stdone')
        if p.get('dumpptr'):
            A('s_cmp_lg_u32 s2, 0')
            A('s_cbranch_scc1 L_nodump')
            A('s_mov_b64 exec, 1')
            for k, sr in enumerate((S_X, S_X + 1, S_OUT, S_OUT + 1, S_WS, S_WS + 1, S_W1, S_DBG)):
                A(f'v_mov_b32 v8, s{sr}')
                A(f'buffer_store_dword v8, {r("zero")}, {self.srd(S_DBG)}, 0 offen offset:{16 + 4 * k}')
                A('s_nop 1')
            L('L_nodump')
        if p.get('amp') is not None and not p['stamps']:
            A('s_waitcnt vmcnt(0)')
            self.stamp()
            A('s_waitcnt lgkmcnt(0)')
            A('s_sub_u32 s94, s92, s88')
            if len(p['amp']) > 3:
                A('s_min_u32 s94, s94, 500')
                A('s_sub_u32 s94, 500, s94')
            A('s_cmp_eq_u32 s92, 0')
            A('s_cselect_b32 s94, 0, s94')
            A('s_cmp_eq_u32 s88, 0')
            A('s_cselect_b32 s94, 0, s94')
            A('s_min_u32 s94, s94, 3000')
            A(f's_lshl_b32 s94, s94, {p["amp"][2]}')
            A('s_add_u32 s94, s94, 3000')
            L('L_pad')
            A('s_sleep 2')
            A('s_memrealtime s[92:93]')
            A('s_waitcnt lgkmcnt(0)')
            A('s_sub_u32 s95, s92, s90')
            A('s_cmp_lt_u32 s95, s94')
            A('s_cbranch_scc1 L_pad')
        if p['stamps']:
            A('s_waitcnt vmcnt(0)')
            self.stamp()
            A('s_branch L_stamps')
        L('L_end')
        A('s_endpgm')

        L('L_nonce')
        C('the nonce was not there yet when this wave looked: wait for it')
        A(f's_mov_b32 s50, {p["spin"]}')
        L('L_nonceloop')
        A(f'buffer_load_dwordx4 v[34:37], {r("zero")}, {self.srd(S_DBG)}, 0 offen sc1')
        A('s_waitcnt vmcnt(0)')
        self.tags()
        A('s_cmp_lg_u32 s42, 0')
        A('s_cbranch_scc1 L_nonceback')
        A('s_sleep 4')
        A('s_sub_u32 s50, s50, 1')
        A('s_cbranch_scc0 L_nonceloop')
        A('s_branch L_nonceback')

        if p.get('wtail'):
            L('L_wtail')
            C('MLP workgroups: last rows, with the weight staging issued while the row loads drain')
            self.vm = self.vm_at_tail
            todo = list(range(p['wtail'][0]))
            def extra(jj):
                for _ in range(p['wtail'][1]):
                    if todo:
                        self.stage_one(todo.pop(0))
            for j in range(32 - D, 32, 2):
                pair(j, extra)
            assert not todo
            A('s_branch L_acc')
        L('L_mlp')
        C('MLP workgroups (ranks 0..5 of every group)')
        first = p['wtail'][0] if p.get('wtail') else 0
        pre = p.get('pre', 0)
        if p.get('cons'):
            n_pub, n_oth = p['cons']
            assert 3 * n_pub + 5 * n_oth == 96
            def run(n, lab):
                A('s_mov_b32 exec_hi, 0xffff')
                for i in range(n):
                    if i % 5 == 0:
                        if i:
                            A('s_addk_i32 s44, 3840')
                        A('s_mov_b32 m0, s44')
                        A('s_nop 0')
                    off = f' offset:{768 * (i % 5)}' if i % 5 else ''
                    A(f'buffer_load_dwordx4 {r("vW1" if i % 2 == 0 else "vW1b")}, {self.srd(S_W1)}, s44 offen{off} lds')
                A('s_mov_b32 exec_hi, -1')
            if n_pub == n_oth:
                A('s_barrier')
                run(n_pub, 'a')
                self.stage_one(12)
                self.stage_one(13)
            else:
                A('s_cmp_ge_u32 s3, 3')
                A('s_cbranch_scc1 L_cons1')
                if not p.get('nob1b'):
                    A('s_barrier')
                run(n_pub, 'a')
                self.stage_one(12)
                self.stage_one(13)
                A('s_branch L_cons2')
                L('L_cons1')
                A('s_mov_b32 s43, s44')
                self.stage_one(12)
                self.stage_one(13)
                A('s_mov_b32 s44, s43')
                if not p.get('nob1b'):
                    A('s_barrier')
                run(n_oth, 'b')
                L('L_cons2')
        elif pre:
            C('waves 3..7 start a few copies while waves 0..2 still publish')
            A('s_cmp_ge_u32 s3, 3')
            A('s_cbranch_scc1 L_pre1')
            A('s_barrier')
            L('L_pre1')
            for i in range(pre):
                self.stage_one(i)
            A('s_cmp_lt_u32 s3, 3')
            A('s_cbranch_scc1 L_pre2')
            A('s_barrier')
            L('L_pre2')
            for i in range(pre, 14):
                self.stage_one(i)
        elif first < 14:
            A('s_barrier')
            for i in range(first, 14):
                self.stage_one(i)
        A('s_movk_i32 s42, 6144')
        A('s_movk_i32 s43, 12288')
        A('s_movk_i32 s45, 18432')
        A('s_waitcnt vmcnt(0)')
        A('s_barrier')
        if not p['wb']:
            A('s_cmp_ge_u32 s3, 3')
            A('s_cbranch_scc1 L_nopub2')
            A(pubA + ' sc1')
            L('L_nopub2')
        def tr_reads():
            for b in range(12):
                for h in range(2):
                    base = r('a1') if b < 6 else r('a1b')
                    x = W1F + 4 * b + 2 * h
                    A(f'ds_read_b64_tr_b16 v[{x}:{x + 1}], {base} offset:{(b % 6) * 6144 + h * 1536}')
            for b in range(3):
                for h in range(2):
                    x = W2F + 4 * b + 2 * h
                    A(f'ds_read_b64_tr_b16 v[{x}:{x + 1}], {r("a2")} offset:{(32 * b + 8 * h) * 128}')
            self.stamp()
        assert p['direct']
        if p.get('direct'):
            A('s_cmp_ge_u32 s3, 6')
            A('s_cbranch_scc1 L_nog')
            if not p.get('hoist', True):
                tr_reads()
            def g_in(x):
                self.stamp()
                A(f'v_pk_add_f32 v[8:9], v[{x}:{x + 1}], v[{x + 4}:{x + 5}]')
                A(f'v_pk_add_f32 v[16:17], v[{x + 8}:{x + 9}], v[{x + 12}:{x + 13}]')
                A(f'v_pk_max_i16 v10, v{x + 2}, v{x + 6}')
                A(f'v_pk_max_i16 v18, v{x + 10}, v{x + 14}')
            self.poll('L_poll2', r('in2'), ['0', 's42', 's43', 's45'], (20, 20), self.check_rec, g_in, 0, between=tr_reads if p.get('hoist', True) else None)
            A('v_pk_add_f32 v[8:9], v[8:9], v[16:17]')
            A('v_pk_max_i16 v10, v10, v18')
            A('v_mov_b32 v12, v8')
            A('v_mov_b32 v13, v9')
            A('v_mov_b32 v14, v10')
            A('v_permlane32_swap_b32 v8, v12')
            A('v_permlane32_swap_b32 v9, v13')
            A('v_permlane32_swap_b32 v10, v14')
            A('v_pk_add_f32 v[8:9], v[8:9], v[12:13]')
            A('v_pk_max_i16 v10, v10, v14')
            A('v_mul_f32 v8, 0x37800000, v8')
            A('v_mul_f32 v9, 0x37800000, v9')
            self.key(10, 12)
            A('v_cvt_pk_bf16_f32 v8, v8, v9')
            A('s_mov_b32 exec_hi, 0')
            A(f'ds_write2_b32 {r("Gw")}, v8, v10 offset0:0 offset1:{GOFF // 4}')
            A('s_mov_b32 exec_hi, -1')
            A('s_waitcnt lgkmcnt(0)')
        else:
            def q_out(x):
                self.stamp()
                for q in range(3):
                    A(f'ds_write_b128 {r("Qw")}, v[{x + 4 * q}:{x + 3 + 4 * q}] offset:{1024 * q}')
            self.poll('L_poll2', r('in2'), [0, 1024, 2048], (104, 116), self.check_rec, q_out, p['stag'][1])
            A('s_waitcnt lgkmcnt(0)')
            A('s_barrier')
            if p.get('fine') and p['stamps']:
                A('s_memrealtime s[68:69]')
            A('s_cmp_ge_u32 s3, 3')
            A('s_cbranch_scc1 L_nog')
            for w in range(8):
                A(f'ds_read_b128 v[{8 + 4 * w}:{11 + 4 * w}], {r("t16")} offset:{3072 * w}')
            for k in range(4):
                A(f's_waitcnt lgkmcnt({6 - 2 * k})')
                ra, rb = 8 + 8 * k, 12 + 8 * k
                A(f'v_pk_add_f32 v[{ra}:{ra + 1}], v[{ra}:{ra + 1}], v[{rb}:{rb + 1}]')
                A(f'v_pk_max_i16 v{ra + 2}, v{ra + 2}, v{rb + 2}')
                if k:
                    A(f'v_pk_add_f32 v[8:9], v[8:9], v[{ra}:{ra + 1}]')
                    A(f'v_pk_max_i16 v10, v10, v{ra + 2}')
            A('v_mul_f32 v8, 0x37800000, v8')
            A('v_mul_f32 v9, 0x37800000, v9')
            self.key(10, 12)
            A('v_cvt_pk_bf16_f32 v8, v8, v9')
            A(f'ds_write2_b32 {r("Gw")}, v8, v10 offset0:0 offset1:{GOFF // 4}')
            A('s_waitcnt lgkmcnt(0)')
        L('L_nog')
        A('s_barrier')
        self.stamp()
        A('s_cmp_ge_u32 s3, 6')
        A('s_cbranch_scc1 L_nol1')
        NB = 8
        for b in range(NB):
            A(f'ds_read_b128 v[{8 + 4 * b}:{11 + 4 * b}], {r("G")} offset:{64 * b}')
        issued = NB
        for b in range(12):
            A(f's_waitcnt lgkmcnt({issued - b - 1})')
            g = 8 + 4 * (b % NB)
            c = '0' if b == 0 else 'v[40:43]'
            A(f'v_mfma_f32_16x16x32_bf16 v[40:43], v[{W1F + 4 * b}:{W1F + 4 * b + 3}], v[{g}:{g + 3}], {c}')
            if issued < 12:
                A(f'ds_read_b128 v[{g}:{g + 3}], {r("G")} offset:{64 * issued}')
                issued += 1
        A('s_nop 7')
        if p.get('fine') and p['stamps']:
            A('v_mov_b32 v7, v43')
            A('s_memrealtime s[62:63]')
        for k in range(4):
            A(f'v_mul_f32 v{8 + k}, 0, v{40 + k}')
            A(f'v_cmp_lt_f32 s[{52 + 2 * k}:{53 + 2 * k}], 0, v{40 + k}')
        A('s_mov_b32 exec_lo, 0x00030003')
        A('s_mov_b32 exec_hi, 0x00030003')
        for k in range(4):
            A(f'v_cndmask_b32 v{8 + k}, v{8 + k}, v{40 + k}, s[{52 + 2 * k}:{53 + 2 * k}]')
        A('v_cvt_pk_bf16_f32 v12, v8, v9')
        A('v_cvt_pk_bf16_f32 v13, v10, v11')
        A(f'ds_write_b64 {r("Hw")}, v[12:13]')
        A('s_mov_b64 exec, -1')
        A('s_waitcnt lgkmcnt(0)')
        L('L_nol1')
        A('s_barrier')
        if p.get('fine') and p['stamps']:
            A('s_memrealtime s[66:67]')
        A('s_cmp_ge_u32 s3, 4')
        A('s_cbranch_scc1 L_mlpback')
        for b in range(3):
            A(f'ds_read_b128 v[{8 + 4 * b}:{11 + 4 * b}], {r("H")} offset:{64 * b}')
        for b in range(3):
            A(f's_waitcnt lgkmcnt({2 - b})')
            c = '0' if b == 0 else 'v[20:23]'
            wf = W2F + 4 * b
            A(f'v_mfma_f32_16x16x32_bf16 v[20:23], v[{8 + 4 * b}:{11 + 4 * b}], v[{wf}:{wf + 3}], {c}')
        A('s_nop 7')
        if p.get('fine') and p['stamps']:
            A('v_mov_b32 v7, v23')
            A('s_memrealtime s[70:71]')
        A('v_cvt_pk_bf16_f32 v8, v20, v21')
        A('v_lshlrev_b32 v9, 16, v8')
        A('v_and_b32 v8, s48, v8')
        A('v_add_f32 v8, v8, v9')
        A('v_cvt_pk_bf16_f32 v8, v8, v8')
        A('v_and_b32 v8, s48, v8')
        A('v_mul_f32 v8, 0xbfb8aa3b, v8')
        A('v_exp_f32 v8, v8')
        A('s_mov_b64 exec, 0xffff')
        A('v_add_f32 v8, 1.0, v8')
        A('v_rcp_f32 v8, v8')
        A('s_nop 0')
        A('v_cvt_pk_bf16_f32 v8, v8, v8')
        A(f'v_and_or_b32 v40, v8, s48, {r("tag16")}')
        A(pubC if not p.get('force') else pubC + ' sc1')
        A('s_mov_b32 s12, 1')
        self.stamp()
        if not p['wb']:
            A(f's_sleep {p["dlyC"]}')
            A(pubC + ' sc1')
        A('s_mov_b64 exec, -1')
        L('L_last')
        A('s_branch L_join')

        if p['stamps']:
            L('L_stamps')
            A('s_waitcnt lgkmcnt(0)')
            A(f's_add_u32 s56, s{S_WS}, 0x8000000')
            A(f's_addc_u32 s57, s{S_WS + 1}, 0')
            A('s_lshl_b32 s58, s2, 4\n    s_add_u32 s58, s58, s3\n    s_lshl_b32 s58, s58, 7')
            A('s_mov_b64 exec, 1')
            A('v_mov_b32 v1, s58')
            A('s_getreg_b32 s59, hwreg(HW_REG_XCC_ID, 0, 4)')
            A('v_mov_b32 v4, s59\n    v_mov_b32 v5, 0')
            A('global_store_dwordx2 v1, v[4:5], s[56:57] offset:120')
            A('s_nop 1')
            A('v_mov_b32 v4, s15')
            A('global_store_dwordx2 v1, v[4:5], s[56:57] offset:112')
            A('s_nop 1')
            order = [0, 1, 2, 3, 4, 5, 8, 9, 10, 11, 6, 7]
            for i, k in enumerate(order):
                A(f'v_mov_b32 v4, s{S_ST + 2 * k}\n    v_mov_b32 v5, s{S_ST + 1 + 2 * k}')
                A(f'global_store_dwordx2 v1, v[4:5], s[56:57] offset:{8 * i}')
                A('s_nop 1')
            A('s_endpgm')
        o.append('.section .rodata,"a"')
        o.append('.p2align 6')
        o.append(f'.amdhsa_kernel {KNAME}')
        o.append('  .amdhsa_next_free_vgpr 256')
        o.append('  .amdhsa_next_free_sgpr 102')
        o.append('  .amdhsa_accum_offset 256')
        o.append('  .amdhsa_group_segment_fixed_size 0')
        o.append('  .amdhsa_kernarg_size 48')
        o.append('  .amdhsa_user_sgpr_count 2')
        o.append('  .amdhsa_user_sgpr_kernarg_segment_ptr 1')
        o.append('  .amdhsa_system_sgpr_workgroup_id_x 1')
        o.append('  .amdhsa_float_denorm_mode_32 3')
        o.append('.end_amdhsa_kernel')
        return '\n'.join(o) + '\n'

    def addr_prep(self):
        A, r = self.A, self.r
        kg, q3, l1, kc, rr, q7 = 'v44', 'v45', 'v46', 'v47', 'v48', 'v49'
        A(f'v_lshrrev_b32 {kg}, 4, v1')
        A(f'v_and_b32 {q3}, 3, v1')
        A(f'v_and_b32 {l1}, 1, v1')
        A(f'v_bfe_u32 {kc}, v1, 4, 1')
        A(f'v_bfe_u32 {rr}, v1, 2, 2')
        A(f'v_and_b32 {q7}, 0x70, v4')
        A('s_mul_i32 s45, s3, 3072')
        A(f's_add_u32 s45, s45, {L_P}')
        A('v_mul_u32_u24 v3, 48, v1')
        A(f'v_add_u32 {r("Pw")}, s45, v3')
        A(f'v_add_u32 {r("Qw")}, s45, v4')
        A('v_lshlrev_b32 v3, 4, v0')
        A(f'v_add_u32 {r("t16")}, {L_P}, v3')
        A('s_mul_i32 s49, s4, 98304')
        A('s_lshl_b32 s45, s5, 7')
        A('s_add_u32 s45, s45, s49')
        A('v_lshrrev_b32 v3, 3, v0')
        A(f'v_lshl_add_u32 v3, v3, 12, {q7}')
        A(f'v_add_u32 {r("pub")}, s45, v3')
        A('s_sub_u32 s51, s5, 8')
        A('s_lshl_b32 s45, s51, 12')
        A('s_add_u32 s45, s45, s49')
        A(f'v_add_u32 {r("in1")}, s45, v4')
        if self.p['tpos'] is not None:
            A('s_mul_i32 s45, s5, 3072')
            A('s_add_u32 s45, s45, s49')
            A('v_lshlrev_b32 v3, 6, v1')
            A('v_add_u32 v5, s45, v3')
            A(f's_xor_b32 s45, s4, {self.p.get("bx", 0)}')
            A('s_mul_i32 s45, s45, 24576')
            A('s_mul_i32 s43, s5, 768')
            A('s_add_u32 s45, s45, s43')
            A(f's_add_u32 s45, s45, {O_B - 48 * 64}')
            A('v_add_u32 v6, s45, v3')
            A('v_cmp_gt_u32 vcc, 48, v1')
            A('s_lshl_b32 s45, s4, 11')
            A('s_lshl_b32 s43, s5, 6')
            A('v_cndmask_b32 v5, v6, v5, vcc')
            A('s_add_u32 s45, s45, s43')
            A(f's_add_u32 s45, s45, {O_C}')
            A('v_mov_b32 v6, s45')
            A('v_cmp_gt_u32 vcc, 60, v1')
            A('s_nop 1')
            A(f'v_cndmask_b32 {r("tch")}, v6, v5, vcc')
            if self.p.get('uni'):
                A(f's_cmp_eq_u32 s3, {self.p.get("twave", 4)}')
                A('s_cselect_b32 s45, 0, 2.0')
                A(f'v_add_u32 {r("tch")}, s45, {r("tch")}')
                A('s_mul_i32 s45, s5, 2304')
                A(f's_cmp_eq_u32 s3, {self.p.get("wwave", 6)}')
                A('s_cselect_b32 s45, s45, 2.0')
                A('v_add_u32 v5, s45, v3')
                A('v_cmp_gt_u32 vcc, 36, v1')
                A('v_mov_b32 v6, 2.0')
                A('s_nop 0')
                A(f'v_cndmask_b32 {r("wtc")}, v6, v5, vcc')
                if self.p.get('half'):
                    A(f'v_lshlrev_b32 v5, 30, {l1}')
                    A(f'v_or_b32 {r("wtc")}, v5, {r("wtc")}')
                    A(f'v_or_b32 {r("tch")}, v5, {r("tch")}')
        A('s_mul_i32 s45, s4, 3072')
        A('s_lshl_b32 s49, s51, 7')
        A('s_add_u32 s45, s45, s49')
        A(f's_add_u32 s45, s45, {O_B}')
        A('v_lshrrev_b32 v3, 3, v1')
        A('v_mul_u32_u24 v3, 24576, v3')
        A(f'v_add3_u32 {r("out2")}, v3, {q7}, s45')
        if self.p.get('direct'):
            A('s_mul_i32 s45, s4, 24576')
            A('s_lshl_b32 s49, s3, 9')
            A('s_add_u32 s45, s45, s49')
            A(f's_add_u32 s45, s45, {O_B}')
            A('v_lshrrev_b32 v3, 5, v1')
            A('v_mul_u32_u24 v3, 2560, v3')
            A(f'v_add3_u32 {r("in2")}, v3, v4, s45')
        else:
            A('s_lshl_b32 s45, s4, 3')
            A('s_add_u32 s45, s45, s3')
            A('s_mul_i32 s45, s45, 3072')
            A(f's_add_u32 s45, s45, {O_B}')
            A(f'v_add_u32 {r("in2")}, s45, v4')
        A('s_lshl_b32 s45, s4, 11')
        A(f's_add_u32 s45, s45, {O_C}')
        A(f'v_add_u32 {r("in3")}, s45, v4')
        A('s_lshl_b32 s49, s5, 2')
        A('s_add_u32 s49, s49, s3')
        A('s_lshl_b32 s49, s49, 6')
        A('s_add_u32 s45, s45, s49')
        A(f'v_lshl_add_u32 {r("out3")}, v1, 2, s45')
        if self.p.get('direct'):
            A('v_and_b32 v3, 0x19, v1')
            A('s_lshl_b32 s45, s3, 5')
            A('v_add_u32 v3, s45, v3')
        else:
            A('v_and_b32 v3, 0x1f9, v0')
        A('v_bfe_u32 v5, v0, 1, 1')
        A('v_lshl_add_u32 v3, v5, 2, v3')
        A('v_bfe_u32 v5, v0, 2, 1')
        A('v_lshl_add_u32 v3, v5, 1, v3')
        A('v_lshlrev_b32 v3, 2, v3')
        A(f'v_add_u32 {r("Gw")}, {L_G}, v3')
        A(f'v_mul_u32_u24 v3, {GOFF}, {l1}')
        A(f'v_lshl_add_u32 v3, {kg}, 4, v3')
        A(f'v_add_u32 {r("G")}, {L_G}, v3')
        A(f'v_mul_u32_u24 v3, 192, {l1}')
        A(f'v_add_u32 v3, {L_H}, v3')
        A(f'v_lshl_add_u32 {r("H")}, {kg}, 4, v3')
        A(f'v_lshl_add_u32 v3, {kc}, 4, v3')
        A('v_lshrrev_b32 v5, 5, v1')
        A('v_lshl_add_u32 v3, v5, 3, v3')
        A('s_lshl_b32 s45, s3, 5')
        A(f'v_add_u32 {r("Hw")}, s45, v3')
        A(f'v_add_u32 {r("Sw")}, {L_S}, v4')
        A('v_mul_u32_u24 v3, 24, v1')
        A(f'v_add_u32 {r("S")}, {L_S}, v3')
        if self.p.get('cons'):
            n_pub, n_oth = self.p['cons']
            A('s_min_u32 s44, s3, 3')
            A(f's_mul_i32 s44, s44, {n_pub - n_oth}')
            A(f's_mul_i32 s45, s3, {n_oth}')
            A('s_add_u32 s44, s44, s45')
            A('s_lshl_b32 s45, s44, 5')
            A('s_mul_i32 s44, s44, 768')
            A('s_and_b32 s45, s45, 32')
            A(f'v_xor_b32 {r("vW1")}, s45, v4')
            A(f'v_xor_b32 {r("vW1b")}, 32, {r("vW1")}')
        else:
            A('s_and_b32 s45, s45, 32')
            A(f'v_xor_b32 {r("vW1")}, s45, v4')
        A('v_lshrrev_b32 v3, 3, v1')
        A('v_mul_u32_u24 v3, 768, v3')
        A('s_lshl_b32 s45, s5, 7')
        A(f'v_add3_u32 {r("vW2")}, v3, {q7}, s45')
        A(f'v_lshl_add_u32 v6, {kc}, 2, {rr}')
        A('v_lshl_add_u32 v7, v5, 4, v6')
        A(f'v_xor_b32 v3, s3, {kc}')
        A('v_lshlrev_b32 v3, 5, v3')
        A(f'v_lshl_add_u32 v3, {q3}, 3, v3')
        A('v_mul_u32_u24 v5, 192, v7')
        A(f'v_add_u32 {r("a1")}, v3, v5')
        A(f'v_add_u32 {r("a1b")}, {6 * 6144}, {r("a1")}')
        A('v_lshlrev_b32 v5, 7, v7')
        A(f'v_lshl_add_u32 v5, {q3}, 3, v5')
        A('s_and_b32 s45, s3, 3')
        A('s_lshl_b32 s45, s45, 5')
        A(f's_add_u32 s45, s45, {L_W2}')
        A(f'v_add_u32 {r("a2")}, s45, v5')


if __name__ == '__main__':
    kw = eval('dict(%s)' % (sys.argv[2] if len(sys.argv) > 2 else ''))
    open(sys.argv[1], 'w').write(Gen(**kw).build())
```

```python
import sys

KNAME = 'standalone__channel_attn_cbam__vision_kernel'
HEADER = """; Kernarg layout for this problem (48 bytes, ptrs only, base s[0:1]):
"""

XBYTES = 50331648
WBYTES = 73728
O_A = 0
O_B = 786432
O_C = O_B + 196608
WS_USE = 1 << 20
L_W1, L_W2 = 0, 73728
L_P = 90112
L_G, L_H, L_S = 114688, 116736, 117248
GOFF = 832
LDS_BYTES = 118784
S_X, S_W1, S_W2, S_OUT, S_DBG, S_WS = 16, 20, 24, 28, 32, 36
ACC, TMP, W1F, W2F, DATA = 8, 20, 44, 92, 104
S_U, S_ST = 60, 76
L_T = 116480
XOR3 = 'bitop3:0x96'


class Gen:
    def __init__(self, **kw):
        self.p = dict(D=8, lpol='nt', spol='sc1', stamps=False, npos=6, ipos=26, wpf=28, tpos=28, half=True, thr=(0, 0),
                      spin=1 << 20, dlyA=16, dlyC=10, nwg=0, wb=64, stag=(0, 0, 0), uni=True, iuni=True, twave=5, numa=True, NS=3, tilt=(1, 3), gap=40, gapx=30, De=5, direct=True, hoist=False, bx=1, B=32, R=32)
        self.p.update(kw)
        self.o = []
        self.vm = []
        self.nstamp = 0
        self.names = {}

    def A(self, s):
        self.o.append('    ' + s)

    def L(self, s):
        self.o.append(s + ':')

    def C(self, s):
        self.o.append('    ; ' + s)

    def srd(self, b):
        return f's[{b}:{b + 3}]'

    def issue(self, tag, text):
        self.A(text)
        self.vm.append(tag)

    def wait_for(self, tag):
        n = len(self.vm) - 1 - self.vm.index(tag)
        assert n <= 63
        self.A(f's_waitcnt vmcnt({n})')

    def stamp(self):
        self.npos = getattr(self, 'npos', -1) + 1
        amp = self.p.get('amp')
        if amp is not None and self.npos == 0:
            self.A('s_memrealtime s[90:91]')
            self.A('s_mov_b32 s88, 0')
            self.A('s_mov_b32 s92, 0')
        if amp is not None and self.npos == amp[0]:
            self.A('s_memrealtime s[88:89]')
        if amp is not None and self.npos == amp[1]:
            self.A('s_memrealtime s[92:93]')
        if self.p['stamps']:
            k = self.nstamp
            assert k < 13
            self.A(f's_memrealtime s[{S_ST + 2 * k}:{S_ST + 1 + 2 * k}]')
            self.nstamp += 1

    def d(self, j):
        return f'v[{DATA + 4 * j}:{DATA + 4 * j + 2}]'

    def r(self, name):
        if name not in self.names:
            self.names[name] = len(self.names)
            assert self.names[name] < 32
        return f'v{DATA + 4 * self.names[name] + 3}'

    def ws_load4(self, reg, addr, off):
        if isinstance(off, str):
            return f'buffer_load_dwordx4 v[{reg}:{reg + 3}], {addr}, {self.srd(S_WS)}, {off} offen sc1'
        o = f' offset:{off}' if off else ''
        return f'buffer_load_dwordx4 v[{reg}:{reg + 3}], {addr}, {self.srd(S_WS)}, 0 offen{o} sc1'

    def check_rec(self, base, n, pend):
        A = self.A
        t = 38
        for i in range(n):
            x = base + 4 * i
            A(f's_waitcnt vmcnt({pend + n - 1 - i})')
            A(f'v_bitop3_b32 v{t + i}, v{x}, v{x + 1}, v{x + 2} {XOR3}')
            A(f'v_bitop3_b32 v{t + i}, v{t + i}, v{x + 3}, {self.r("tag")} {XOR3}')
            if i == 2:
                A(f'v_or3_b32 v{t}, v{t}, v{t + 1}, v{t + 2}')
            if i == 3:
                A(f'v_or_b32 v{t}, v{t}, v{t + 3}')
        A(f'v_cmp_ne_u32 vcc, 0, v{t}')

    def check_scale(self, base, n, pend):
        A = self.A
        for i in range(2):
            A(f's_waitcnt vmcnt({pend + 1 - i})')
            for k in range(4):
                A(f'v_xor_b32 v{base + 4 * i + k}, s{6 + k}, v{base + 4 * i + k}')
            if self.p.get('spec', True):
                A(f'ds_write_b128 {self.r("Sw")}, v[{base + 4 * i}:{base + 4 * i + 3}] offset:{768 * i}')
            if i == 0:
                A(f'v_or3_b32 v38, v{base}, v{base + 1}, v{base + 2}')
            else:
                A(f'v_or3_b32 v38, v38, v{base + 3}, v{base + 4}')
                A(f'v_or3_b32 v39, v{base + 5}, v{base + 6}, v{base + 7}')
                A('v_or_b32 v38, v38, v39')
        A('v_cmp_ne_u16 vcc, 0, v38')

    def poll(self, lab, addr, offs, sets, check, success, stagger, between=None):
        A, L = self.A, self.L
        n = len(offs)

        def loads(base):
            for i, off in enumerate(offs):
                t = self.ws_load4(base + 4 * i, addr, off)
                pol = self.p.get('ppol', {}).get(lab[-1])
                A(t if pol is None else t.replace(' sc1', ' ' + pol))
        A(f's_mov_b32 s50, {self.p["spin"] - 1}')
        if lab[-1] in self.p.get('sel', ''):
            base = sets[0]
            for i in range(n):
                A(f's_mov_b64 s[{52 + 2 * i}:{53 + 2 * i}], -1')
            L(lab)
            for i, off in enumerate(offs):
                A(f's_or_b64 exec, s[{52 + 2 * i}:{53 + 2 * i}], 1')
                A(self.ws_load4(base + 4 * i, addr, off))
            A('s_mov_b64 exec, -1')
            for i in range(n):
                x = base + 4 * i
                A(f's_waitcnt vmcnt({n - 1 - i})')
                A(f'v_bitop3_b32 v38, v{x}, v{x + 1}, v{x + 2} {XOR3}')
                A(f'v_xor_b32 v38, v38, v{x + 3}')
                A(f'v_cmp_ne_u32 s[{52 + 2 * i}:{53 + 2 * i}], v38, {self.r("tag")}')
                if i == 2:
                    A('s_or_b64 s[46:47], s[52:53], s[54:55]')
            A('s_or_b64 s[46:47], s[46:47], s[56:57]')
            A('s_or_b64 s[46:47], s[46:47], s[58:59]')
            A(f's_cbranch_scc0 {lab}done')
            self.again(lab)
            L(lab + 'done')
            success(base)
            return
        if between:
            loads(sets[0])
            between()
            L(lab)
            check(sets[0], n, 0)
            A(f's_cbranch_vccz {lab}done')
            self.again(lab, lambda: loads(sets[0]))
            L(lab + 'done')
            success(sets[0])
            return
        if not stagger:
            L(lab)
            loads(sets[0])
            check(sets[0], n, 0)
            A(f's_cbranch_vccz {lab}done')
            self.again(lab)
            L(lab + 'done')
            success(sets[0])
            return
        loads(sets[0])
        A(f's_sleep {stagger}')
        L(lab)
        loads(sets[1])
        check(sets[0], n, n)
        A(f's_cbranch_vccz {lab}x')
        loads(sets[0])
        check(sets[1], n, n)
        A(f's_cbranch_vccz {lab}y')
        self.again(lab)
        L(lab + 'y')
        k = self.nstamp
        success(sets[1])
        A(f's_branch {lab}done')
        L(lab + 'x')
        self.nstamp = k
        success(sets[0])
        L(lab + 'done')

    def again(self, lab, reissue=None):
        A = self.A
        if self.p['wb']:
            A(f's_and_b32 s51, s50, {self.p["wb"] - 1}')
            A(f's_cbranch_scc1 {lab}nowb')
            self.C('still waiting: push plain-stored records of this XCD out, a reader may sit behind another L2')
            A('buffer_wbl2 sc1')
            A('s_waitcnt vmcnt(0)')
            A('buffer_inv sc1')
            self.L(lab + 'nowb')
        if reissue:
            reissue()
        A('s_sub_u32 s50, s50, 1')
        A(f's_cbranch_scc0 {lab}')

    def seal(self):
        self.A(f'v_bitop3_b32 v11, v8, v9, v10 {XOR3}')
        self.A(f'v_xor_b32 v11, v11, {self.r("tag")}')

    def key(self, x, t):
        self.A(f'v_pk_ashrrev_i16 v{t}, 15, v{x} op_sel_hi:[0,1]')
        self.A(f'v_bitop3_b32 v{x}, v{x}, v{t}, s49 bitop3:0x78')

    def stage_weights(self):
        A, r = self.A, self.r
        A('s_mov_b32 exec_hi, 0xffff')
        for i in range(12):
            A('s_mul_i32 s44, s3, 768' if i == 0 else 's_addk_i32 s44, 6144')
            A('s_mov_b32 m0, s44')
            A('s_nop 0')
            A(f'buffer_load_dwordx4 {r("vW1")}, {self.srd(S_W1)}, s44 offen lds')
        A('s_mov_b64 exec, -1')
        for k in range(2):
            if k == 0:
                A('s_lshl_b32 s45, s3, 10')
                A(f's_add_u32 m0, s45, {L_W2}')
                A('s_mul_i32 s44, s3, 6144')
            else:
                A('s_add_u32 m0, m0, 8192')
                A('s_add_u32 s44, s44, 49152')
            A(f'buffer_load_dwordx4 {r("vW2")}, {self.srd(S_W2)}, s44 offen lds')

    def stage_one(self, i):
        A, r = self.A, self.r
        if i < 12:
            A('s_mul_i32 s44, s3, 768' if i == 0 else 's_addk_i32 s44, 6144')
            A('s_mov_b32 m0, s44')
            A('s_mov_b32 exec_hi, 0xffff')
            self.issue(f'W{i}', f'buffer_load_dwordx4 {r("vW1")}, {self.srd(S_W1)}, s44 offen lds')
            A('s_mov_b32 exec_hi, -1')
        else:
            if i == 12:
                A('s_lshl_b32 s45, s3, 10')
                A(f's_add_u32 m0, s45, {L_W2}')
                A('s_mul_i32 s44, s3, 6144')
            else:
                A('s_add_u32 m0, m0, 8192')
                A('s_add_u32 s44, s44, 49152')
            self.issue(f'W{i}', f'buffer_load_dwordx4 {r("vW2")}, {self.srd(S_W2)}, s44 offen lds')

    def probe(self):
        A, L, C = self.A, self.L, self.C
        L('L_probe')
        C('ranks 6, 7 of every group: two write-through stores into d_out (overwritten later), acknowledged in order;')
        C('a gap between the two acknowledgements says that the first 8-KiB block is the one homed on this side')
        A('v_readfirstlane_b32 s3, v0')
        A(f's_load_dwordx2 s[{S_DBG}:{S_DBG + 1}], s[0:1], 32')
        A('s_memrealtime s[10:11]')
        A('s_and_b32 s4, s2, 7')
        A('s_cmp_lg_u32 s3, 0')
        A('s_cbranch_scc1 L_probewait')
        A('s_and_b32 s44, s5, 1')
        A('s_xor_b32 s44, s44, 1')
        A('s_lshl_b32 s42, s44, 25')
        A('s_lshl_b32 s43, s4, 14')
        A('s_add_u32 s42, s42, s43')
        A('v_mov_b32 v5, 0')
        A('s_mov_b64 exec, 1')
        A(f's_mov_b32 s{S_OUT + 2}, {XBYTES}')
        A(f's_mov_b32 s{S_OUT + 3}, 0x20000')
        A('s_waitcnt lgkmcnt(0)')
        A(f's_sub_u32 s43, 0x800, s{S_OUT}')
        A('s_and_b32 s43, s43, 0x3ffc')
        A('s_add_u32 s42, s42, s43')
        A('s_add_u32 s43, s42, 8192')
        A(f'buffer_store_dword v5, v5, {self.srd(S_OUT)}, s42 offen sc1')
        A(f'buffer_store_dword v5, v5, {self.srd(S_OUT)}, s43 offen sc1')
        A(f's_sub_u32 s45, s{S_X}, s{S_OUT}')
        A('s_addk_i32 s45, 2048')
        A('s_bitcmp1_b32 s45, 12')
        A('s_cselect_b32 s45, 2.0, 0')
        A('v_mov_b32 v8, s45')
        A(f'buffer_load_dword v6, v8, {self.srd(S_X)}, s42 offen nt')
        A(f'buffer_load_dword v7, v8, {self.srd(S_X)}, s43 offen nt')
        A('s_barrier')
        A('s_cmp_lg_u32 s2, 56')
        A('s_cbranch_scc1 L_nononce')
        C('one wave of the grid publishes the nonce of this launch (both words non-zero)')
        A('s_or_b32 s10, s10, 1')
        A('s_or_b32 s11, s11, 0x80000000')
        A(f's_atomic_swap_x2 s[10:11], s[{S_DBG}:{S_DBG + 1}], 0 glc')
        L('L_nononce')
        A('s_mov_b64 exec, -1')
        A(f's_add_u32 s43, s42, s{S_OUT}')
        A('s_bfe_u32 s43, s43, 0x10015')
        A('s_mul_i32 s43, s43, 0x1000100')
        A('s_getreg_b32 s42, hwreg(HW_REG_XCC_ID, 2, 1)')
        A('s_mul_i32 s42, s42, 0x1010100')
        A('s_xor_b32 s42, s42, s43')
        A('s_lshl_b32 s44, s44, 2')
        A('s_add_u32 s44, s44, 8')
        for k in range(4):
            A(f's_waitcnt vmcnt({3 - k})')
            A(f's_memtime s[{52 + 2 * k}:{53 + 2 * k}]')
        A('s_waitcnt lgkmcnt(0)')
        A('s_sub_u32 s43, s54, s52')
        A('s_sub_u32 s58, s58, s56')
        if self.p.get('dbgprobe'):
            A('s_sub_u32 s45, s2, 48')
            A('s_lshl_b32 s45, s45, 2')
            A('s_add_u32 s45, s45, 64')
            A('s_mov_b32 s34, 256')
            A('s_mov_b32 s35, 0x20000')
            A('v_mov_b32 v10, s58')
            A(f'buffer_store_dword v10, v5, {self.srd(S_DBG)}, s45 offen sc1')
        A(f's_cmp_lt_u32 s43, {self.p["gap"]}')
        A('s_cselect_b32 s43, 0x101, 1')
        A('s_xor_b32 s56, s43, s42')
        A(f's_cmp_lt_u32 s58, {self.p["gapx"]}')
        A('s_cselect_b32 s43, 0x1000000, 0')
        A('s_xor_b32 s56, s56, s43')
        A('s_lshl_b32 s56, s56, s4')
        A(f's_atomic_or s56, s[{S_DBG}:{S_DBG + 1}], s44 glc')
        A('s_branch L_probeback2')
        L('L_probewait')
        A('s_barrier')
        A('s_branch L_probeback')

    def select(self):
        A, L, C = self.A, self.L, self.C
        self.tagged = 1
        if self.p.get('sn'):
            A('s_waitcnt lgkmcnt(0)')
            self.tags(False)
        else:
            self.wait_for('N')
            self.tags()
        A('s_cmp_eq_u32 s42, 0')
        A('s_cbranch_scc1 L_nonce')
        L('L_nonceback')
        C('majorities of the votes; the piece of this pair; the side its lower group sits on')
        NS = self.p['NS']

        def maj(dst, src, pos):
            A(f's_bfe_u32 {dst}, {src}, {0x80000 | pos:#x}')
            A(f's_bcnt1_i32_b32 {dst}, {dst}')
            A(f's_cmp_gt_u32 {dst}, 4')
            A(f's_cselect_b32 {dst}, 1, 0')
        n = 4 * NS
        HALF = sum(1 << i for i in range(n) if i % 2 == 1)
        num, den = self.p['tilt']
        TILT = sum(1 << i for i in range(n) if ((i + 1) * num) // den != (i * num) // den)
        maj('s42', 's14', 8)
        maj('s43', 's14', 24)
        A('s_xor_b32 s54, s42, s43')
        maj('s52', 's15', 8)
        maj('s43', 's15', 24)
        A('s_xor_b32 s53, s52, s43')
        A('s_and_b32 s44, s4, 3')
        A('s_add_u32 s44, s44, 16')
        A('s_lshr_b32 s44, s14, s44')
        A('s_lshr_b32 s45, s4, 2')
        A('s_xor_b32 s44, s44, s45')
        A('s_andn2_b32 s46, s2, 4')
        A('s_cmp_lt_u32 s46, 168')
        A('s_cselect_b32 s42, s42, s52')
        A('s_cselect_b32 s43, s54, s53')
        A('s_cmp_lg_u32 s54, 0')
        A(f's_mov_b32 s52, {HALF}')
        A(f's_cselect_b32 s52, {TILT}, s52')
        A('s_mul_i32 s43, s43, s52')
        A(f's_sub_u32 s52, s{S_X}, s{S_OUT}')
        A('s_addk_i32 s52, 2048')
        A('s_bitcmp1_b32 s52, 12')
        A('s_cselect_b32 s43, 0, s43')
        A('s_xor_b32 s42, s42, s44')
        A('s_bitcmp1_b32 s42, 0')
        A('s_cselect_b32 s42, -1, 0')
        A('s_xor_b32 s43, s43, s42')
        A('s_mul_i32 s45, s46, 196608')
        A('s_add_u32 s45, s45, s41')
        i = 0
        for sg in range(3 - NS, 3):
            for m in (0, 3):
                for rho in range(2):
                    d = f's{S_U + i}'
                    A(f's_add_u32 {d}, s45, {rho * 4 * 196608 + sg * 49152 + m * 6144}')
                    A(f's_add_u32 s47, {d}, s{S_OUT}')
                    A(f's_lshr_b32 s47, s47, {21 - i}')
                    A('s_xor_b32 s47, s47, s43')
                    A(f's_bitcmp1_b32 s47, {i}')
                    A('s_cselect_b32 s47, 24576, 0')
                    A(f's_add_u32 {d}, {d}, s47')
                    i += 1

    def tags(self, from_v=True):
        A, r = self.A, self.r
        if from_v:
            A('v_readfirstlane_b32 s10, v34')
            A('v_readfirstlane_b32 s11, v35')
            A('v_readfirstlane_b32 s14, v36')
            A('v_readfirstlane_b32 s15, v37')
        else:
            A('s_mov_b64 s[10:11], s[52:53]')
            A('s_mov_b64 s[14:15], s[54:55]')
            A('v_mov_b32 v34, s10')
            A('v_mov_b32 v35, s11')
        A('v_and_b32 v36, 1, v1')
        A('v_cmp_eq_u32 vcc, 1, v36')
        A('v_and_b32 v37, 7, v1')
        A('v_lshlrev_b32 v36, 4, v36')
        A('v_cndmask_b32 v38, v34, v35, vcc')
        A(f'v_add_u32 {r("tag")}, v38, v37')
        A('v_and_b32 v37, 2, v1')
        A('v_cmp_eq_u32 vcc, 2, v37')
        A('s_and_b32 s6, s10, 0xffff')
        A('s_lshr_b32 s7, s10, 16')
        A('v_cndmask_b32 v38, v34, v35, vcc')
        A(f'v_bfe_u32 {r("tag16")}, v38, v36, 16')
        A('s_and_b32 s8, s11, 0xffff')
        A('s_lshr_b32 s9, s11, 16')
        A('s_min_u32 s42, s10, s11')
        A('s_and_b32 s43, s14, s15')
        A('s_and_b32 s43, s43, 0xff')
        A('s_cmp_eq_u32 s43, 0xff')
        A('s_cselect_b32 s42, s42, 0')

    def build(self):
        p = self.p
        A, L, C, r = self.A, self.L, self.C, self.r
        D, B, R = p['D'], p['B'], p['R']
        assert B % 2 == 0 and R - B <= 16 and DATA + 4 * R <= 256
        NDYN = 256 - 8 * B
        o = self.o
        o.append(HEADER.rstrip())
        o.append(f'; @launch grid=(256,1,1) block=(512,1,1) lds={LDS_BYTES}')
        o.append('.amdgcn_target "amdgcn-amd-amdhsa--gfx950"')
        o.append('.text')
        o.append(f'.globl {KNAME}')
        o.append('.p2align 8')
        o.append(f'.type {KNAME},@function')
        L(KNAME)
        self.stamp()
        A(f's_load_dwordx2 s[{S_X}:{S_X + 1}], s[0:1], 0')
        A(f's_load_dwordx2 s[{S_OUT}:{S_OUT + 1}], s[0:1], 24')
        G = p.get('G', 1)
        mp = p.get('map')
        if mp is None:
            A('v_mul_u32_u24 v2, 12, v0')
        else:
            wr = mp.get('wr', 1)
            A('v_lshrrev_b32 v3, 6, v0')
            A('v_mul_u32_u24 v2, 12, v0')
            if wr > 1:
                A(f'v_mul_u32_u24 v3, {(wr - 1) * 768}, v3')
                A('v_add_u32 v2, v2, v3')
        self.jj = 0
        def base(g):
            self.jj = 0
            if mp is not None:
                perm = mp.get('perm')
                if perm == 'xcd':
                    A('s_and_b32 s40, s2, 7')
                    A('s_lshl_b32 s40, s40, 5')
                    A('s_lshr_b32 s41, s2, 3')
                    A('s_add_u32 s40, s40, s41')
                    A('s_cmp_ge_u32 s2, 256')
                    A('s_cselect_b32 s40, s2, s40')
                    A('s_mul_i32 s40, s40, 196608')
                else:
                    A('s_mul_i32 s40, s2, 196608')
                if mp.get('rot'):
                    A('s_add_u32 s41, s40, 196608')
                    sh, mul = mp['rot']
                    A(f's_lshr_b32 s43, s2, {sh}')
                    A(f's_mul_i32 s43, s43, {mul}')
                    A(f's_and_b32 s43, s43, {32 // mp.get("wr", 1) - 1}')
                    A(f's_mul_i32 s43, s43, {6144 * mp.get("wr", 1)}')
                    A('s_add_u32 s40, s40, s43')
            elif g == 1:
                A('s_mul_i32 s40, s2, 196608')
            else:
                A(f's_and_b32 s40, s2, {g - 1}')
                A('s_mul_i32 s40, s40, -31')
                A('s_lshl_b32 s41, s2, 5')
                A('s_add_u32 s40, s40, s41')
                A('s_mul_i32 s40, s40, 6144')
                A(f's_mov_b32 s41, {g * 6144}')
        def adv(g):
            self.jj += 1
            if mp is not None:
                wr = mp.get('wr', 1)
                if self.jj % wr:
                    A('s_addk_i32 s40, 768')
                else:
                    A(f's_add_u32 s40, s40, {6144 * wr - (wr - 1) * 768}')
                    if mp.get('rot'):
                        A('s_cmp_ge_u32 s40, s41')
                        A('s_cselect_b32 s43, 196608, 0')
                        A('s_sub_u32 s40, s40, s43')
                return
            A('s_addk_i32 s40, 6144' if g == 1 else 's_add_u32 s40, s40, s41')
        base(G)
        A(f's_mov_b32 s{S_X + 2}, {XBYTES}')
        A(f's_mov_b32 s{S_X + 3}, 0x20000')
        numa = p['numa']
        NS = p['NS']
        S = 32 - 4 * NS
        NEUTRAL = [u for u in range(32) if u < 8 * (3 - NS) or u >= 24 or u % 8 in (1, 2, 5, 6)]
        assert len(NEUTRAL) == S
        if numa:
            A('s_lshr_b32 s5, s2, 3')
            A('s_or_b32 s4, s5, 1')
            A('s_cmp_eq_u32 s4, 7')
            A('s_cbranch_scc1 L_probe')
            L('L_probeback')
        A('s_waitcnt lgkmcnt(0)')
        L('L_probeback2')

        def shift():
            C('first unit (8 rows) of this workgroup that starts a 16-KiB period of d_out (to within 2 KiB)')
            A(f's_bfe_u32 s41, s{S_OUT}, 0x3000b')
            A('s_mul_i32 s41, s41, 5')
            A('s_and_b32 s41, s41, 7')
            A('s_mulk_i32 s41, 6144')
            A('s_add_u32 s40, s40, s41')
        shift()

        def slot(j):
            if j >= S:
                return f's{S_U + j - S}'
            if j == 0 and NEUTRAL[0]:
                A(f's_addk_i32 s40, {6144 * NEUTRAL[0]}')
            if j:
                A(f's_addk_i32 s40, {6144 * (NEUTRAL[j] - NEUTRAL[j - 1])}')
            if NEUTRAL[j] > 24:
                A('s_cmp_ge_u32 s40, s51')
                A('s_cselect_b32 s47, 196608, 0')
                A('s_sub_u32 s40, s40, s47')
            return 's40'

        def voff(j):
            return r('rev') if (p.get('rev', True) and numa and j >= S and (j - S) % 2 == 1) else 'v2'

        def request():
            A('s_mov_b64 exec, 1')
            A(f'ds_add_rtn_u32 v42, {r("T")}, v43')
            A('s_mov_b64 exec, -1')

        def issue_x(j):
            if numa:
                if j == S:
                    self.select()
                so = slot(j)
            elif j < B:
                if j:
                    adv(G)
                so = 's40'
            else:
                so = f's{S_U + j - B}'
                A('s_waitcnt lgkmcnt(0)')
                A(f'v_readfirstlane_b32 s14, v42')
                if j + 1 < R:
                    request()
                A(f's_mul_i32 {so}, s14, 768')
                A(f's_add_u32 {so}, {so}, s41')
                A(f's_cmp_lt_u32 s14, {NDYN}')
                A(f's_cselect_b32 {so}, {so}, 2.0')
                A('s_addc_u32 s15, s15, 0')
            self.issue(f'X{j}', f'buffer_load_dwordx3 {self.d(j)}, {voff(j)}, {self.srd(S_X)}, {so} offen {p["lpol"]}'.rstrip())
            if j == B - 1 and R > B:
                request()

        for j in range(D):
            issue_x(j)
            if j == 0:
                A(f's_load_dwordx2 s[{S_DBG}:{S_DBG + 1}], s[0:1], 32')
                if not numa:
                    A('s_memrealtime s[10:11]')
            if j == 1 and R > B:
                A(f'v_mov_b32 {r("T")}, {L_T}')
                A('v_mov_b32 v43, 0')
                A(f'ds_write_b32 {r("T")}, v43')
                A('s_waitcnt lgkmcnt(0)')
                A('s_barrier')
        self.stamp()
        if numa:
            A('s_branch L_noprobe')
            self.probe()
            L('L_noprobe')
        A('s_cmp_ge_u32 s2, 256')
        A('s_cbranch_scc1 L_end')
        A('v_lshrrev_b32 v3, 6, v0')
        A('v_and_b32 v1, 63, v0')
        A(f's_mov_b32 s{S_DBG + 2}, 256')
        A('v_readfirstlane_b32 s3, v3')
        A(f's_mov_b32 s{S_DBG + 3}, 0x20000')
        A(f'v_mov_b32 {r("zero")}, 0')
        if not numa:
            A('s_lshl_b32 s42, s2, 3')
            A('s_add_u32 s42, s42, s3')
            A(f's_cmp_lg_u32 s42, {p["nwg"] * 8}')
            A('s_waitcnt lgkmcnt(0)')
            A('s_cbranch_scc1 L_nononce')
            C('one wave of the grid publishes the nonce of this launch (both words non-zero)')
            A('s_or_b32 s10, s10, 1')
            A('s_or_b32 s11, s11, 0x80000000')
            A('v_mov_b32 v34, s10')
            A('v_mov_b32 v35, s11')
            A('s_mov_b64 exec, 1')
            A(f'buffer_store_dwordx2 v[34:35], {r("zero")}, {self.srd(S_DBG)}, 0 offen sc1')
            A('s_mov_b64 exec, -1')
            L('L_nononce')
        A(f's_load_dwordx2 s[{S_WS}:{S_WS + 1}], s[0:1], 40')
        A(f's_load_dwordx2 s[{S_W1}:{S_W1 + 1}], s[0:1], 8')
        A(f's_load_dwordx2 s[{S_W2}:{S_W2 + 1}], s[0:1], 16')
        A(f's_mov_b32 s{S_WS + 2}, {WS_USE}')
        A(f's_mov_b32 s{S_WS + 3}, 0x20000')
        A(f's_mov_b32 s{S_W1 + 2}, {WBYTES}')
        A(f's_mov_b32 s{S_W1 + 3}, 0x20000')
        A(f's_mov_b32 s{S_W2 + 2}, {WBYTES}')
        A(f's_mov_b32 s{S_W2 + 3}, 0x20000')
        A(f's_mov_b32 s{S_OUT + 2}, {XBYTES}')
        A(f's_mov_b32 s{S_OUT + 3}, 0x20000')
        A('s_mov_b32 s48, 0xffff0000')
        A('s_mov_b32 s12, 0')
        if R > B:
            A('v_mov_b32 v43, 1')
            A('s_mov_b32 s15, 0')
            A('s_lshl_b32 s41, s2, 8')
            A('s_sub_u32 s41, s41, s3')
            A(f's_add_u32 s41, s41, {8 * B}')
            A('s_mul_i32 s41, s41, 768')
        A('s_getreg_b32 s13, hwreg(HW_REG_XCC_ID, 0, 1)')
        A('s_and_b32 s4, s2, 7')
        A('s_lshr_b32 s5, s2, 3')
        A('v_lshlrev_b32 v4, 4, v1')
        A('v_xor_b32 v3, 0x1c0, v0')
        A(f'v_mul_u32_u24 {r("rev")}, 12, v3')
        prep = []
        save, self.o = self.o, prep
        self.addr_prep()
        self.o = save
        o = self.o

        def unpack(j, t):
            for q in range(3):
                A(f'v_lshlrev_b32 v{t + 2 * q}, 16, v{DATA + 4 * j + q}')
                A(f'v_and_b32 v{t + 2 * q + 1}, s48, v{DATA + 4 * j + q}')

        def pair(j, extra=None):
            for jj in (j, j + 1):
                self.wait_for(f'X{jj}')
                if not numa and 'N' in self.vm and self.vm.index('N') < self.vm.index(f'X{jj}') and not getattr(self, 'tagged', 0):
                    self.tagged = 1
                    self.tags()
                t = TMP + 6 * (jj & 1)
                unpack(jj, t)
                if jj + D < R:
                    de = p.get('De')
                    if isinstance(de, tuple):
                        de = de[jj % len(de)]
                    if de:
                        A('s_cmp_lg_u32 s13, 0')
                        A(f's_cbranch_scc1 L_lt{jj}')
                        self.wait_for(f'X{jj + D - de}')
                        L(f'L_lt{jj}')
                    issue_x(jj + D)
                if extra:
                    extra(jj)
                for q in range(3):
                    a = ACC + 4 * q
                    if jj == 1:
                        A(f'v_pk_add_f32 v[{a}:{a + 1}], v[{TMP + 2 * q}:{TMP + 2 * q + 1}], v[{t + 2 * q}:{t + 2 * q + 1}]')
                    elif jj > 1:
                        A(f'v_pk_add_f32 v[{a}:{a + 1}], v[{a}:{a + 1}], v[{t + 2 * q}:{t + 2 * q + 1}]')
            for q in range(3):
                for h in range(2):
                    a = ACC + 4 * q + 2 + h
                    if j == 0:
                        A(f'v_max_f32 v{a}, v{TMP + 2 * q + h}, v{TMP + 6 + 2 * q + h}')
                    else:
                        A(f'v_max3_f32 v{a}, v{a}, v{TMP + 2 * q + h}, v{TMP + 6 + 2 * q + h}')

        def uni(j):
            if not p.get('uni'):
                return
            if j == p['tpos']:
                C('touch 1/32 of the lines this group will poll (lanes of one wave; everything else is out of range)')
                self.issue('PT', f'buffer_load_dword {r("junk")}, {r("tch")}, {self.srd(S_WS)}, 0 offen sc1')
            if j == p['wpf']:
                C('touch 1/32 of the weights')
                self.issue('PW1', f'buffer_load_dword {r("junk")}, {r("wtc")}, {self.srd(S_W1)}, 0 offen')
                self.issue('PW2', f'buffer_load_dword {r("junk")}, {r("wtc")}, {self.srd(S_W2)}, 0 offen')
            if p.get('iuni') and j == p['ipos']:
                C('read the kernel text behind the load loop once (1 KiB per wave), to pull it into L2')
                A('s_getpc_b64 s[46:47]')
                L('L_pc')
                A('s_lshl_b32 s42, s3, 10')
                A('s_add_u32 s42, s42, L_acc - L_pc')
                A('v_lshl_add_u32 v6, v1, 6, s42')
                A('v_min_u32 v6, L_last - L_pc, v6')
                A('v_mov_b32 v7, s47')
                A('v_add_co_u32 v6, vcc, s46, v6')
                A('s_mov_b64 exec, 0xffff')
                A('s_nop 0')
                A('v_addc_co_u32 v7, vcc, 0, v7, vcc')
                self.issue('PI', f'global_load_dword {r("junk")}, v[6:7], off')
                A('s_mov_b64 exec, -1')

        nprep = p.get('prepsteps', 1)
        chunk = -(-len(prep) // nprep)
        for j in range(0, B, 2):
            if prep:
                o.extend(prep[:chunk])
                prep = prep[chunk:]
                if not prep:
                    A('s_mov_b32 s49, 0x7fff7fff')
                    A('s_add_u32 s51, s2, 1')
                    A('s_mul_i32 s51, s51, 196608')
                    A('s_waitcnt lgkmcnt(0)')
            if j == p['npos'] and p.get('sn'):
                A(f's_load_dwordx4 s[52:55], s[{S_DBG}:{S_DBG + 1}], 0')
            elif j == p['npos']:
                self.issue('N', f'buffer_load_dwordx4 v[34:37], {r("zero")}, {self.srd(S_DBG)}, 0 offen sc1')
            if j == p['ipos'] and not p.get('iuni'):
                A('s_and_b32 s42, s3, 3')
                A('s_cmp_lg_u32 s42, 1')
                A('s_cbranch_scc1 L_noipf')
                C('waves 1, 5: read the kernel text behind the load loop once, to pull it into L2')
                A('s_getpc_b64 s[46:47]')
                L('L_pc')
                A('s_lshl_b32 s42, s3, 10')
                A('s_add_u32 s42, s42, L_acc - L_pc - 1024')
                A('v_lshl_add_u32 v6, v1, 6, s42')
                A('v_min_u32 v6, L_last - L_pc, v6')
                A('v_mov_b32 v7, s47')
                A('v_add_co_u32 v6, vcc, s46, v6')
                A('s_nop 1')
                A('v_addc_co_u32 v7, vcc, 0, v7, vcc')
                A(f'global_load_dword {r("junk")}, v[6:7], off')
                L('L_noipf')
            uni(j)
            if j == p['wpf'] and not p.get('uni'):
                A('s_cmp_lg_u32 s3, 6')
                A('s_cbranch_scc1 L_nowpf')
                C('wave 6: touch 1/32 of the weights so that they are in L2 when they are staged')
                if p.get('wmall'):
                    A('s_mul_i32 s42, s2, 320')
                    A('v_lshlrev_b32 v6, 6, v1')
                    A('s_mov_b64 exec, 31')
                else:
                    A('s_mul_i32 s42, s5, 2304')
                    A('v_lshlrev_b32 v6, 6, v1')
                    A('s_mov_b32 exec_hi, 15')
                A(f'buffer_load_dword {r("junk")}, v6, {self.srd(S_W1)}, s42 offen')
                A(f'buffer_load_dword {r("junk")}, v6, {self.srd(S_W2)}, s42 offen')
                A('s_mov_b64 exec, -1')
                L('L_nowpf')
            if j == p['tpos'] and not p.get('uni'):
                A('s_cmp_lg_u32 s3, 4')
                A('s_cbranch_scc1 L_notch')
                C('wave 4: touch 1/32 of the lines this group will poll')
                if p.get('nobt'):
                    A('s_mov_b32 exec_hi, 0x1000ffff')
                if p.get('apos') is not None:
                    A('s_mov_b32 exec_lo, 0')
                    A('s_mov_b32 exec_hi, 0x1fff0000')
                A(f'buffer_load_dword {r("junk")}, {r("tch")}, {self.srd(S_WS)}, 0 offen {p.get("tpol", "sc1")}')
                A('s_mov_b64 exec, -1')
                L('L_notch')
            if j == p.get('apos'):
                assert self.tagged
                A('s_cmp_ge_u32 s3, 3')
                A('s_cbranch_scc1 L_noalloc')
                C('waves 0..2: own the lines of their later records early (check word deliberately wrong)')
                A('v_mov_b32 v50, 0')
                A('v_mov_b32 v51, 0')
                A('v_mov_b32 v52, 0')
                A(f'v_not_b32 v53, {r("tag")}')
                A(f'buffer_store_dwordx4 v[50:53], {r("pub")}, {self.srd(S_WS)}, 0 offen')
                L('L_noalloc')
            if p.get('wtail') and j == 32 - D:
                A('s_cmp_lt_u32 s5, 6')
                A('s_cbranch_scc1 L_wtail')
                self.vm_at_tail = list(self.vm)
            pair(j)
        for j in range(B, R):
            A(f's_cmp_le_u32 s15, {j - B}')
            A('s_cbranch_scc1 L_acc')
            self.wait_for(f'X{j}')
            unpack(j, TMP)
            if j + D < R:
                issue_x(j + D)
            for q in range(3):
                a = ACC + 4 * q
                A(f'v_pk_add_f32 v[{a}:{a + 1}], v[{a}:{a + 1}], v[{TMP + 2 * q}:{TMP + 2 * q + 1}]')
                A(f'v_max_f32 v{a + 2}, v{a + 2}, v{TMP + 2 * q}')
                A(f'v_max_f32 v{a + 3}, v{a + 3}, v{TMP + 2 * q + 1}')
        assert self.tagged
        L('L_acc')
        self.stamp()
        if p.get('p1only'):
            A('s_branch L_stdone')
        for q in range(3):
            A(f'ds_write_b128 {r("Pw")}, v[{ACC + 4 * q}:{ACC + 4 * q + 3}] offset:{16 * q}')
        uni(32)
        if not numa:
            A('s_min_u32 s42, s10, s11')
            A('s_cmp_eq_u32 s42, 0')
            A('s_cbranch_scc1 L_nonce')
            L('L_nonceback')
        A('s_waitcnt lgkmcnt(0)')
        A('s_barrier')
        A('s_cmp_ge_u32 s3, 3')
        A('s_cbranch_scc1 L_nopub')
        for w in range(8):
            A(f'ds_read_b128 v[{8 + 4 * w}:{11 + 4 * w}], {r("t16")} offset:{3072 * w}')
        for k in range(4):
            A(f's_waitcnt lgkmcnt({6 - 2 * k})')
            ra, rb = 8 + 8 * k, 12 + 8 * k
            if k == 0:
                A(f'v_max_f32 v10, v10, v{rb + 2}')
                A(f'v_max_f32 v11, v11, v{rb + 3}')
            else:
                A(f'v_max3_f32 v10, v10, v{ra + 2}, v{rb + 2}')
                A(f'v_max3_f32 v11, v11, v{ra + 3}, v{rb + 3}')
            A(f'v_pk_add_f32 v[{ra}:{ra + 1}], v[{ra}:{ra + 1}], v[{rb}:{rb + 1}]')
            if k == 1:
                A('v_pk_add_f32 v[8:9], v[8:9], v[16:17]')
            if k == 2:
                A('v_pk_add_f32 v[8:9], v[8:9], v[24:25]')
        A('v_cvt_pk_bf16_f32 v10, v10, v11')
        A('v_pk_add_f32 v[8:9], v[8:9], v[32:33]')
        self.key(10, 12)
        self.seal()
        pubA = f'buffer_store_dwordx4 v[8:11], {r("pub")}, {self.srd(S_WS)}, 0 offen'
        A(pubA if not p.get('force') else pubA + ' sc1')
        self.stamp()
        A('s_cmp_lt_u32 s5, 6')
        A('s_cbranch_scc1 L_mlp')
        if not p['wb']:
            A(f's_sleep {p["dlyA"]}')
            A(pubA + ' sc1')
        A('s_branch L_join')
        L('L_nopub')
        A('s_cmp_lt_u32 s5, 6')
        A('s_cbranch_scc1 L_mlp')
        A('s_cmp_lg_u32 s3, 4')
        A('s_cbranch_scc1 L_mlpback')
        A('s_cmp_lt_u32 s5, 8')
        A('s_cbranch_scc1 L_join')
        def red_in(x):
            self.stamp()
            A(f'v_pk_add_f32 v[8:9], v[{x}:{x + 1}], v[{x + 4}:{x + 5}]')
            A(f'v_pk_add_f32 v[16:17], v[{x + 8}:{x + 9}], v[{x + 12}:{x + 13}]')
            A(f'v_pk_max_i16 v10, v{x + 2}, v{x + 6}')
            A(f'v_pk_max_i16 v18, v{x + 10}, v{x + 14}')
        self.poll('L_poll1', r('in1'), [0, 1024, 2048, 3072], (44, 60), self.check_rec, red_in, p['stag'][0])
        A('v_pk_add_f32 v[8:9], v[8:9], v[16:17]')
        A('v_pk_max_i16 v10, v10, v18')
        A('s_nop 0')
        A('v_add_f32_dpp v8, v8, v8 row_ror:8 row_mask:0xf bank_mask:0xf')
        A('v_add_f32_dpp v9, v9, v9 row_ror:8 row_mask:0xf bank_mask:0xf')
        A('v_mov_b32_dpp v14, v10 row_ror:8 row_mask:0xf bank_mask:0xf')
        A('v_mov_b32 v12, v8')
        A('v_mov_b32 v13, v9')
        A('v_pk_max_i16 v10, v10, v14')
        A('v_permlane16_swap_b32 v8, v12')
        A('v_mov_b32 v14, v10')
        A('v_permlane16_swap_b32 v9, v13')
        A('v_add_f32 v8, v8, v12')
        A('v_permlane16_swap_b32 v10, v14')
        A('v_add_f32 v9, v9, v13')
        A('v_mov_b32 v12, v8')
        A('v_pk_max_i16 v10, v10, v14')
        A('v_mov_b32 v13, v9')
        A('v_permlane32_swap_b32 v8, v12')
        A('v_mov_b32 v14, v10')
        A('v_permlane32_swap_b32 v9, v13')
        A('v_add_f32 v8, v8, v12')
        A('v_permlane32_swap_b32 v10, v14')
        A('v_add_f32 v9, v9, v13')
        A('v_pk_max_i16 v10, v10, v14')
        self.seal()
        A(f'buffer_store_dwordx4 v[8:11], {r("out2")}, {self.srd(S_WS)}, 0 offen sc1')
        self.stamp()
        L('L_mlpback')
        A('s_cmp_lg_u32 s3, 7')
        A('s_cbranch_scc1 L_join')
        A('s_mov_b32 exec_hi, 0xffff')
        def s_out(x):
            if p.get('spec', True):
                return
            A(f'ds_write_b128 {r("Sw")}, v[{x}:{x + 3}]')
            A(f'ds_write_b128 {r("Sw")}, v[{x + 4}:{x + 7}] offset:768')
        self.poll('L_poll3', r('in3'), [0, 768], (76, 84), self.check_scale, s_out, p['stag'][2])
        A('s_mov_b64 exec, -1')
        A('s_waitcnt lgkmcnt(0)')
        L('L_join')
        A('s_barrier')
        for q in range(3):
            A(f'ds_read_b64 v[{32 + 2 * q}:{33 + 2 * q}], {r("S")} offset:{8 * q}')
        base(G)
        A('s_add_u32 s51, s40, 196608')
        A('s_add_u32 s40, s40, s41')
        self.stamp()
        pubC = f'buffer_store_dword v40, {r("out3")}, {self.srd(S_WS)}, 0 offen'
        order = list(range(R))
        if numa:
            order, a_, b_ = [], 0, S
            for k in range(32):
                if ((k + 1) * 4 * NS) // 32 != (k * 4 * NS) // 32:
                    order.append(b_)
                    b_ += 1
                else:
                    order.append(a_)
                    a_ += 1
        for n, j in enumerate(order):
            if j >= B:
                A(f's_cmp_le_u32 s15, {j - B}')
                A('s_cbranch_scc1 L_stdone')
            if p['wb'] and n == p.get('c2pos', 8):
                C('the waves that published a part of the scale repeat that store write-through')
                A('s_cmp_eq_u32 s12, 0')
                A('s_cbranch_scc1 L_noc2')
                A('s_mov_b64 exec, 0xffff')
                A(pubC + ' sc1')
                A('s_mov_b64 exec, -1')
                L('L_noc2')
            t = 8 + 6 * (n & 3)
            unpack(j, t)
            if n == 0:
                A('s_waitcnt lgkmcnt(0)')
            for q in range(3):
                A(f'v_pk_mul_f32 v[{t + 2 * q}:{t + 2 * q + 1}], v[{t + 2 * q}:{t + 2 * q + 1}], v[{32 + 2 * q}:{33 + 2 * q}]')
            for q in range(3):
                A(f'v_cvt_pk_bf16_f32 v{DATA + 4 * j + q}, v{t + 2 * q}, v{t + 2 * q + 1}')
            if numa:
                so = slot(j)
            else:
                if 0 < j < B:
                    adv(G)
                so = 's40' if j < B else f's{S_U + j - B}'
            ne, no = p.get('thr', (0, 0))
            if no and n >= no:
                A(f's_waitcnt vmcnt({no - 1})')
            if isinstance(ne, tuple):
                ne = ne[n % len(ne)]
            if ne and ne != no and n >= ne:
                A(f's_cbranch_vccnz L_thr{j}')
                A(f's_waitcnt vmcnt({ne - 1})')
                L(f'L_thr{j}')
            A(f'buffer_store_dwordx3 {self.d(j)}, {voff(j)}, {self.srd(S_OUT)}, {so} offen {p["spol"] if p.get("pfirst", 0) <= j < R - p.get("plast", 0) else p.get("spol2", "")}'.rstrip())
        L('L_stdone')
        if p.get('dumpptr'):
            A('s_cmp_lg_u32 s2, 0')
            A('s_cbranch_scc1 L_nodump')
            A('s_mov_b64 exec, 1')
            for k, sr in enumerate((S_X, S_X + 1, S_OUT, S_OUT + 1, S_WS, S_WS + 1, S_W1, S_DBG)):
                A(f'v_mov_b32 v8, s{sr}')
                A(f'buffer_store_dword v8, {r("zero")}, {self.srd(S_DBG)}, 0 offen offset:{16 + 4 * k}')
                A('s_nop 1')
            L('L_nodump')
        if p.get('amp') is not None and not p['stamps']:
            A('s_waitcnt vmcnt(0)')
            self.stamp()
            A('s_waitcnt lgkmcnt(0)')
            A('s_sub_u32 s94, s92, s88')
            if len(p['amp']) > 3:
                A('s_min_u32 s94, s94, 500')
                A('s_sub_u32 s94, 500, s94')
            A('s_cmp_eq_u32 s92, 0')
            A('s_cselect_b32 s94, 0, s94')
            A('s_cmp_eq_u32 s88, 0')
            A('s_cselect_b32 s94, 0, s94')
            A('s_min_u32 s94, s94, 3000')
            A(f's_lshl_b32 s94, s94, {p["amp"][2]}')
            A('s_add_u32 s94, s94, 3000')
            L('L_pad')
            A('s_sleep 2')
            A('s_memrealtime s[92:93]')
            A('s_waitcnt lgkmcnt(0)')
            A('s_sub_u32 s95, s92, s90')
            A('s_cmp_lt_u32 s95, s94')
            A('s_cbranch_scc1 L_pad')
        if p['stamps']:
            A('s_waitcnt vmcnt(0)')
            self.stamp()
            A('s_branch L_stamps')
        L('L_end')
        A('s_endpgm')

        L('L_nonce')
        C('the nonce was not there yet when this wave looked: wait for it')
        A(f's_mov_b32 s50, {p["spin"]}')
        L('L_nonceloop')
        if p.get('sn'):
            A('buffer_inv sc1')
        A(f'buffer_load_dwordx4 v[34:37], {r("zero")}, {self.srd(S_DBG)}, 0 offen sc1')
        A('s_waitcnt vmcnt(0)')
        self.tags()
        A('s_cmp_lg_u32 s42, 0')
        A('s_cbranch_scc1 L_nonceback')
        A('s_sleep 4')
        A('s_sub_u32 s50, s50, 1')
        A('s_cbranch_scc0 L_nonceloop')
        A('s_branch L_nonceback')

        if p.get('wtail'):
            L('L_wtail')
            C('MLP workgroups: last rows, with the weight staging issued while the row loads drain')
            self.vm = self.vm_at_tail
            todo = list(range(p['wtail'][0]))
            def extra(jj):
                for _ in range(p['wtail'][1]):
                    if todo:
                        self.stage_one(todo.pop(0))
            for j in range(32 - D, 32, 2):
                pair(j, extra)
            assert not todo
            A('s_branch L_acc')
        L('L_mlp')
        C('MLP workgroups (ranks 0..5 of every group)')
        first = p['wtail'][0] if p.get('wtail') else 0
        pre = p.get('pre', 0)
        if p.get('cons'):
            n_pub, n_oth = p['cons']
            assert 3 * n_pub + 5 * n_oth == 96
            def run(n, lab):
                A('s_mov_b32 exec_hi, 0xffff')
                for i in range(n):
                    if i % 5 == 0:
                        if i:
                            A('s_addk_i32 s44, 3840')
                        A('s_mov_b32 m0, s44')
                        A('s_nop 0')
                    off = f' offset:{768 * (i % 5)}' if i % 5 else ''
                    A(f'buffer_load_dwordx4 {r("vW1" if i % 2 == 0 else "vW1b")}, {self.srd(S_W1)}, s44 offen{off} lds')
                A('s_mov_b32 exec_hi, -1')
            if n_pub == n_oth:
                A('s_barrier')
                run(n_pub, 'a')
                self.stage_one(12)
                self.stage_one(13)
            else:
                A('s_cmp_ge_u32 s3, 3')
                A('s_cbranch_scc1 L_cons1')
                if not p.get('nob1b'):
                    A('s_barrier')
                run(n_pub, 'a')
                self.stage_one(12)
                self.stage_one(13)
                A('s_branch L_cons2')
                L('L_cons1')
                A('s_mov_b32 s43, s44')
                self.stage_one(12)
                self.stage_one(13)
                A('s_mov_b32 s44, s43')
                if not p.get('nob1b'):
                    A('s_barrier')
                run(n_oth, 'b')
                L('L_cons2')
        elif pre:
            C('waves 3..7 start a few copies while waves 0..2 still publish')
            A('s_cmp_ge_u32 s3, 3')
            A('s_cbranch_scc1 L_pre1')
            A('s_barrier')
            L('L_pre1')
            for i in range(pre):
                self.stage_one(i)
            A('s_cmp_lt_u32 s3, 3')
            A('s_cbranch_scc1 L_pre2')
            A('s_barrier')
            L('L_pre2')
            for i in range(pre, 14):
                self.stage_one(i)
        elif first < 14:
            A('s_barrier')
            for i in range(first, 14):
                self.stage_one(i)
        A('s_movk_i32 s42, 6144')
        A('s_movk_i32 s43, 12288')
        A('s_movk_i32 s45, 18432')
        A('s_waitcnt vmcnt(0)')
        A('s_barrier')
        if not p['wb']:
            A('s_cmp_ge_u32 s3, 3')
            A('s_cbranch_scc1 L_nopub2')
            A(pubA + ' sc1')
            L('L_nopub2')
        def tr_reads():
            for b in range(12):
                for h in range(2):
                    base = r('a1') if b < 6 else r('a1b')
                    x = W1F + 4 * b + 2 * h
                    A(f'ds_read_b64_tr_b16 v[{x}:{x + 1}], {base} offset:{(b % 6) * 6144 + h * 1536}')
            for b in range(3):
                for h in range(2):
                    x = W2F + 4 * b + 2 * h
                    A(f'ds_read_b64_tr_b16 v[{x}:{x + 1}], {r("a2")} offset:{(32 * b + 8 * h) * 128}')
            self.stamp()
        assert p['direct']
        if p.get('direct'):
            A('s_cmp_ge_u32 s3, 6')
            A('s_cbranch_scc1 L_nog')
            if not p.get('hoist', True):
                tr_reads()
            def g_in(x):
                self.stamp()
                A(f'v_pk_add_f32 v[8:9], v[{x}:{x + 1}], v[{x + 4}:{x + 5}]')
                A(f'v_pk_add_f32 v[16:17], v[{x + 8}:{x + 9}], v[{x + 12}:{x + 13}]')
                A(f'v_pk_max_i16 v10, v{x + 2}, v{x + 6}')
                A(f'v_pk_max_i16 v18, v{x + 10}, v{x + 14}')
            self.poll('L_poll2', r('in2'), ['0', 's42', 's43', 's45'], (20, 20), self.check_rec, g_in, 0, between=tr_reads if p.get('hoist', True) else None)
            A('v_pk_add_f32 v[8:9], v[8:9], v[16:17]')
            A('v_pk_max_i16 v10, v10, v18')
            A('v_mov_b32 v12, v8')
            A('v_mov_b32 v13, v9')
            A('v_mov_b32 v14, v10')
            A('v_permlane32_swap_b32 v8, v12')
            A('v_permlane32_swap_b32 v9, v13')
            A('v_permlane32_swap_b32 v10, v14')
            A('v_pk_add_f32 v[8:9], v[8:9], v[12:13]')
            A('v_pk_max_i16 v10, v10, v14')
            A('v_mul_f32 v8, 0x37800000, v8')
            A('v_mul_f32 v9, 0x37800000, v9')
            self.key(10, 12)
            A('v_cvt_pk_bf16_f32 v8, v8, v9')
            A('s_mov_b32 exec_hi, 0')
            A(f'ds_write2_b32 {r("Gw")}, v8, v10 offset0:0 offset1:{GOFF // 4}')
            A('s_mov_b32 exec_hi, -1')
            A('s_waitcnt lgkmcnt(0)')
        else:
            def q_out(x):
                self.stamp()
                for q in range(3):
                    A(f'ds_write_b128 {r("Qw")}, v[{x + 4 * q}:{x + 3 + 4 * q}] offset:{1024 * q}')
            self.poll('L_poll2', r('in2'), [0, 1024, 2048], (104, 116), self.check_rec, q_out, p['stag'][1])
            A('s_waitcnt lgkmcnt(0)')
            A('s_barrier')
            if p.get('fine') and p['stamps']:
                A('s_memrealtime s[68:69]')
            A('s_cmp_ge_u32 s3, 3')
            A('s_cbranch_scc1 L_nog')
            for w in range(8):
                A(f'ds_read_b128 v[{8 + 4 * w}:{11 + 4 * w}], {r("t16")} offset:{3072 * w}')
            for k in range(4):
                A(f's_waitcnt lgkmcnt({6 - 2 * k})')
                ra, rb = 8 + 8 * k, 12 + 8 * k
                A(f'v_pk_add_f32 v[{ra}:{ra + 1}], v[{ra}:{ra + 1}], v[{rb}:{rb + 1}]')
                A(f'v_pk_max_i16 v{ra + 2}, v{ra + 2}, v{rb + 2}')
                if k:
                    A(f'v_pk_add_f32 v[8:9], v[8:9], v[{ra}:{ra + 1}]')
                    A(f'v_pk_max_i16 v10, v10, v{ra + 2}')
            A('v_mul_f32 v8, 0x37800000, v8')
            A('v_mul_f32 v9, 0x37800000, v9')
            self.key(10, 12)
            A('v_cvt_pk_bf16_f32 v8, v8, v9')
            A(f'ds_write2_b32 {r("Gw")}, v8, v10 offset0:0 offset1:{GOFF // 4}')
            A('s_waitcnt lgkmcnt(0)')
        L('L_nog')
        A('s_barrier')
        self.stamp()
        A('s_cmp_ge_u32 s3, 6')
        A('s_cbranch_scc1 L_nol1')
        NB = 8
        for b in range(NB):
            A(f'ds_read_b128 v[{8 + 4 * b}:{11 + 4 * b}], {r("G")} offset:{64 * b}')
        issued = NB
        for b in range(12):
            A(f's_waitcnt lgkmcnt({issued - b - 1})')
            g = 8 + 4 * (b % NB)
            c = '0' if b == 0 else 'v[40:43]'
            A(f'v_mfma_f32_16x16x32_bf16 v[40:43], v[{W1F + 4 * b}:{W1F + 4 * b + 3}], v[{g}:{g + 3}], {c}')
            if issued < 12:
                A(f'ds_read_b128 v[{g}:{g + 3}], {r("G")} offset:{64 * issued}')
                issued += 1
        A('s_nop 7')
        if p.get('fine') and p['stamps']:
            A('v_mov_b32 v7, v43')
            A('s_memrealtime s[62:63]')
        for k in range(4):
            A(f'v_mul_f32 v{8 + k}, 0, v{40 + k}')
            A(f'v_cmp_lt_f32 s[{52 + 2 * k}:{53 + 2 * k}], 0, v{40 + k}')
        A('s_mov_b32 exec_lo, 0x00030003')
        A('s_mov_b32 exec_hi, 0x00030003')
        for k in range(4):
            A(f'v_cndmask_b32 v{8 + k}, v{8 + k}, v{40 + k}, s[{52 + 2 * k}:{53 + 2 * k}]')
        A('v_cvt_pk_bf16_f32 v12, v8, v9')
        A('v_cvt_pk_bf16_f32 v13, v10, v11')
        A(f'ds_write_b64 {r("Hw")}, v[12:13]')
        A('s_mov_b64 exec, -1')
        A('s_waitcnt lgkmcnt(0)')
        L('L_nol1')
        A('s_barrier')
        if p.get('fine') and p['stamps']:
            A('s_memrealtime s[66:67]')
        A('s_cmp_ge_u32 s3, 4')
        A('s_cbranch_scc1 L_mlpback')
        for b in range(3):
            A(f'ds_read_b128 v[{8 + 4 * b}:{11 + 4 * b}], {r("H")} offset:{64 * b}')
        for b in range(3):
            A(f's_waitcnt lgkmcnt({2 - b})')
            c = '0' if b == 0 else 'v[20:23]'
            wf = W2F + 4 * b
            A(f'v_mfma_f32_16x16x32_bf16 v[20:23], v[{8 + 4 * b}:{11 + 4 * b}], v[{wf}:{wf + 3}], {c}')
        A('s_nop 7')
        if p.get('fine') and p['stamps']:
            A('v_mov_b32 v7, v23')
            A('s_memrealtime s[70:71]')
        A('v_cvt_pk_bf16_f32 v8, v20, v21')
        A('v_lshlrev_b32 v9, 16, v8')
        A('v_and_b32 v8, s48, v8')
        A('v_add_f32 v8, v8, v9')
        A('v_cvt_pk_bf16_f32 v8, v8, v8')
        A('v_and_b32 v8, s48, v8')
        A('v_mul_f32 v8, 0xbfb8aa3b, v8')
        A('v_exp_f32 v8, v8')
        A('s_mov_b64 exec, 0xffff')
        A('v_add_f32 v8, 1.0, v8')
        A('v_rcp_f32 v8, v8')
        A('s_nop 0')
        A('v_cvt_pk_bf16_f32 v8, v8, v8')
        A(f'v_and_or_b32 v40, v8, s48, {r("tag16")}')
        A(pubC if not p.get('force') else pubC + ' sc1')
        A('s_mov_b32 s12, 1')
        self.stamp()
        if not p['wb']:
            A(f's_sleep {p["dlyC"]}')
            A(pubC + ' sc1')
        A('s_mov_b64 exec, -1')
        L('L_last')
        A('s_branch L_join')

        if p['stamps']:
            L('L_stamps')
            A('s_waitcnt lgkmcnt(0)')
            A(f's_add_u32 s56, s{S_WS}, 0x8000000')
            A(f's_addc_u32 s57, s{S_WS + 1}, 0')
            A('s_lshl_b32 s58, s2, 4\n    s_add_u32 s58, s58, s3\n    s_lshl_b32 s58, s58, 7')
            A('s_mov_b64 exec, 1')
            A('v_mov_b32 v1, s58')
            A('s_getreg_b32 s59, hwreg(HW_REG_XCC_ID, 0, 4)')
            A('v_mov_b32 v4, s59\n    v_mov_b32 v5, 0')
            A('global_store_dwordx2 v1, v[4:5], s[56:57] offset:120')
            A('s_nop 1')
            A('v_mov_b32 v4, s15')
            A('global_store_dwordx2 v1, v[4:5], s[56:57] offset:112')
            A('s_nop 1')
            order = [0, 1, 2, 3, 4, 5, 8, 9, 10, 11, 6, 7]
            for i, k in enumerate(order):
                A(f'v_mov_b32 v4, s{S_ST + 2 * k}\n    v_mov_b32 v5, s{S_ST + 1 + 2 * k}')
                A(f'global_store_dwordx2 v1, v[4:5], s[56:57] offset:{8 * i}')
                A('s_nop 1')
            A('s_endpgm')
        o.append('.section .rodata,"a"')
        o.append('.p2align 6')
        o.append(f'.amdhsa_kernel {KNAME}')
        o.append('  .amdhsa_next_free_vgpr 256')
        o.append('  .amdhsa_next_free_sgpr 102')
        o.append('  .amdhsa_accum_offset 256')
        o.append('  .amdhsa_group_segment_fixed_size 0')
        o.append('  .amdhsa_kernarg_size 48')
        o.append('  .amdhsa_user_sgpr_count 2')
        o.append('  .amdhsa_user_sgpr_kernarg_segment_ptr 1')
        o.append('  .amdhsa_system_sgpr_workgroup_id_x 1')
        o.append('  .amdhsa_float_denorm_mode_32 3')
        o.append('.end_amdhsa_kernel')
        return '\n'.join(o) + '\n'

    def addr_prep(self):
        A, r = self.A, self.r
        kg, q3, l1, kc, rr, q7 = 'v44', 'v45', 'v46', 'v47', 'v48', 'v49'
        A(f'v_lshrrev_b32 {kg}, 4, v1')
        A(f'v_and_b32 {q3}, 3, v1')
        A(f'v_and_b32 {l1}, 1, v1')
        A(f'v_bfe_u32 {kc}, v1, 4, 1')
        A(f'v_bfe_u32 {rr}, v1, 2, 2')
        A(f'v_and_b32 {q7}, 0x70, v4')
        A('s_mul_i32 s45, s3, 3072')
        A(f's_add_u32 s45, s45, {L_P}')
        A('v_mul_u32_u24 v3, 48, v1')
        A(f'v_add_u32 {r("Pw")}, s45, v3')
        A(f'v_add_u32 {r("Qw")}, s45, v4')
        A('v_lshlrev_b32 v3, 4, v0')
        A(f'v_add_u32 {r("t16")}, {L_P}, v3')
        A('s_mul_i32 s49, s4, 98304')
        A('s_lshl_b32 s45, s5, 7')
        A('s_add_u32 s45, s45, s49')
        A('v_lshrrev_b32 v3, 3, v0')
        A(f'v_lshl_add_u32 v3, v3, 12, {q7}')
        A(f'v_add_u32 {r("pub")}, s45, v3')
        A('s_sub_u32 s51, s5, 8')
        A('s_lshl_b32 s45, s51, 12')
        A('s_add_u32 s45, s45, s49')
        A(f'v_add_u32 {r("in1")}, s45, v4')
        if self.p['tpos'] is not None:
            A('s_mul_i32 s45, s5, 3072')
            A('s_add_u32 s45, s45, s49')
            A('v_lshlrev_b32 v3, 6, v1')
            A('v_add_u32 v5, s45, v3')
            A(f's_xor_b32 s45, s4, {self.p.get("bx", 0)}')
            A('s_mul_i32 s45, s45, 24576')
            A('s_mul_i32 s43, s5, 768')
            A('s_add_u32 s45, s45, s43')
            A(f's_add_u32 s45, s45, {O_B - 48 * 64}')
            A('v_add_u32 v6, s45, v3')
            A('v_cmp_gt_u32 vcc, 48, v1')
            A('s_lshl_b32 s45, s4, 11')
            A('s_lshl_b32 s43, s5, 6')
            A('v_cndmask_b32 v5, v6, v5, vcc')
            A('s_add_u32 s45, s45, s43')
            A(f's_add_u32 s45, s45, {O_C}')
            A('v_mov_b32 v6, s45')
            A('v_cmp_gt_u32 vcc, 60, v1')
            A('s_nop 1')
            A(f'v_cndmask_b32 {r("tch")}, v6, v5, vcc')
            if self.p.get('uni'):
                A(f's_cmp_eq_u32 s3, {self.p.get("twave", 4)}')
                A('s_cselect_b32 s45, 0, 2.0')
                A(f'v_add_u32 {r("tch")}, s45, {r("tch")}')
                A('s_mul_i32 s45, s5, 2304')
                A(f's_cmp_eq_u32 s3, {self.p.get("wwave", 6)}')
                A('s_cselect_b32 s45, s45, 2.0')
                A('v_add_u32 v5, s45, v3')
                A('v_cmp_gt_u32 vcc, 36, v1')
                A('v_mov_b32 v6, 2.0')
                A('s_nop 0')
                A(f'v_cndmask_b32 {r("wtc")}, v6, v5, vcc')
                if self.p.get('half'):
                    A(f'v_lshlrev_b32 v5, 30, {l1}')
                    A(f'v_or_b32 {r("wtc")}, v5, {r("wtc")}')
                    A(f'v_or_b32 {r("tch")}, v5, {r("tch")}')
        A('s_mul_i32 s45, s4, 3072')
        A('s_lshl_b32 s49, s51, 7')
        A('s_add_u32 s45, s45, s49')
        A(f's_add_u32 s45, s45, {O_B}')
        A('v_lshrrev_b32 v3, 3, v1')
        A('v_mul_u32_u24 v3, 24576, v3')
        A(f'v_add3_u32 {r("out2")}, v3, {q7}, s45')
        if self.p.get('direct'):
            A('s_mul_i32 s45, s4, 24576')
            A('s_lshl_b32 s49, s3, 9')
            A('s_add_u32 s45, s45, s49')
            A(f's_add_u32 s45, s45, {O_B}')
            A('v_lshrrev_b32 v3, 5, v1')
            A('v_mul_u32_u24 v3, 2560, v3')
            A(f'v_add3_u32 {r("in2")}, v3, v4, s45')
        else:
            A('s_lshl_b32 s45, s4, 3')
            A('s_add_u32 s45, s45, s3')
            A('s_mul_i32 s45, s45, 3072')
            A(f's_add_u32 s45, s45, {O_B}')
            A(f'v_add_u32 {r("in2")}, s45, v4')
        A('s_lshl_b32 s45, s4, 11')
        A(f's_add_u32 s45, s45, {O_C}')
        A(f'v_add_u32 {r("in3")}, s45, v4')
        A('s_lshl_b32 s49, s5, 2')
        A('s_add_u32 s49, s49, s3')
        A('s_lshl_b32 s49, s49, 6')
        A('s_add_u32 s45, s45, s49')
        A(f'v_lshl_add_u32 {r("out3")}, v1, 2, s45')
        if self.p.get('direct'):
            A('v_and_b32 v3, 0x19, v1')
            A('s_lshl_b32 s45, s3, 5')
            A('v_add_u32 v3, s45, v3')
        else:
            A('v_and_b32 v3, 0x1f9, v0')
        A('v_bfe_u32 v5, v0, 1, 1')
        A('v_lshl_add_u32 v3, v5, 2, v3')
        A('v_bfe_u32 v5, v0, 2, 1')
        A('v_lshl_add_u32 v3, v5, 1, v3')
        A('v_lshlrev_b32 v3, 2, v3')
        A(f'v_add_u32 {r("Gw")}, {L_G}, v3')
        A(f'v_mul_u32_u24 v3, {GOFF}, {l1}')
        A(f'v_lshl_add_u32 v3, {kg}, 4, v3')
        A(f'v_add_u32 {r("G")}, {L_G}, v3')
        A(f'v_mul_u32_u24 v3, 192, {l1}')
        A(f'v_add_u32 v3, {L_H}, v3')
        A(f'v_lshl_add_u32 {r("H")}, {kg}, 4, v3')
        A(f'v_lshl_add_u32 v3, {kc}, 4, v3')
        A('v_lshrrev_b32 v5, 5, v1')
        A('v_lshl_add_u32 v3, v5, 3, v3')
        A('s_lshl_b32 s45, s3, 5')
        A(f'v_add_u32 {r("Hw")}, s45, v3')
        A(f'v_add_u32 {r("Sw")}, {L_S}, v4')
        A('v_mul_u32_u24 v3, 24, v1')
        A(f'v_add_u32 {r("S")}, {L_S}, v3')
        if self.p.get('cons'):
            n_pub, n_oth = self.p['cons']
            A('s_min_u32 s44, s3, 3')
            A(f's_mul_i32 s44, s44, {n_pub - n_oth}')
            A(f's_mul_i32 s45, s3, {n_oth}')
            A('s_add_u32 s44, s44, s45')
            A('s_lshl_b32 s45, s44, 5')
            A('s_mul_i32 s44, s44, 768')
            A('s_and_b32 s45, s45, 32')
            A(f'v_xor_b32 {r("vW1")}, s45, v4')
            A(f'v_xor_b32 {r("vW1b")}, 32, {r("vW1")}')
        else:
            A('s_and_b32 s45, s45, 32')
            A(f'v_xor_b32 {r("vW1")}, s45, v4')
        A('v_lshrrev_b32 v3, 3, v1')
        A('v_mul_u32_u24 v3, 768, v3')
        A('s_lshl_b32 s45, s5, 7')
        A(f'v_add3_u32 {r("vW2")}, v3, {q7}, s45')
        A(f'v_lshl_add_u32 v6, {kc}, 2, {rr}')
        A('v_lshl_add_u32 v7, v5, 4, v6')
        A(f'v_xor_b32 v3, s3, {kc}')
        A('v_lshlrev_b32 v3, 5, v3')
        A(f'v_lshl_add_u32 v3, {q3}, 3, v3')
        A('v_mul_u32_u24 v5, 192, v7')
        A(f'v_add_u32 {r("a1")}, v3, v5')
        A(f'v_add_u32 {r("a1b")}, {6 * 6144}, {r("a1")}')
        A('v_lshlrev_b32 v5, 7, v7')
        A(f'v_lshl_add_u32 v5, {q3}, 3, v5')
        A('s_and_b32 s45, s3, 3')
        A('s_lshl_b32 s45, s45, 5')
        A(f's_add_u32 s45, s45, {L_W2}')
        A(f'v_add_u32 {r("a2")}, s45, v5')


if __name__ == '__main__':
    kw = eval('dict(%s)' % (sys.argv[2] if len(sys.argv) > 2 else ''))
    open(sys.argv[1], 'w').write(Gen(**kw).build())
```

```python
import sys

KNAME = 'standalone__channel_attn_cbam__vision_kernel'
HEADER = """; Kernarg layout for this problem (48 bytes, ptrs only, base s[0:1]):
"""

XBYTES = 50331648
WBYTES = 73728
O_A = 0
O_B = 786432
O_C = O_B + 196608
WS_USE = 1 << 20
L_W1, L_W2 = 0, 73728
L_P = 90112
L_G, L_H, L_S = 114688, 116736, 117248
GOFF = 832
LDS_BYTES = 118784
S_X, S_W1, S_W2, S_OUT, S_DBG, S_WS = 16, 20, 24, 28, 32, 36
ACC, TMP, W1F, W2F, DATA = 8, 20, 44, 92, 104
S_U, S_ST = 60, 76
L_T = 116480
XOR3 = 'bitop3:0x96'


class Gen:
    def __init__(self, **kw):
        self.p = dict(D=8, lpol='nt', spol='sc1', stamps=False, npos=10, ipos=26, wpf=28, tpos=28, half=True, thr=(0, 0),
                      spin=1 << 20, dlyA=16, dlyC=10, nwg=0, wb=64, stag=(0, 0, 0), uni=True, iuni=True, twave=5, numa=True, lateshift=True, NS=2, tilt=(1, 4), gap=40, gapx=30, De=None, direct=True, hoist=False, bx=1, B=32, R=32)
        self.p.update(kw)
        self.o = []
        self.vm = []
        self.nstamp = 0
        self.names = {}

    def A(self, s):
        self.o.append('    ' + s)

    def L(self, s):
        self.o.append(s + ':')

    def C(self, s):
        self.o.append('    ; ' + s)

    def srd(self, b):
        return f's[{b}:{b + 3}]'

    def issue(self, tag, text):
        self.A(text)
        self.vm.append(tag)

    def wait_for(self, tag):
        n = len(self.vm) - 1 - self.vm.index(tag)
        assert n <= 63
        self.A(f's_waitcnt vmcnt({n})')

    def stamp(self):
        self.npos = getattr(self, 'npos', -1) + 1
        amp = self.p.get('amp')
        if amp is not None and self.npos == 0:
            self.A('s_memrealtime s[90:91]')
            self.A('s_mov_b32 s88, 0')
            self.A('s_mov_b32 s92, 0')
        if amp is not None and self.npos == amp[0]:
            self.A('s_memrealtime s[88:89]')
        if amp is not None and self.npos == amp[1]:
            self.A('s_memrealtime s[92:93]')
        if self.p['stamps']:
            k = self.nstamp
            assert k < 13
            self.A(f's_memrealtime s[{S_ST + 2 * k}:{S_ST + 1 + 2 * k}]')
            self.nstamp += 1

    def d(self, j):
        return f'v[{DATA + 4 * j}:{DATA + 4 * j + 2}]'

    def r(self, name):
        if name not in self.names:
            self.names[name] = len(self.names)
            assert self.names[name] < 32
        return f'v{DATA + 4 * self.names[name] + 3}'

    def ws_load4(self, reg, addr, off):
        if isinstance(off, str):
            return f'buffer_load_dwordx4 v[{reg}:{reg + 3}], {addr}, {self.srd(S_WS)}, {off} offen sc1'
        o = f' offset:{off}' if off else ''
        return f'buffer_load_dwordx4 v[{reg}:{reg + 3}], {addr}, {self.srd(S_WS)}, 0 offen{o} sc1'

    def check_rec(self, base, n, pend):
        A = self.A
        t = 38
        for i in range(n):
            x = base + 4 * i
            A(f's_waitcnt vmcnt({pend + n - 1 - i})')
            A(f'v_bitop3_b32 v{t + i}, v{x}, v{x + 1}, v{x + 2} {XOR3}')
            A(f'v_bitop3_b32 v{t + i}, v{t + i}, v{x + 3}, {self.r("tag")} {XOR3}')
            if i == 2:
                A(f'v_or3_b32 v{t}, v{t}, v{t + 1}, v{t + 2}')
            if i == 3:
                A(f'v_or_b32 v{t}, v{t}, v{t + 3}')
        A(f'v_cmp_ne_u32 vcc, 0, v{t}')

    def check_scale(self, base, n, pend):
        A = self.A
        for i in range(2):
            A(f's_waitcnt vmcnt({pend + 1 - i})')
            for k in range(4):
                A(f'v_xor_b32 v{base + 4 * i + k}, s{6 + k}, v{base + 4 * i + k}')
            if self.p.get('spec', True):
                A(f'ds_write_b128 {self.r("Sw")}, v[{base + 4 * i}:{base + 4 * i + 3}] offset:{768 * i}')
            if i == 0:
                A(f'v_or3_b32 v38, v{base}, v{base + 1}, v{base + 2}')
            else:
                A(f'v_or3_b32 v38, v38, v{base + 3}, v{base + 4}')
                A(f'v_or3_b32 v39, v{base + 5}, v{base + 6}, v{base + 7}')
                A('v_or_b32 v38, v38, v39')
        A('v_cmp_ne_u16 vcc, 0, v38')

    def poll(self, lab, addr, offs, sets, check, success, stagger, between=None):
        A, L = self.A, self.L
        n = len(offs)

        def loads(base):
            for i, off in enumerate(offs):
                t = self.ws_load4(base + 4 * i, addr, off)
                pol = self.p.get('ppol', {}).get(lab[-1])
                A(t if pol is None else t.replace(' sc1', ' ' + pol))
        A(f's_mov_b32 s50, {self.p["spin"] - 1}')
        if lab[-1] in self.p.get('sel', ''):
            base = sets[0]
            for i in range(n):
                A(f's_mov_b64 s[{52 + 2 * i}:{53 + 2 * i}], -1')
            L(lab)
            for i, off in enumerate(offs):
                A(f's_or_b64 exec, s[{52 + 2 * i}:{53 + 2 * i}], 1')
                A(self.ws_load4(base + 4 * i, addr, off))
            A('s_mov_b64 exec, -1')
            for i in range(n):
                x = base + 4 * i
                A(f's_waitcnt vmcnt({n - 1 - i})')
                A(f'v_bitop3_b32 v38, v{x}, v{x + 1}, v{x + 2} {XOR3}')
                A(f'v_xor_b32 v38, v38, v{x + 3}')
                A(f'v_cmp_ne_u32 s[{52 + 2 * i}:{53 + 2 * i}], v38, {self.r("tag")}')
                if i == 2:
                    A('s_or_b64 s[46:47], s[52:53], s[54:55]')
            A('s_or_b64 s[46:47], s[46:47], s[56:57]')
            A('s_or_b64 s[46:47], s[46:47], s[58:59]')
            A(f's_cbranch_scc0 {lab}done')
            self.again(lab)
            L(lab + 'done')
            success(base)
            return
        if between:
            loads(sets[0])
            between()
            L(lab)
            check(sets[0], n, 0)
            A(f's_cbranch_vccz {lab}done')
            self.again(lab, lambda: loads(sets[0]))
            L(lab + 'done')
            success(sets[0])
            return
        if not stagger:
            L(lab)
            loads(sets[0])
            check(sets[0], n, 0)
            A(f's_cbranch_vccz {lab}done')
            self.again(lab)
            L(lab + 'done')
            success(sets[0])
            return
        loads(sets[0])
        A(f's_sleep {stagger}')
        L(lab)
        loads(sets[1])
        check(sets[0], n, n)
        A(f's_cbranch_vccz {lab}x')
        loads(sets[0])
        check(sets[1], n, n)
        A(f's_cbranch_vccz {lab}y')
        self.again(lab)
        L(lab + 'y')
        k = self.nstamp
        success(sets[1])
        A(f's_branch {lab}done')
        L(lab + 'x')
        self.nstamp = k
        success(sets[0])
        L(lab + 'done')

    def again(self, lab, reissue=None):
        A = self.A
        if self.p['wb']:
            A(f's_and_b32 s51, s50, {self.p["wb"] - 1}')
            A(f's_cbranch_scc1 {lab}nowb')
            self.C('still waiting: push plain-stored records of this XCD out, a reader may sit behind another L2')
            A('buffer_wbl2 sc1')
            A('s_waitcnt vmcnt(0)')
            A('buffer_inv sc1')
            self.L(lab + 'nowb')
        if reissue:
            reissue()
        A('s_sub_u32 s50, s50, 1')
        A(f's_cbranch_scc0 {lab}')

    def seal(self):
        self.A(f'v_bitop3_b32 v11, v8, v9, v10 {XOR3}')
        self.A(f'v_xor_b32 v11, v11, {self.r("tag")}')

    def key(self, x, t):
        self.A(f'v_pk_ashrrev_i16 v{t}, 15, v{x} op_sel_hi:[0,1]')
        self.A(f'v_bitop3_b32 v{x}, v{x}, v{t}, s49 bitop3:0x78')

    def stage_weights(self):
        A, r = self.A, self.r
        A('s_mov_b32 exec_hi, 0xffff')
        for i in range(12):
            A('s_mul_i32 s44, s3, 768' if i == 0 else 's_addk_i32 s44, 6144')
            A('s_mov_b32 m0, s44')
            A('s_nop 0')
            A(f'buffer_load_dwordx4 {r("vW1")}, {self.srd(S_W1)}, s44 offen lds')
        A('s_mov_b64 exec, -1')
        for k in range(2):
            if k == 0:
                A('s_lshl_b32 s45, s3, 10')
                A(f's_add_u32 m0, s45, {L_W2}')
                A('s_mul_i32 s44, s3, 6144')
            else:
                A('s_add_u32 m0, m0, 8192')
                A('s_add_u32 s44, s44, 49152')
            A(f'buffer_load_dwordx4 {r("vW2")}, {self.srd(S_W2)}, s44 offen lds')

    def stage_one(self, i):
        A, r = self.A, self.r
        if i < 12:
            A('s_mul_i32 s44, s3, 768' if i == 0 else 's_addk_i32 s44, 6144')
            A('s_mov_b32 m0, s44')
            A('s_mov_b32 exec_hi, 0xffff')
            self.issue(f'W{i}', f'buffer_load_dwordx4 {r("vW1")}, {self.srd(S_W1)}, s44 offen lds')
            A('s_mov_b32 exec_hi, -1')
        else:
            if i == 12:
                A('s_lshl_b32 s45, s3, 10')
                A(f's_add_u32 m0, s45, {L_W2}')
                A('s_mul_i32 s44, s3, 6144')
            else:
                A('s_add_u32 m0, m0, 8192')
                A('s_add_u32 s44, s44, 49152')
            self.issue(f'W{i}', f'buffer_load_dwordx4 {r("vW2")}, {self.srd(S_W2)}, s44 offen lds')

    def probe(self):
        A, L, C = self.A, self.L, self.C
        L('L_probe')
        C('ranks 6, 7 of every group: two write-through stores into d_out (overwritten later), acknowledged in order;')
        C('a gap between the two acknowledgements says that the first 8-KiB block is the one homed on this side')
        A('v_readfirstlane_b32 s3, v0')
        if self.p.get('lateshift'):
            A(f's_load_dwordx2 s[{S_OUT}:{S_OUT + 1}], s[0:1], 24')
        A(f's_load_dwordx2 s[{S_DBG}:{S_DBG + 1}], s[0:1], 32')
        A('s_memrealtime s[10:11]')
        A('s_and_b32 s4, s2, 7')
        if not self.p.get('ownfirst'):
            A('s_mov_b32 s46, 0')
        A('s_cmp_eq_u32 s3, 0')
        A('s_cbranch_scc1 L_time')
        A('s_barrier')
        A('s_branch L_probeback')
        L('L_issue')
        A('s_mov_b32 s46, 1')
        A('s_and_b32 s44, s5, 1')
        A('s_xor_b32 s44, s44, 1')
        A('s_lshl_b32 s42, s44, 25')
        A('s_lshl_b32 s43, s4, 14')
        A('s_add_u32 s42, s42, s43')
        A('v_mov_b32 v5, 0')
        A('s_mov_b64 exec, 1')
        A(f's_mov_b32 s{S_OUT + 2}, {XBYTES}')
        A(f's_mov_b32 s{S_OUT + 3}, 0x20000')
        A('s_waitcnt lgkmcnt(0)')
        A(f's_sub_u32 s43, 0x800, s{S_OUT}')
        A('s_and_b32 s43, s43, 0x3ffc')
        A('s_add_u32 s42, s42, s43')
        A('s_add_u32 s43, s42, 8192')
        A(f's_sub_u32 s45, s{S_X}, s{S_OUT}')
        A('s_addk_i32 s45, 2048')
        A('s_bitcmp1_b32 s45, 12')
        A('s_cselect_b32 s45, 2.0, 0')
        A('v_mov_b32 v8, s45')
        A('s_branch L_timed')
        A('.p2alignl 6, 0xbf800000')
        L('L_timed')
        A(f'buffer_store_dword v5, v5, {self.srd(S_OUT)}, s42 offen sc1')
        A(f'buffer_store_dword v5, v5, {self.srd(S_OUT)}, s43 offen sc1')
        A(f'buffer_load_dword v6, v8, {self.srd(S_X)}, s42 offen nt')
        A(f'buffer_load_dword v7, v8, {self.srd(S_X)}, s43 offen nt')
        own = self.p['D'] if self.p.get('ownfirst') else 0
        if own:
            A('s_mov_b64 exec, -1')
            A('s_branch L_probeback2')
            L('L_issued')
        A('s_barrier')
        A('s_cmp_lg_u32 s2, 56')
        A('s_cbranch_scc1 L_time')
        C('one wave of the grid publishes the nonce of this launch (both words non-zero)')
        A('s_or_b32 s10, s10, 1')
        A('s_bitset1_b32 s11, 31')
        A(f's_atomic_swap_x2 s[10:11], s[{S_DBG}:{S_DBG + 1}], 0 glc')
        L('L_time')
        for k in range(4):
            A(f's_waitcnt vmcnt({own + 3 - k})')
            A(f's_memtime s[{52 + 2 * k}:{53 + 2 * k}]')
        A('s_cmp_eq_u32 s46, 0')
        A('s_cbranch_scc1 L_issue')
        A('s_mov_b64 exec, -1')
        A(f's_add_u32 s43, s42, s{S_OUT}')
        A('s_bfe_u32 s43, s43, 0x10015')
        A('s_mul_i32 s43, s43, 0x1000100')
        A('s_getreg_b32 s42, hwreg(HW_REG_XCC_ID, 2, 1)')
        A('s_mul_i32 s42, s42, 0x1010100')
        A('s_xor_b32 s42, s42, s43')
        A('s_lshl_b32 s44, s44, 2')
        A('s_add_u32 s44, s44, 8')
        A('s_waitcnt lgkmcnt(0)')
        A('s_sub_u32 s43, s54, s52')
        A('s_sub_u32 s58, s58, s56')
        A(f's_cmp_lt_u32 s43, {self.p["gap"]}')
        A('s_cselect_b32 s43, 0x101, 1')
        A('s_xor_b32 s56, s43, s42')
        A(f's_cmp_lt_u32 s58, {self.p["gapx"]}')
        A('s_cselect_b32 s43, 0x1000000, 0')
        A('s_xor_b32 s56, s56, s43')
        A('s_lshl_b32 s56, s56, s4')
        A(f's_atomic_or s56, s[{S_DBG}:{S_DBG + 1}], s44 glc')
        A('s_branch L_noprobe' if own else 's_branch L_probeback2')

    def select(self):
        A, L, C = self.A, self.L, self.C
        self.tagged = 1
        if self.p.get('sn'):
            A('s_waitcnt lgkmcnt(0)')
            self.tags(False)
        else:
            self.wait_for('N')
            self.tags()
        A('s_cmp_eq_u32 s42, 0')
        A('s_cbranch_scc1 L_nonce')
        L('L_nonceback')
        C('majorities of the votes; the piece of this pair; the side its lower group sits on')
        NS = self.p['NS']

        def maj(dst, src, pos):
            A(f's_bfe_u32 {dst}, {src}, {0x80000 | pos:#x}')
            A(f's_bcnt1_i32_b32 {dst}, {dst}')
            A(f's_cmp_gt_u32 {dst}, 4')
            A(f's_cselect_b32 {dst}, 1, 0')
        n = 4 * NS
        HALF = sum(1 << i for i in range(n) if i % 2 == 1)
        num, den = self.p['tilt']
        TILT = sum(1 << i for i in range(n) if ((i + 1) * num) // den != (i * num) // den)
        maj('s42', 's14', 8)
        maj('s43', 's14', 24)
        A('s_xor_b32 s54, s42, s43')
        maj('s52', 's15', 8)
        maj('s43', 's15', 24)
        A('s_xor_b32 s53, s52, s43')
        A('s_and_b32 s44, s4, 3')
        A('s_add_u32 s44, s44, 16')
        A('s_lshr_b32 s44, s14, s44')
        A('s_lshr_b32 s45, s4, 2')
        A('s_xor_b32 s44, s44, s45')
        A('s_andn2_b32 s46, s2, 4')
        A('s_cmp_lt_u32 s46, 168')
        A('s_cselect_b32 s42, s42, s52')
        A('s_cselect_b32 s43, s54, s53')
        A('s_cmp_lg_u32 s54, 0')
        A(f's_mov_b32 s52, {HALF}')
        A(f's_cselect_b32 s52, {TILT}, s52')
        A('s_mul_i32 s43, s43, s52')
        A(f's_sub_u32 s52, s{S_X}, s{S_OUT}')
        A('s_addk_i32 s52, 2048')
        A('s_bitcmp1_b32 s52, 12')
        A('s_cselect_b32 s43, 0, s43')
        A('s_cmp_lt_u32 s46, 168')
        A('s_cselect_b32 s52, s14, s15')
        A('s_bfe_u32 s52, s52, 0x80008')
        A('s_bcnt1_i32_b32 s52, s52')
        A('s_cmp_eq_u32 s52, 4')
        A(f's_cselect_b32 s43, {HALF}, s43')
        A('s_xor_b32 s42, s42, s44')
        A('s_bitcmp1_b32 s42, 0')
        A('s_cselect_b32 s42, -1, 0')
        A('s_xor_b32 s43, s43, s42')
        A('s_mul_i32 s45, s46, 196608')
        A('s_add_u32 s45, s45, s41')
        i = 0
        for sg in range(3 - NS, 3):
            for m in (0, 3):
                for rho in range(2):
                    d = f's{S_U + i}'
                    A(f's_add_u32 {d}, s45, {rho * 4 * 196608 + sg * 49152 + m * 6144}')
                    A(f's_add_u32 s47, {d}, s{S_OUT}')
                    A(f's_lshr_b32 s47, s47, {21 - i}')
                    A('s_xor_b32 s47, s47, s43')
                    A(f's_bitcmp1_b32 s47, {i}')
                    A('s_cselect_b32 s47, 24576, 0')
                    A(f's_add_u32 {d}, {d}, s47')
                    i += 1

    def tags(self, from_v=True):
        A, r = self.A, self.r
        if from_v:
            A('v_readfirstlane_b32 s10, v34')
            A('v_readfirstlane_b32 s11, v35')
            A('v_readfirstlane_b32 s14, v36')
            A('v_readfirstlane_b32 s15, v37')
        else:
            A('s_mov_b64 s[10:11], s[52:53]')
            A('s_mov_b64 s[14:15], s[54:55]')
            A('v_mov_b32 v34, s10')
            A('v_mov_b32 v35, s11')
        A('v_and_b32 v36, 1, v1')
        A('v_cmp_eq_u32 vcc, 1, v36')
        A('v_and_b32 v37, 7, v1')
        A('v_lshlrev_b32 v36, 4, v36')
        A('v_cndmask_b32 v38, v34, v35, vcc')
        A(f'v_add_u32 {r("tag")}, v38, v37')
        A('v_and_b32 v37, 2, v1')
        A('v_cmp_eq_u32 vcc, 2, v37')
        A('s_and_b32 s6, s10, 0xffff')
        A('s_lshr_b32 s7, s10, 16')
        A('v_cndmask_b32 v38, v34, v35, vcc')
        A(f'v_bfe_u32 {r("tag16")}, v38, v36, 16')
        A('s_and_b32 s8, s11, 0xffff')
        A('s_lshr_b32 s9, s11, 16')
        A('s_min_u32 s42, s10, s11')
        A('s_and_b32 s43, s14, s15')
        A('s_and_b32 s43, s43, 0xff')
        A('s_cmp_eq_u32 s43, 0xff')
        A('s_cselect_b32 s42, s42, 0')

    def build(self):
        p = self.p
        A, L, C, r = self.A, self.L, self.C, self.r
        D, B, R = p['D'], p['B'], p['R']
        assert B % 2 == 0 and R - B <= 16 and DATA + 4 * R <= 256
        NDYN = 256 - 8 * B
        o = self.o
        o.append(HEADER.rstrip())
        o.append(f'; @launch grid=(256,1,1) block=(512,1,1) lds={LDS_BYTES}')
        o.append('.amdgcn_target "amdgcn-amd-amdhsa--gfx950"')
        o.append('.text')
        o.append(f'.globl {KNAME}')
        o.append('.p2align 8')
        o.append(f'.type {KNAME},@function')
        L(KNAME)
        self.stamp()
        A(f's_load_dwordx2 s[{S_X}:{S_X + 1}], s[0:1], 0')
        late = p.get('lateshift') and p['NS'] == 2
        if not late:
            A(f's_load_dwordx2 s[{S_OUT}:{S_OUT + 1}], s[0:1], 24')
        G = p.get('G', 1)
        mp = p.get('map')
        if mp is None:
            A('v_mul_u32_u24 v2, 12, v0')
        else:
            wr = mp.get('wr', 1)
            A('v_lshrrev_b32 v3, 6, v0')
            A('v_mul_u32_u24 v2, 12, v0')
            if wr > 1:
                A(f'v_mul_u32_u24 v3, {(wr - 1) * 768}, v3')
                A('v_add_u32 v2, v2, v3')
        self.jj = 0
        def base(g):
            self.jj = 0
            if mp is not None:
                perm = mp.get('perm')
                if perm == 'xcd':
                    A('s_and_b32 s40, s2, 7')
                    A('s_lshl_b32 s40, s40, 5')
                    A('s_lshr_b32 s41, s2, 3')
                    A('s_add_u32 s40, s40, s41')
                    A('s_cmp_ge_u32 s2, 256')
                    A('s_cselect_b32 s40, s2, s40')
                    A('s_mul_i32 s40, s40, 196608')
                else:
                    A('s_mul_i32 s40, s2, 196608')
                if mp.get('rot'):
                    A('s_add_u32 s41, s40, 196608')
                    sh, mul = mp['rot']
                    A(f's_lshr_b32 s43, s2, {sh}')
                    A(f's_mul_i32 s43, s43, {mul}')
                    A(f's_and_b32 s43, s43, {32 // mp.get("wr", 1) - 1}')
                    A(f's_mul_i32 s43, s43, {6144 * mp.get("wr", 1)}')
                    A('s_add_u32 s40, s40, s43')
            elif g == 1:
                A('s_mul_i32 s40, s2, 196608')
            else:
                A(f's_and_b32 s40, s2, {g - 1}')
                A('s_mul_i32 s40, s40, -31')
                A('s_lshl_b32 s41, s2, 5')
                A('s_add_u32 s40, s40, s41')
                A('s_mul_i32 s40, s40, 6144')
                A(f's_mov_b32 s41, {g * 6144}')
        def adv(g):
            self.jj += 1
            if mp is not None:
                wr = mp.get('wr', 1)
                if self.jj % wr:
                    A('s_addk_i32 s40, 768')
                else:
                    A(f's_add_u32 s40, s40, {6144 * wr - (wr - 1) * 768}')
                    if mp.get('rot'):
                        A('s_cmp_ge_u32 s40, s41')
                        A('s_cselect_b32 s43, 196608, 0')
                        A('s_sub_u32 s40, s40, s43')
                return
            A('s_addk_i32 s40, 6144' if g == 1 else 's_add_u32 s40, s40, s41')
        base(G)
        A(f's_mov_b32 s{S_X + 2}, {XBYTES}')
        A(f's_mov_b32 s{S_X + 3}, 0x20000')
        numa = p['numa']
        NS = p['NS']
        S = 32 - 4 * NS
        NEUTRAL = [u for u in range(32) if u < 8 * (3 - NS) or u >= 24 or u % 8 in (1, 2, 5, 6)]
        assert len(NEUTRAL) == S
        if numa:
            if p.get('ownfirst'):
                A('s_mov_b32 s46, 0')
            A('s_lshr_b32 s5, s2, 3')
            A('s_or_b32 s4, s5, 1')
            A('s_cmp_eq_u32 s4, 7')
            A('s_cbranch_scc1 L_probe')
            L('L_probeback')
        A('s_waitcnt lgkmcnt(0)')
        L('L_probeback2')

        def shift():
            C('first unit (8 rows) of this workgroup that starts a 16-KiB period of d_out (to within 2 KiB)')
            A(f's_bfe_u32 s41, s{S_OUT}, 0x3000b')
            A('s_mul_i32 s41, s41, 5')
            A('s_and_b32 s41, s41, 7')
            A('s_mulk_i32 s41, 6144')
            if not late:
                A('s_add_u32 s40, s40, s41')
        if not late:
            shift()

        def slot(j):
            if j >= S:
                return f's{S_U + j - S}'
            if j == 0 and NEUTRAL[0]:
                A(f's_addk_i32 s40, {6144 * NEUTRAL[0]}')
            if j:
                A(f's_addk_i32 s40, {6144 * (NEUTRAL[j] - NEUTRAL[j - 1])}')
            if late and j == 8:
                A('s_add_u32 s40, s40, s41')
            if NEUTRAL[j] > 24:
                A('s_cmp_ge_u32 s40, s51')
                A(f's_cselect_b32 s47, {147456 if late else 196608}, 0')
                A('s_sub_u32 s40, s40, s47')
            return 's40'

        def voff(j):
            return r('rev') if (p.get('rev', True) and numa and j >= S and (j - S) % 2 == 1) else 'v2'

        def request():
            A('s_mov_b64 exec, 1')
            A(f'ds_add_rtn_u32 v42, {r("T")}, v43')
            A('s_mov_b64 exec, -1')

        def issue_x(j):
            if numa:
                if j == S:
                    self.select()
                so = slot(j)
            elif j < B:
                if j:
                    adv(G)
                so = 's40'
            else:
                so = f's{S_U + j - B}'
                A('s_waitcnt lgkmcnt(0)')
                A(f'v_readfirstlane_b32 s14, v42')
                if j + 1 < R:
                    request()
                A(f's_mul_i32 {so}, s14, 768')
                A(f's_add_u32 {so}, {so}, s41')
                A(f's_cmp_lt_u32 s14, {NDYN}')
                A(f's_cselect_b32 {so}, {so}, 2.0')
                A('s_addc_u32 s15, s15, 0')
            self.issue(f'X{j}', f'buffer_load_dwordx3 {self.d(j)}, {voff(j)}, {self.srd(S_X)}, {so} offen {p["lpol"]}'.rstrip())
            if j == B - 1 and R > B:
                request()

        for j in range(D):
            issue_x(j)
            if j == 0 and not numa:
                A(f's_load_dwordx2 s[{S_DBG}:{S_DBG + 1}], s[0:1], 32')
                A('s_memrealtime s[10:11]')
            if j == 1 and R > B:
                A(f'v_mov_b32 {r("T")}, {L_T}')
                A('v_mov_b32 v43, 0')
                A(f'ds_write_b32 {r("T")}, v43')
                A('s_waitcnt lgkmcnt(0)')
                A('s_barrier')
        self.stamp()
        if numa:
            if p.get('ownfirst'):
                A('s_cmp_lg_u32 s46, 0')
                A('s_cbranch_scc1 L_issued')
            A('s_branch L_noprobe')
            self.probe()
            L('L_noprobe')
        A('s_cmp_ge_u32 s2, 256')
        A('s_cbranch_scc1 L_end')
        A('v_lshrrev_b32 v3, 6, v0')
        A('v_and_b32 v1, 63, v0')
        A(f's_mov_b32 s{S_DBG + 2}, 256')
        A('v_readfirstlane_b32 s3, v3')
        A(f's_mov_b32 s{S_DBG + 3}, 0x20000')
        A(f'v_mov_b32 {r("zero")}, 0')
        if not numa:
            A('s_lshl_b32 s42, s2, 3')
            A('s_add_u32 s42, s42, s3')
            A(f's_cmp_lg_u32 s42, {p["nwg"] * 8}')
            A('s_waitcnt lgkmcnt(0)')
            A('s_cbranch_scc1 L_nononce')
            C('one wave of the grid publishes the nonce of this launch (both words non-zero)')
            A('s_or_b32 s10, s10, 1')
            A('s_or_b32 s11, s11, 0x80000000')
            A('v_mov_b32 v34, s10')
            A('v_mov_b32 v35, s11')
            A('s_mov_b64 exec, 1')
            A(f'buffer_store_dwordx2 v[34:35], {r("zero")}, {self.srd(S_DBG)}, 0 offen sc1')
            A('s_mov_b64 exec, -1')
            L('L_nononce')
        if late:
            A(f's_load_dwordx2 s[{S_OUT}:{S_OUT + 1}], s[0:1], 24')
        if numa:
            A(f's_load_dwordx2 s[{S_DBG}:{S_DBG + 1}], s[0:1], 32')
        A(f's_load_dwordx2 s[{S_WS}:{S_WS + 1}], s[0:1], 40')
        A(f's_load_dwordx2 s[{S_W1}:{S_W1 + 1}], s[0:1], 8')
        A(f's_load_dwordx2 s[{S_W2}:{S_W2 + 1}], s[0:1], 16')
        A(f's_mov_b32 s{S_WS + 2}, {WS_USE}')
        A(f's_mov_b32 s{S_WS + 3}, 0x20000')
        A(f's_mov_b32 s{S_W1 + 2}, {WBYTES}')
        A(f's_mov_b32 s{S_W1 + 3}, 0x20000')
        A(f's_mov_b32 s{S_W2 + 2}, {WBYTES}')
        A(f's_mov_b32 s{S_W2 + 3}, 0x20000')
        A(f's_mov_b32 s{S_OUT + 2}, {XBYTES}')
        A(f's_mov_b32 s{S_OUT + 3}, 0x20000')
        A('s_mov_b32 s48, 0xffff0000')
        A('s_mov_b32 s12, 0')
        if R > B:
            A('v_mov_b32 v43, 1')
            A('s_mov_b32 s15, 0')
            A('s_lshl_b32 s41, s2, 8')
            A('s_sub_u32 s41, s41, s3')
            A(f's_add_u32 s41, s41, {8 * B}')
            A('s_mul_i32 s41, s41, 768')
        A('s_getreg_b32 s13, hwreg(HW_REG_XCC_ID, 0, 1)')
        A('s_and_b32 s4, s2, 7')
        A('s_lshr_b32 s5, s2, 3')
        A('v_lshlrev_b32 v4, 4, v1')
        A('v_xor_b32 v3, 0x1c0, v0')
        A(f'v_mul_u32_u24 {r("rev")}, 12, v3')
        prep = []
        save, self.o = self.o, prep
        self.addr_prep()
        self.o = save
        o = self.o

        def unpack(j, t):
            for q in range(3):
                A(f'v_lshlrev_b32 v{t + 2 * q}, 16, v{DATA + 4 * j + q}')
                A(f'v_and_b32 v{t + 2 * q + 1}, s48, v{DATA + 4 * j + q}')

        def pair(j, extra=None):
            for jj in (j, j + 1):
                self.wait_for(f'X{jj}')
                if not numa and 'N' in self.vm and self.vm.index('N') < self.vm.index(f'X{jj}') and not getattr(self, 'tagged', 0):
                    self.tagged = 1
                    self.tags()
                t = TMP + 6 * (jj & 1)
                unpack(jj, t)
                if jj + D < R:
                    de = p.get('De')
                    if isinstance(de, tuple):
                        de = de[jj % len(de)]
                    if de:
                        A('s_cmp_lg_u32 s13, 0')
                        A(f's_cbranch_scc1 L_lt{jj}')
                        self.wait_for(f'X{jj + D - de}')
                        L(f'L_lt{jj}')
                    issue_x(jj + D)
                if extra:
                    extra(jj)
                for q in range(3):
                    a = ACC + 4 * q
                    if jj == 1:
                        A(f'v_pk_add_f32 v[{a}:{a + 1}], v[{TMP + 2 * q}:{TMP + 2 * q + 1}], v[{t + 2 * q}:{t + 2 * q + 1}]')
                    elif jj > 1:
                        A(f'v_pk_add_f32 v[{a}:{a + 1}], v[{a}:{a + 1}], v[{t + 2 * q}:{t + 2 * q + 1}]')
            for q in range(3):
                for h in range(2):
                    a = ACC + 4 * q + 2 + h
                    if j == 0:
                        A(f'v_max_f32 v{a}, v{TMP + 2 * q + h}, v{TMP + 6 + 2 * q + h}')
                    else:
                        A(f'v_max3_f32 v{a}, v{a}, v{TMP + 2 * q + h}, v{TMP + 6 + 2 * q + h}')

        def uni(j):
            if not p.get('uni'):
                return
            if j == p['tpos']:
                C('touch 1/32 of the lines this group will poll (lanes of one wave; everything else is out of range)')
                self.issue('PT', f'buffer_load_dword {r("junk")}, {r("tch")}, {self.srd(S_WS)}, 0 offen sc1')
            if j == p['wpf']:
                C('touch 1/32 of the weights')
                self.issue('PW1', f'buffer_load_dword {r("junk")}, {r("wtc")}, {self.srd(S_W1)}, 0 offen')
                self.issue('PW2', f'buffer_load_dword {r("junk")}, {r("wtc")}, {self.srd(S_W2)}, 0 offen')
            if p.get('iuni') and j == p['ipos']:
                C('read the kernel text behind the load loop once (1 KiB per wave), to pull it into L2')
                A('s_getpc_b64 s[46:47]')
                L('L_pc')
                A('s_lshl_b32 s42, s3, 10')
                A('s_add_u32 s42, s42, L_acc - L_pc')
                A('v_lshl_add_u32 v6, v1, 6, s42')
                A('v_min_u32 v6, L_last - L_pc, v6')
                A('v_mov_b32 v7, s47')
                A('v_add_co_u32 v6, vcc, s46, v6')
                A('s_mov_b64 exec, 0xffff')
                A('s_nop 0')
                A('v_addc_co_u32 v7, vcc, 0, v7, vcc')
                self.issue('PI', f'global_load_dword {r("junk")}, v[6:7], off')
                A('s_mov_b64 exec, -1')

        nprep = p.get('prepsteps', 1)
        chunk = -(-len(prep) // nprep)
        for j in range(0, B, 2):
            if prep:
                o.extend(prep[:chunk])
                prep = prep[chunk:]
                if not prep:
                    A('s_mov_b32 s49, 0x7fff7fff')
                    A('s_add_u32 s51, s2, 1')
                    A('s_mul_i32 s51, s51, 196608')
                    A('s_waitcnt lgkmcnt(0)')
                    if late:
                        shift()
            if j == p['npos'] and p.get('sn'):
                A(f's_load_dwordx4 s[52:55], s[{S_DBG}:{S_DBG + 1}], 0')
            elif j == p['npos']:
                self.issue('N', f'buffer_load_dwordx4 v[34:37], {r("zero")}, {self.srd(S_DBG)}, 0 offen sc1')
            if j == p['ipos'] and not p.get('iuni'):
                A('s_and_b32 s42, s3, 3')
                A('s_cmp_lg_u32 s42, 1')
                A('s_cbranch_scc1 L_noipf')
                C('waves 1, 5: read the kernel text behind the load loop once, to pull it into L2')
                A('s_getpc_b64 s[46:47]')
                L('L_pc')
                A('s_lshl_b32 s42, s3, 10')
                A('s_add_u32 s42, s42, L_acc - L_pc - 1024')
                A('v_lshl_add_u32 v6, v1, 6, s42')
                A('v_min_u32 v6, L_last - L_pc, v6')
                A('v_mov_b32 v7, s47')
                A('v_add_co_u32 v6, vcc, s46, v6')
                A('s_nop 1')
                A('v_addc_co_u32 v7, vcc, 0, v7, vcc')
                A(f'global_load_dword {r("junk")}, v[6:7], off')
                L('L_noipf')
            uni(j)
            if j == p['wpf'] and not p.get('uni'):
                A('s_cmp_lg_u32 s3, 6')
                A('s_cbranch_scc1 L_nowpf')
                C('wave 6: touch 1/32 of the weights so that they are in L2 when they are staged')
                if p.get('wmall'):
                    A('s_mul_i32 s42, s2, 320')
                    A('v_lshlrev_b32 v6, 6, v1')
                    A('s_mov_b64 exec, 31')
                else:
                    A('s_mul_i32 s42, s5, 2304')
                    A('v_lshlrev_b32 v6, 6, v1')
                    A('s_mov_b32 exec_hi, 15')
                A(f'buffer_load_dword {r("junk")}, v6, {self.srd(S_W1)}, s42 offen')
                A(f'buffer_load_dword {r("junk")}, v6, {self.srd(S_W2)}, s42 offen')
                A('s_mov_b64 exec, -1')
                L('L_nowpf')
            if j == p['tpos'] and not p.get('uni'):
                A('s_cmp_lg_u32 s3, 4')
                A('s_cbranch_scc1 L_notch')
                C('wave 4: touch 1/32 of the lines this group will poll')
                if p.get('nobt'):
                    A('s_mov_b32 exec_hi, 0x1000ffff')
                if p.get('apos') is not None:
                    A('s_mov_b32 exec_lo, 0')
                    A('s_mov_b32 exec_hi, 0x1fff0000')
                A(f'buffer_load_dword {r("junk")}, {r("tch")}, {self.srd(S_WS)}, 0 offen {p.get("tpol", "sc1")}')
                A('s_mov_b64 exec, -1')
                L('L_notch')
            if j == p.get('apos'):
                assert self.tagged
                A('s_cmp_ge_u32 s3, 3')
                A('s_cbranch_scc1 L_noalloc')
                C('waves 0..2: own the lines of their later records early (check word deliberately wrong)')
                A('v_mov_b32 v50, 0')
                A('v_mov_b32 v51, 0')
                A('v_mov_b32 v52, 0')
                A(f'v_not_b32 v53, {r("tag")}')
                A(f'buffer_store_dwordx4 v[50:53], {r("pub")}, {self.srd(S_WS)}, 0 offen')
                L('L_noalloc')
            if p.get('wtail') and j == 32 - D:
                A('s_cmp_lt_u32 s5, 6')
                A('s_cbranch_scc1 L_wtail')
                self.vm_at_tail = list(self.vm)
            pair(j)
        for j in range(B, R):
            A(f's_cmp_le_u32 s15, {j - B}')
            A('s_cbranch_scc1 L_acc')
            self.wait_for(f'X{j}')
            unpack(j, TMP)
            if j + D < R:
                issue_x(j + D)
            for q in range(3):
                a = ACC + 4 * q
                A(f'v_pk_add_f32 v[{a}:{a + 1}], v[{a}:{a + 1}], v[{TMP + 2 * q}:{TMP + 2 * q + 1}]')
                A(f'v_max_f32 v{a + 2}, v{a + 2}, v{TMP + 2 * q}')
                A(f'v_max_f32 v{a + 3}, v{a + 3}, v{TMP + 2 * q + 1}')
        assert self.tagged
        L('L_acc')
        self.stamp()
        if p.get('p1only'):
            A('s_branch L_stdone')
        for q in range(3):
            A(f'ds_write_b128 {r("Pw")}, v[{ACC + 4 * q}:{ACC + 4 * q + 3}] offset:{16 * q}')
        uni(32)
        if not numa:
            A('s_min_u32 s42, s10, s11')
            A('s_cmp_eq_u32 s42, 0')
            A('s_cbranch_scc1 L_nonce')
            L('L_nonceback')
        A('s_waitcnt lgkmcnt(0)')
        A('s_barrier')
        A('s_cmp_ge_u32 s3, 3')
        A('s_cbranch_scc1 L_nopub')
        for w in range(8):
            A(f'ds_read_b128 v[{8 + 4 * w}:{11 + 4 * w}], {r("t16")} offset:{3072 * w}')
        for k in range(4):
            A(f's_waitcnt lgkmcnt({6 - 2 * k})')
            ra, rb = 8 + 8 * k, 12 + 8 * k
            if k == 0:
                A(f'v_max_f32 v10, v10, v{rb + 2}')
                A(f'v_max_f32 v11, v11, v{rb + 3}')
            else:
                A(f'v_max3_f32 v10, v10, v{ra + 2}, v{rb + 2}')
                A(f'v_max3_f32 v11, v11, v{ra + 3}, v{rb + 3}')
            A(f'v_pk_add_f32 v[{ra}:{ra + 1}], v[{ra}:{ra + 1}], v[{rb}:{rb + 1}]')
            if k == 1:
                A('v_pk_add_f32 v[8:9], v[8:9], v[16:17]')
            if k == 2:
                A('v_pk_add_f32 v[8:9], v[8:9], v[24:25]')
        A('v_cvt_pk_bf16_f32 v10, v10, v11')
        A('v_pk_add_f32 v[8:9], v[8:9], v[32:33]')
        self.key(10, 12)
        self.seal()
        pubA = f'buffer_store_dwordx4 v[8:11], {r("pub")}, {self.srd(S_WS)}, 0 offen'
        A(pubA if not p.get('force') else pubA + ' sc1')
        self.stamp()
        A('s_cmp_lt_u32 s5, 6')
        A('s_cbranch_scc1 L_mlp')
        if not p['wb']:
            A(f's_sleep {p["dlyA"]}')
            A(pubA + ' sc1')
        A('s_branch L_join')
        L('L_nopub')
        A('s_cmp_lt_u32 s5, 6')
        A('s_cbranch_scc1 L_mlp')
        A('s_cmp_lg_u32 s3, 4')
        A('s_cbranch_scc1 L_mlpback')
        A('s_cmp_lt_u32 s5, 8')
        A('s_cbranch_scc1 L_join')
        def red_in(x):
            self.stamp()
            A(f'v_pk_add_f32 v[8:9], v[{x}:{x + 1}], v[{x + 4}:{x + 5}]')
            A(f'v_pk_add_f32 v[16:17], v[{x + 8}:{x + 9}], v[{x + 12}:{x + 13}]')
            A(f'v_pk_max_i16 v10, v{x + 2}, v{x + 6}')
            A(f'v_pk_max_i16 v18, v{x + 10}, v{x + 14}')
        self.poll('L_poll1', r('in1'), [0, 1024, 2048, 3072], (44, 60), self.check_rec, red_in, p['stag'][0])
        A('v_pk_add_f32 v[8:9], v[8:9], v[16:17]')
        A('v_pk_max_i16 v10, v10, v18')
        A('s_nop 0')
        A('v_add_f32_dpp v8, v8, v8 row_ror:8 row_mask:0xf bank_mask:0xf')
        A('v_add_f32_dpp v9, v9, v9 row_ror:8 row_mask:0xf bank_mask:0xf')
        A('v_mov_b32_dpp v14, v10 row_ror:8 row_mask:0xf bank_mask:0xf')
        A('v_mov_b32 v12, v8')
        A('v_mov_b32 v13, v9')
        A('v_pk_max_i16 v10, v10, v14')
        A('v_permlane16_swap_b32 v8, v12')
        A('v_mov_b32 v14, v10')
        A('v_permlane16_swap_b32 v9, v13')
        A('v_add_f32 v8, v8, v12')
        A('v_permlane16_swap_b32 v10, v14')
        A('v_add_f32 v9, v9, v13')
        A('v_mov_b32 v12, v8')
        A('v_pk_max_i16 v10, v10, v14')
        A('v_mov_b32 v13, v9')
        A('v_permlane32_swap_b32 v8, v12')
        A('v_mov_b32 v14, v10')
        A('v_permlane32_swap_b32 v9, v13')
        A('v_add_f32 v8, v8, v12')
        A('v_permlane32_swap_b32 v10, v14')
        A('v_add_f32 v9, v9, v13')
        A('v_pk_max_i16 v10, v10, v14')
        self.seal()
        A(f'buffer_store_dwordx4 v[8:11], {r("out2")}, {self.srd(S_WS)}, 0 offen sc1')
        self.stamp()
        L('L_mlpback')
        A('s_cmp_lg_u32 s3, 7')
        A('s_cbranch_scc1 L_join')
        A('s_mov_b32 exec_hi, 0xffff')
        def s_out(x):
            if p.get('spec', True):
                return
            A(f'ds_write_b128 {r("Sw")}, v[{x}:{x + 3}]')
            A(f'ds_write_b128 {r("Sw")}, v[{x + 4}:{x + 7}] offset:768')
        self.poll('L_poll3', r('in3'), [0, 768], (76, 84), self.check_scale, s_out, p['stag'][2])
        A('s_mov_b64 exec, -1')
        A('s_waitcnt lgkmcnt(0)')
        L('L_join')
        A('s_barrier')
        for q in range(3):
            A(f'ds_read_b64 v[{32 + 2 * q}:{33 + 2 * q}], {r("S")} offset:{8 * q}')
        base(G)
        A('s_add_u32 s51, s40, 196608')
        if not late:
            A('s_add_u32 s40, s40, s41')
        self.stamp()
        pubC = f'buffer_store_dword v40, {r("out3")}, {self.srd(S_WS)}, 0 offen'
        order = list(range(R))
        if numa:
            order, a_, b_ = [], 0, S
            for k in range(32):
                if ((k + 1) * 4 * NS) // 32 != (k * 4 * NS) // 32:
                    order.append(b_)
                    b_ += 1
                else:
                    order.append(a_)
                    a_ += 1
        self.done = 0
        for n, j in enumerate(order):
            if j >= B:
                A(f's_cmp_le_u32 s15, {j - B}')
                A('s_cbranch_scc1 L_stdone')
            if p['wb'] and n == p.get('c2pos', 8):
                C('the waves that published a part of the scale repeat that store write-through')
                A('s_cmp_eq_u32 s12, 0')
                A('s_cbranch_scc1 L_noc2')
                A('s_mov_b64 exec, 0xffff')
                A(pubC + ' sc1')
                A('s_mov_b64 exec, -1')
                L('L_noc2')
            t = 8 + 6 * (n & 3)
            if p.get('nov'):
                so = slot(j)
                A(f'buffer_store_dwordx3 {self.d(j)}, {voff(j)}, {self.srd(S_OUT)}, {so} offen sc1')
                continue
            ahead = p.get('ahead', 1)
            while self.done < min(32, 1 + n * ahead):
                jc = order[self.done]
                t = 8 + 6 * (self.done & 3)
                unpack(jc, t)
                if self.done == 0:
                    A('s_waitcnt lgkmcnt(0)')
                for q in range(3):
                    A(f'v_pk_mul_f32 v[{t + 2 * q}:{t + 2 * q + 1}], v[{t + 2 * q}:{t + 2 * q + 1}], v[{32 + 2 * q}:{33 + 2 * q}]')
                for q in range(3):
                    A(f'v_cvt_pk_bf16_f32 v{DATA + 4 * jc + q}, v{t + 2 * q}, v{t + 2 * q + 1}')
                self.done += 1
            if numa:
                so = slot(j)
            else:
                if 0 < j < B:
                    adv(G)
                so = 's40' if j < B else f's{S_U + j - B}'
            ne, no = p.get('thr', (0, 0))
            if no and n >= no:
                A(f's_waitcnt vmcnt({no - 1})')
            if isinstance(ne, tuple):
                ne = ne[n % len(ne)]
            if ne and ne != no and n >= ne:
                A(f's_cbranch_vccnz L_thr{j}')
                A(f's_waitcnt vmcnt({ne - 1})')
                L(f'L_thr{j}')
            A(f'buffer_store_dwordx3 {self.d(j)}, {voff(j)}, {self.srd(S_OUT)}, {so} offen {p["spol"] if p.get("pfirst", 0) <= j < R - p.get("plast", 0) else p.get("spol2", "")}'.rstrip())
        L('L_stdone')
        if p.get('dumpptr'):
            A('s_cmp_lg_u32 s2, 0')
            A('s_cbranch_scc1 L_nodump')
            A('s_mov_b64 exec, 1')
            for k, sr in enumerate((S_X, S_X + 1, S_OUT, S_OUT + 1, S_WS, S_WS + 1, S_W1, S_DBG)):
                A(f'v_mov_b32 v8, s{sr}')
                A(f'buffer_store_dword v8, {r("zero")}, {self.srd(S_DBG)}, 0 offen offset:{16 + 4 * k}')
                A('s_nop 1')
            L('L_nodump')
        if p.get('amp') is not None and not p['stamps']:
            A('s_waitcnt vmcnt(0)')
            self.stamp()
            A('s_waitcnt lgkmcnt(0)')
            A('s_sub_u32 s94, s92, s88')
            if len(p['amp']) > 3:
                A('s_min_u32 s94, s94, 500')
                A('s_sub_u32 s94, 500, s94')
            A('s_cmp_eq_u32 s92, 0')
            A('s_cselect_b32 s94, 0, s94')
            A('s_cmp_eq_u32 s88, 0')
            A('s_cselect_b32 s94, 0, s94')
            A('s_min_u32 s94, s94, 3000')
            A(f's_lshl_b32 s94, s94, {p["amp"][2]}')
            A('s_add_u32 s94, s94, 3000')
            L('L_pad')
            A('s_sleep 2')
            A('s_memrealtime s[92:93]')
            A('s_waitcnt lgkmcnt(0)')
            A('s_sub_u32 s95, s92, s90')
            A('s_cmp_lt_u32 s95, s94')
            A('s_cbranch_scc1 L_pad')
        if p['stamps']:
            A('s_waitcnt vmcnt(0)')
            self.stamp()
            A('s_branch L_stamps')
        L('L_end')
        A('s_endpgm')

        L('L_nonce')
        C('the nonce was not there yet when this wave looked: wait for it')
        A(f's_mov_b32 s50, {p["spin"]}')
        if p.get('diagslow'):
            for _ in range(6):
                A('s_sleep 127')
        L('L_nonceloop')
        if p.get('sn'):
            A('buffer_inv sc1')
        A(f'buffer_load_dwordx4 v[34:37], {r("zero")}, {self.srd(S_DBG)}, 0 offen sc1')
        A('s_waitcnt vmcnt(0)')
        self.tags()
        A('s_cmp_lg_u32 s42, 0')
        A('s_cbranch_scc1 L_nonceback')
        A('s_sleep 4')
        A('s_sub_u32 s50, s50, 1')
        A('s_cbranch_scc0 L_nonceloop')
        A('s_branch L_nonceback')

        if p.get('wtail'):
            L('L_wtail')
            C('MLP workgroups: last rows, with the weight staging issued while the row loads drain')
            self.vm = self.vm_at_tail
            todo = list(range(p['wtail'][0]))
            def extra(jj):
                for _ in range(p['wtail'][1]):
                    if todo:
                        self.stage_one(todo.pop(0))
            for j in range(32 - D, 32, 2):
                pair(j, extra)
            assert not todo
            A('s_branch L_acc')
        L('L_mlp')
        C('MLP workgroups (ranks 0..5 of every group)')
        first = p['wtail'][0] if p.get('wtail') else 0
        pre = p.get('pre', 0)
        if p.get('cons'):
            n_pub, n_oth = p['cons']
            assert 3 * n_pub + 5 * n_oth == 96
            def run(n, lab):
                A('s_mov_b32 exec_hi, 0xffff')
                for i in range(n):
                    if i % 5 == 0:
                        if i:
                            A('s_addk_i32 s44, 3840')
                        A('s_mov_b32 m0, s44')
                        A('s_nop 0')
                    off = f' offset:{768 * (i % 5)}' if i % 5 else ''
                    A(f'buffer_load_dwordx4 {r("vW1" if i % 2 == 0 else "vW1b")}, {self.srd(S_W1)}, s44 offen{off} lds')
                A('s_mov_b32 exec_hi, -1')
            if n_pub == n_oth:
                A('s_barrier')
                run(n_pub, 'a')
                self.stage_one(12)
                self.stage_one(13)
            else:
                A('s_cmp_ge_u32 s3, 3')
                A('s_cbranch_scc1 L_cons1')
                if not p.get('nob1b'):
                    A('s_barrier')
                run(n_pub, 'a')
                self.stage_one(12)
                self.stage_one(13)
                A('s_branch L_cons2')
                L('L_cons1')
                A('s_mov_b32 s43, s44')
                self.stage_one(12)
                self.stage_one(13)
                A('s_mov_b32 s44, s43')
                if not p.get('nob1b'):
                    A('s_barrier')
                run(n_oth, 'b')
                L('L_cons2')
        elif pre:
            C('waves 3..7 start a few copies while waves 0..2 still publish')
            A('s_cmp_ge_u32 s3, 3')
            A('s_cbranch_scc1 L_pre1')
            A('s_barrier')
            L('L_pre1')
            for i in range(pre):
                self.stage_one(i)
            A('s_cmp_lt_u32 s3, 3')
            A('s_cbranch_scc1 L_pre2')
            A('s_barrier')
            L('L_pre2')
            for i in range(pre, 14):
                self.stage_one(i)
        elif first < 14:
            A('s_barrier')
            for i in range(first, 14):
                self.stage_one(i)
        A('s_movk_i32 s42, 6144')
        A('s_movk_i32 s43, 12288')
        A('s_movk_i32 s45, 18432')
        A('s_waitcnt vmcnt(0)')
        A('s_barrier')
        if not p['wb']:
            A('s_cmp_ge_u32 s3, 3')
            A('s_cbranch_scc1 L_nopub2')
            A(pubA + ' sc1')
            L('L_nopub2')
        def tr_reads():
            for b in range(12):
                for h in range(2):
                    base = r('a1') if b < 6 else r('a1b')
                    x = W1F + 4 * b + 2 * h
                    A(f'ds_read_b64_tr_b16 v[{x}:{x + 1}], {base} offset:{(b % 6) * 6144 + h * 1536}')
            for b in range(3):
                for h in range(2):
                    x = W2F + 4 * b + 2 * h
                    A(f'ds_read_b64_tr_b16 v[{x}:{x + 1}], {r("a2")} offset:{(32 * b + 8 * h) * 128}')
            self.stamp()
        assert p['direct']
        if p.get('direct'):
            A('s_cmp_ge_u32 s3, 6')
            A('s_cbranch_scc1 L_nog')
            if not p.get('hoist', True):
                tr_reads()
            def g_in(x):
                self.stamp()
                A(f'v_pk_add_f32 v[8:9], v[{x}:{x + 1}], v[{x + 4}:{x + 5}]')
                A(f'v_pk_add_f32 v[16:17], v[{x + 8}:{x + 9}], v[{x + 12}:{x + 13}]')
                A(f'v_pk_max_i16 v10, v{x + 2}, v{x + 6}')
                A(f'v_pk_max_i16 v18, v{x + 10}, v{x + 14}')
            self.poll('L_poll2', r('in2'), ['0', 's42', 's43', 's45'], (20, 20), self.check_rec, g_in, 0, between=tr_reads if p.get('hoist', True) else None)
            A('v_pk_add_f32 v[8:9], v[8:9], v[16:17]')
            A('v_pk_max_i16 v10, v10, v18')
            A('v_mov_b32 v12, v8')
            A('v_mov_b32 v13, v9')
            A('v_mov_b32 v14, v10')
            A('v_permlane32_swap_b32 v8, v12')
            A('v_permlane32_swap_b32 v9, v13')
            A('v_permlane32_swap_b32 v10, v14')
            A('v_pk_add_f32 v[8:9], v[8:9], v[12:13]')
            A('v_pk_max_i16 v10, v10, v14')
            A('v_mul_f32 v8, 0x37800000, v8')
            A('v_mul_f32 v9, 0x37800000, v9')
            self.key(10, 12)
            A('v_cvt_pk_bf16_f32 v8, v8, v9')
            A('s_mov_b32 exec_hi, 0')
            A(f'ds_write2_b32 {r("Gw")}, v8, v10 offset0:0 offset1:{GOFF // 4}')
            A('s_mov_b32 exec_hi, -1')
            A('s_waitcnt lgkmcnt(0)')
        else:
            def q_out(x):
                self.stamp()
                for q in range(3):
                    A(f'ds_write_b128 {r("Qw")}, v[{x + 4 * q}:{x + 3 + 4 * q}] offset:{1024 * q}')
            self.poll('L_poll2', r('in2'), [0, 1024, 2048], (104, 116), self.check_rec, q_out, p['stag'][1])
            A('s_waitcnt lgkmcnt(0)')
            A('s_barrier')
            if p.get('fine') and p['stamps']:
                A('s_memrealtime s[68:69]')
            A('s_cmp_ge_u32 s3, 3')
            A('s_cbranch_scc1 L_nog')
            for w in range(8):
                A(f'ds_read_b128 v[{8 + 4 * w}:{11 + 4 * w}], {r("t16")} offset:{3072 * w}')
            for k in range(4):
                A(f's_waitcnt lgkmcnt({6 - 2 * k})')
                ra, rb = 8 + 8 * k, 12 + 8 * k
                A(f'v_pk_add_f32 v[{ra}:{ra + 1}], v[{ra}:{ra + 1}], v[{rb}:{rb + 1}]')
                A(f'v_pk_max_i16 v{ra + 2}, v{ra + 2}, v{rb + 2}')
                if k:
                    A(f'v_pk_add_f32 v[8:9], v[8:9], v[{ra}:{ra + 1}]')
                    A(f'v_pk_max_i16 v10, v10, v{ra + 2}')
            A('v_mul_f32 v8, 0x37800000, v8')
            A('v_mul_f32 v9, 0x37800000, v9')
            self.key(10, 12)
            A('v_cvt_pk_bf16_f32 v8, v8, v9')
            A(f'ds_write2_b32 {r("Gw")}, v8, v10 offset0:0 offset1:{GOFF // 4}')
            A('s_waitcnt lgkmcnt(0)')
        L('L_nog')
        A('s_barrier')
        self.stamp()
        A('s_cmp_ge_u32 s3, 6')
        A('s_cbranch_scc1 L_nol1')
        NB = 8
        for b in range(NB):
            A(f'ds_read_b128 v[{8 + 4 * b}:{11 + 4 * b}], {r("G")} offset:{64 * b}')
        issued = NB
        for b in range(12):
            A(f's_waitcnt lgkmcnt({issued - b - 1})')
            g = 8 + 4 * (b % NB)
            c = '0' if b == 0 else 'v[40:43]'
            A(f'v_mfma_f32_16x16x32_bf16 v[40:43], v[{W1F + 4 * b}:{W1F + 4 * b + 3}], v[{g}:{g + 3}], {c}')
            if issued < 12:
                A(f'ds_read_b128 v[{g}:{g + 3}], {r("G")} offset:{64 * issued}')
                issued += 1
        A('s_nop 7')
        if p.get('fine') and p['stamps']:
            A('v_mov_b32 v7, v43')
            A('s_memrealtime s[62:63]')
        for k in range(4):
            A(f'v_mul_f32 v{8 + k}, 0, v{40 + k}')
            A(f'v_cmp_lt_f32 s[{52 + 2 * k}:{53 + 2 * k}], 0, v{40 + k}')
        A('s_mov_b32 exec_lo, 0x00030003')
        A('s_mov_b32 exec_hi, 0x00030003')
        for k in range(4):
            A(f'v_cndmask_b32 v{8 + k}, v{8 + k}, v{40 + k}, s[{52 + 2 * k}:{53 + 2 * k}]')
        A('v_cvt_pk_bf16_f32 v12, v8, v9')
        A('v_cvt_pk_bf16_f32 v13, v10, v11')
        A(f'ds_write_b64 {r("Hw")}, v[12:13]')
        A('s_mov_b64 exec, -1')
        A('s_waitcnt lgkmcnt(0)')
        L('L_nol1')
        A('s_barrier')
        if p.get('fine') and p['stamps']:
            A('s_memrealtime s[66:67]')
        A('s_cmp_ge_u32 s3, 4')
        A('s_cbranch_scc1 L_mlpback')
        for b in range(3):
            A(f'ds_read_b128 v[{8 + 4 * b}:{11 + 4 * b}], {r("H")} offset:{64 * b}')
        for b in range(3):
            A(f's_waitcnt lgkmcnt({2 - b})')
            c = '0' if b == 0 else 'v[20:23]'
            wf = W2F + 4 * b
            A(f'v_mfma_f32_16x16x32_bf16 v[20:23], v[{8 + 4 * b}:{11 + 4 * b}], v[{wf}:{wf + 3}], {c}')
        A('s_nop 7')
        if p.get('fine') and p['stamps']:
            A('v_mov_b32 v7, v23')
            A('s_memrealtime s[70:71]')
        A('v_cvt_pk_bf16_f32 v8, v20, v21')
        A('v_lshlrev_b32 v9, 16, v8')
        A('v_and_b32 v8, s48, v8')
        A('v_add_f32 v8, v8, v9')
        A('v_cvt_pk_bf16_f32 v8, v8, v8')
        A('v_and_b32 v8, s48, v8')
        A('v_mul_f32 v8, 0xbfb8aa3b, v8')
        A('v_exp_f32 v8, v8')
        A('s_mov_b64 exec, 0xffff')
        A('v_add_f32 v8, 1.0, v8')
        A('v_rcp_f32 v8, v8')
        A('s_nop 0')
        A('v_cvt_pk_bf16_f32 v8, v8, v8')
        A(f'v_and_or_b32 v40, v8, s48, {r("tag16")}')
        A(pubC if not p.get('force') else pubC + ' sc1')
        A('s_mov_b32 s12, 1')
        self.stamp()
        if not p['wb']:
            A(f's_sleep {p["dlyC"]}')
            A(pubC + ' sc1')
        A('s_mov_b64 exec, -1')
        L('L_last')
        A('s_branch L_join')

        if p['stamps']:
            L('L_stamps')
            A('s_waitcnt lgkmcnt(0)')
            A(f's_add_u32 s56, s{S_WS}, 0x8000000')
            A(f's_addc_u32 s57, s{S_WS + 1}, 0')
            A('s_lshl_b32 s58, s2, 4\n    s_add_u32 s58, s58, s3\n    s_lshl_b32 s58, s58, 7')
            A('s_mov_b64 exec, 1')
            A('v_mov_b32 v1, s58')
            A('s_getreg_b32 s59, hwreg(HW_REG_XCC_ID, 0, 4)')
            A('v_mov_b32 v4, s59\n    v_mov_b32 v5, 0')
            A('global_store_dwordx2 v1, v[4:5], s[56:57] offset:120')
            A('s_nop 1')
            A('v_mov_b32 v4, s15')
            A('global_store_dwordx2 v1, v[4:5], s[56:57] offset:112')
            A('s_nop 1')
            order = [0, 1, 2, 3, 4, 5, 8, 9, 10, 11, 6, 7]
            for i, k in enumerate(order):
                A(f'v_mov_b32 v4, s{S_ST + 2 * k}\n    v_mov_b32 v5, s{S_ST + 1 + 2 * k}')
                A(f'global_store_dwordx2 v1, v[4:5], s[56:57] offset:{8 * i}')
                A('s_nop 1')
            A('s_endpgm')
        o.append('.section .rodata,"a"')
        o.append('.p2align 6')
        o.append(f'.amdhsa_kernel {KNAME}')
        o.append('  .amdhsa_next_free_vgpr 256')
        o.append('  .amdhsa_next_free_sgpr 102')
        o.append('  .amdhsa_accum_offset 256')
        o.append('  .amdhsa_group_segment_fixed_size 0')
        o.append('  .amdhsa_kernarg_size 48')
        o.append('  .amdhsa_user_sgpr_count 2')
        o.append('  .amdhsa_user_sgpr_kernarg_segment_ptr 1')
        o.append('  .amdhsa_system_sgpr_workgroup_id_x 1')
        o.append('  .amdhsa_float_denorm_mode_32 3')
        o.append('.end_amdhsa_kernel')
        return '\n'.join(o) + '\n'

    def addr_prep(self):
        A, r = self.A, self.r
        kg, q3, l1, kc, rr, q7 = 'v44', 'v45', 'v46', 'v47', 'v48', 'v49'
        A(f'v_lshrrev_b32 {kg}, 4, v1')
        A(f'v_and_b32 {q3}, 3, v1')
        A(f'v_and_b32 {l1}, 1, v1')
        A(f'v_bfe_u32 {kc}, v1, 4, 1')
        A(f'v_bfe_u32 {rr}, v1, 2, 2')
        A(f'v_and_b32 {q7}, 0x70, v4')
        A('s_mul_i32 s45, s3, 3072')
        A(f's_add_u32 s45, s45, {L_P}')
        A('v_mul_u32_u24 v3, 48, v1')
        A(f'v_add_u32 {r("Pw")}, s45, v3')
        A(f'v_add_u32 {r("Qw")}, s45, v4')
        A('v_lshlrev_b32 v3, 4, v0')
        A(f'v_add_u32 {r("t16")}, {L_P}, v3')
        A('s_mul_i32 s49, s4, 98304')
        A('s_lshl_b32 s45, s5, 7')
        A('s_add_u32 s45, s45, s49')
        A('v_lshrrev_b32 v3, 3, v0')
        A(f'v_lshl_add_u32 v3, v3, 12, {q7}')
        A(f'v_add_u32 {r("pub")}, s45, v3')
        A('s_sub_u32 s51, s5, 8')
        A('s_lshl_b32 s45, s51, 12')
        A('s_add_u32 s45, s45, s49')
        A(f'v_add_u32 {r("in1")}, s45, v4')
        if self.p['tpos'] is not None:
            A('s_mul_i32 s45, s5, 3072')
            A('s_add_u32 s45, s45, s49')
            A('v_lshlrev_b32 v3, 6, v1')
            A('v_add_u32 v5, s45, v3')
            A(f's_xor_b32 s45, s4, {self.p.get("bx", 0)}')
            A('s_mul_i32 s45, s45, 24576')
            A('s_mul_i32 s43, s5, 768')
            A('s_add_u32 s45, s45, s43')
            A(f's_add_u32 s45, s45, {O_B - 48 * 64}')
            A('v_add_u32 v6, s45, v3')
            A('v_cmp_gt_u32 vcc, 48, v1')
            A('s_lshl_b32 s45, s4, 11')
            A('s_lshl_b32 s43, s5, 6')
            A('v_cndmask_b32 v5, v6, v5, vcc')
            A('s_add_u32 s45, s45, s43')
            A(f's_add_u32 s45, s45, {O_C}')
            A('v_mov_b32 v6, s45')
            A('v_cmp_gt_u32 vcc, 60, v1')
            A('s_nop 1')
            A(f'v_cndmask_b32 {r("tch")}, v6, v5, vcc')
            if self.p.get('uni'):
                A(f's_cmp_eq_u32 s3, {self.p.get("twave", 4)}')
                A('s_cselect_b32 s45, 0, 2.0')
                A(f'v_add_u32 {r("tch")}, s45, {r("tch")}')
                A('s_mul_i32 s45, s5, 2304')
                A(f's_cmp_eq_u32 s3, {self.p.get("wwave", 6)}')
                A('s_cselect_b32 s45, s45, 2.0')
                A('v_add_u32 v5, s45, v3')
                A('v_cmp_gt_u32 vcc, 36, v1')
                A('v_mov_b32 v6, 2.0')
                A('s_nop 0')
                A(f'v_cndmask_b32 {r("wtc")}, v6, v5, vcc')
                if self.p.get('half'):
                    A(f'v_lshlrev_b32 v5, 30, {l1}')
                    A(f'v_or_b32 {r("wtc")}, v5, {r("wtc")}')
                    A(f'v_or_b32 {r("tch")}, v5, {r("tch")}')
        A('s_mul_i32 s45, s4, 3072')
        A('s_lshl_b32 s49, s51, 7')
        A('s_add_u32 s45, s45, s49')
        A(f's_add_u32 s45, s45, {O_B}')
        A('v_lshrrev_b32 v3, 3, v1')
        A('v_mul_u32_u24 v3, 24576, v3')
        A(f'v_add3_u32 {r("out2")}, v3, {q7}, s45')
        if self.p.get('direct'):
            A('s_mul_i32 s45, s4, 24576')
            A('s_lshl_b32 s49, s3, 9')
            A('s_add_u32 s45, s45, s49')
            A(f's_add_u32 s45, s45, {O_B}')
            A('v_lshrrev_b32 v3, 5, v1')
            A('v_mul_u32_u24 v3, 2560, v3')
            A(f'v_add3_u32 {r("in2")}, v3, v4, s45')
        else:
            A('s_lshl_b32 s45, s4, 3')
            A('s_add_u32 s45, s45, s3')
            A('s_mul_i32 s45, s45, 3072')
            A(f's_add_u32 s45, s45, {O_B}')
            A(f'v_add_u32 {r("in2")}, s45, v4')
        A('s_lshl_b32 s45, s4, 11')
        A(f's_add_u32 s45, s45, {O_C}')
        A(f'v_add_u32 {r("in3")}, s45, v4')
        A('s_lshl_b32 s49, s5, 2')
        A('s_add_u32 s49, s49, s3')
        A('s_lshl_b32 s49, s49, 6')
        A('s_add_u32 s45, s45, s49')
        A(f'v_lshl_add_u32 {r("out3")}, v1, 2, s45')
        if self.p.get('direct'):
            A('v_and_b32 v3, 0x19, v1')
            A('s_lshl_b32 s45, s3, 5')
            A('v_add_u32 v3, s45, v3')
        else:
            A('v_and_b32 v3, 0x1f9, v0')
        A('v_bfe_u32 v5, v0, 1, 1')
        A('v_lshl_add_u32 v3, v5, 2, v3')
        A('v_bfe_u32 v5, v0, 2, 1')
        A('v_lshl_add_u32 v3, v5, 1, v3')
        A('v_lshlrev_b32 v3, 2, v3')
        A(f'v_add_u32 {r("Gw")}, {L_G}, v3')
        A(f'v_mul_u32_u24 v3, {GOFF}, {l1}')
        A(f'v_lshl_add_u32 v3, {kg}, 4, v3')
        A(f'v_add_u32 {r("G")}, {L_G}, v3')
        A(f'v_mul_u32_u24 v3, 192, {l1}')
        A(f'v_add_u32 v3, {L_H}, v3')
        A(f'v_lshl_add_u32 {r("H")}, {kg}, 4, v3')
        A(f'v_lshl_add_u32 v3, {kc}, 4, v3')
        A('v_lshrrev_b32 v5, 5, v1')
        A('v_lshl_add_u32 v3, v5, 3, v3')
        A('s_lshl_b32 s45, s3, 5')
        A(f'v_add_u32 {r("Hw")}, s45, v3')
        A(f'v_add_u32 {r("Sw")}, {L_S}, v4')
        A('v_mul_u32_u24 v3, 24, v1')
        A(f'v_add_u32 {r("S")}, {L_S}, v3')
        if self.p.get('cons'):
            n_pub, n_oth = self.p['cons']
            A('s_min_u32 s44, s3, 3')
            A(f's_mul_i32 s44, s44, {n_pub - n_oth}')
            A(f's_mul_i32 s45, s3, {n_oth}')
            A('s_add_u32 s44, s44, s45')
            A('s_lshl_b32 s45, s44, 5')
            A('s_mul_i32 s44, s44, 768')
            A('s_and_b32 s45, s45, 32')
            A(f'v_xor_b32 {r("vW1")}, s45, v4')
            A(f'v_xor_b32 {r("vW1b")}, 32, {r("vW1")}')
        else:
            A('s_and_b32 s45, s45, 32')
            A(f'v_xor_b32 {r("vW1")}, s45, v4')
        A('v_lshrrev_b32 v3, 3, v1')
        A('v_mul_u32_u24 v3, 768, v3')
        A('s_lshl_b32 s45, s5, 7')
        A(f'v_add3_u32 {r("vW2")}, v3, {q7}, s45')
        A(f'v_lshl_add_u32 v6, {kc}, 2, {rr}')
        A('v_lshl_add_u32 v7, v5, 4, v6')
        A(f'v_xor_b32 v3, s3, {kc}')
        A('v_lshlrev_b32 v3, 5, v3')
        A(f'v_lshl_add_u32 v3, {q3}, 3, v3')
        A('v_mul_u32_u24 v5, 192, v7')
        A(f'v_add_u32 {r("a1")}, v3, v5')
        A(f'v_add_u32 {r("a1b")}, {6 * 6144}, {r("a1")}')
        A('v_lshlrev_b32 v5, 7, v7')
        A(f'v_lshl_add_u32 v5, {q3}, 3, v5')
        A('s_and_b32 s45, s3, 3')
        A('s_lshl_b32 s45, s45, 5')
        A(f's_add_u32 s45, s45, {L_W2}')
        A(f'v_add_u32 {r("a2")}, s45, v5')


if __name__ == '__main__':
    kw = eval('dict(%s)' % (sys.argv[2] if len(sys.argv) > 2 else ''))
    open(sys.argv[1], 'w').write(Gen(**kw).build())
```
